```python
import torch

def _softmax(x, axis=-1):
    return torch.softmax(x, dim=axis)
def _gelu(x):
    return torch.nn.functional.gelu(x, approximate="tanh")
def _silu(x):
    return torch.nn.functional.silu(x)
def _sigmoid(x):
    return torch.sigmoid(x)
def _layernorm(x, axis=-1, eps=1e-5):
    m = x.mean(dim=axis, keepdim=True)
    v = x.var(dim=axis, keepdim=True, unbiased=False)
    return (x - m) / torch.sqrt(v + eps)
def _scatter_add(tgt, idx, src, axis=0):
    return tgt.clone().index_add_(axis, idx, src)
def _segment_sum(src, seg, n):
    out = torch.zeros((n,) + src.shape[1:], dtype=src.dtype)
    return out.index_add_(0, seg, src)
def _pad(x, pw):
    flat = tuple(v for pair in reversed(pw) for v in pair)
    return torch.nn.functional.pad(x, flat)

kernel_name = 'gather_scatter__edge_featured_mpnn_mpnn__graph'

def setup_inputs():

    _w = (lambda a: (lambda t: t.to(torch.bfloat16) if t.is_floating_point() else t)(torch.as_tensor(a)))
    N, deg, D, De = 10000, 64, 64, max(16, 1)
    E = N * deg
    H = 2 * D
    return {
        "x": _w((lambda *s: torch.randn(*s, dtype=torch.bfloat16) * 0.05)(N, D)),
        "e_attr": _w((lambda *s: torch.randn(*s, dtype=torch.bfloat16) * 0.8)(E, De)),
        "src": _w((lambda lo, hi, *s: torch.randint(lo, hi, s))(0, N, E).to(torch.int64)),
        "dst": _w((lambda lo, hi, *s: torch.randint(lo, hi, s))(0, N, E).to(torch.int64)),
        "w1": _w((lambda *s: torch.randn(*s, dtype=torch.bfloat16) * 0.8)(2 * D + De, H) * (1.0 / (2 * D + De) ** 0.5)),
        "b1": _w((lambda *s: torch.randn(*s, dtype=torch.bfloat16) * 0.4)(H) * 0.01),
        "w2": _w((lambda *s: torch.randn(*s, dtype=torch.bfloat16) * 0.05)(H, D) * (1.0 / H ** 0.5)),
        "b2": _w((lambda *s: torch.randn(*s, dtype=torch.bfloat16) * 0.05)(D) * 0.01),
    }

def reference(x, e_attr, src, dst, w1, b1, w2, b2):
    N, D = x.shape
    h_src = x[src]
    h_dst = x[dst]
    m_in = torch.concatenate([h_src, h_dst, e_attr], axis=-1)
    h = _silu(m_in @ w1 + b1)
    msg = h @ w2 + b2
    return _segment_sum(msg, dst, N)
```

```python
import re

TRANS = ("v_exp_f32", "v_log_f32", "v_rcp_f32", "v_rsq_f32", "v_sqrt_f32", "v_sin_f32", "v_cos_f32")

def parse_regs(tok):
    tok = tok.strip()
    m = re.fullmatch(r"(-?\|?)([vs])\[(\d+):(\d+)\]\|?", tok)
    if m:
        return {(m.group(2), i) for i in range(int(m.group(3)), int(m.group(4)) + 1)}
    m = re.fullmatch(r"(-?\|?)([vs])(\d+)\|?", tok)
    if m:
        return {(m.group(2), int(m.group(3)))}
    if tok == "vcc":
        return {("s", "vcc")}
    if tok == "exec":
        return {("s", "exec")}
    if tok == "m0":
        return {("s", "m0")}
    return set()

class Ins:
    def __init__(self, text):
        self.text = text
        t = text.split(";")[0].strip()
        self.is_label = t.endswith(":")
        self.is_dir = t.startswith(".")
        self.mn = ""
        self.ops = []
        if not t or self.is_label or self.is_dir:
            self.kind = "none"; self.w = set(); self.r = set(); return
        parts = t.split(None, 1)
        self.mn = parts[0]
        rest = parts[1] if len(parts) > 1 else ""
        ops = []; depth = 0; cur = ""
        for ch in rest:
            if ch == "[": depth += 1
            if ch == "]": depth -= 1
            if ch == "," and depth == 0:
                ops.append(cur.strip()); cur = ""
            else:
                cur += ch
        if cur.strip(): ops.append(cur.strip())
        if ops:
            last = ops[-1].split()
            self.mods = " ".join(last[1:])
            ops[-1] = last[0]
        else:
            self.mods = ""
        self.ops = ops
        mn = self.mn
        R = [parse_regs(o) for o in ops]
        w = set(); r = set()
        self.dpp = "dpp" in mn or "row_" in self.mods or "wave_" in self.mods
        if mn.startswith("v_mfma"):
            self.kind = "mfma"; w = R[0]; r = R[1] | R[2] | R[3]
            self.srcc = R[3]; self.srcab = R[1] | R[2]
        elif mn.startswith("v_cmpx"):
            self.kind = "valu"; w = R[0] | {("s", "exec")}; r = set().union(*R[1:])
        elif mn.startswith("v_cmp"):
            self.kind = "valu"; w = R[0]; r = set().union(*R[1:])
        elif mn.startswith("v_readfirstlane") or mn.startswith("v_readlane"):
            self.kind = "valu"; w = R[0]; r = set().union(*R[1:])
        elif mn.startswith("v_permlane"):
            self.kind = "valu"; w = R[0] | R[1]; r = R[0] | R[1]
        elif mn.startswith("v_"):
            self.kind = "valu"; w = set(R[0]); r = set().union(*R[1:]) if len(R) > 1 else set()
            if "_co_" in mn:
                w |= R[1]; r = set().union(*R[2:])
            if mn.startswith("v_fmac") or mn.startswith("v_pk_fmac") or self.dpp:
                r |= R[0]
            if mn.startswith("v_cndmask") and len(ops) == 3:
                r |= {("s", "vcc")}
        elif mn.startswith("ds_"):
            self.kind = "ds"
            if mn.startswith("ds_read") or "_rtn" in mn or mn.startswith("ds_bpermute") or mn.startswith("ds_swizzle"):
                w = R[0]; r = set().union(*R[1:]) if len(R) > 1 else set()
            else:
                r = set().union(*R)
        elif mn.startswith("buffer_") or mn.startswith("global_"):
            self.kind = "vmem"
            allmods = self.mods
            self.lds = (" lds" in (" " + allmods)) or "_lds_" in mn
            if "store" in mn or "atomic" in mn:
                r = set().union(*R)
            elif self.lds:
                r = set().union(*R) | {("s", "m0")}
            else:
                w = R[0]; r = set().union(*R[1:])
        elif mn.startswith("s_"):
            self.kind = "salu"
            if mn.startswith(("s_cmp", "s_waitcnt", "s_barrier", "s_nop", "s_branch", "s_cbranch", "s_endpgm", "s_setprio", "s_sleep")):
                r = set().union(*R) if R else set()
            else:
                w = R[0] if R else set(); r = set().union(*R[1:]) if len(R) > 1 else set()
                if "saveexec" in mn:
                    w |= {("s", "exec")}; r |= {("s", "exec")}
        else:
            raise ValueError("unknown instruction: " + text)
        self.w = w; self.r = r
        self.states = 1
        if mn == "s_nop":
            self.states = int(ops[0], 0) + 1

def vonly(s): return {x for x in s if x[0] == "v"}
def sonly(s): return {x for x in s if x[0] == "s"}

def need(prod, cons):
    n = 0
    pk, ck = prod.kind, cons.kind
    pw = prod.w
    if pk == "valu":
        if ck == "mfma" and vonly(pw) & cons.r: n = max(n, 2)
        if ck == "valu":
            if prod.mn in TRANS and cons.mn not in TRANS and (vonly(pw) & (cons.r)): n = max(n, 1)
            if cons.dpp and vonly(pw) & cons.r: n = max(n, 2)
            if cons.mn.startswith(("v_readfirstlane", "v_readlane")) and vonly(pw) & cons.r: n = max(n, 1)
            if cons.mn.startswith("v_permlane") and vonly(pw) & cons.r: n = max(n, 2)
            sw = sonly(pw) - {("s", "exec")}
            if sw & cons.r: n = max(n, 4 if cons.mn.startswith(("v_readlane", "v_writelane")) else 2)
            if ("s", "exec") in pw:
                if cons.dpp: n = max(n, 5)
                if cons.mn.startswith(("v_readlane", "v_readfirstlane", "v_writelane", "v_permlane")): n = max(n, 4)
                if ("s", "exec") in cons.r: n = max(n, 2)
        if ck == "mfma" and ("s", "exec") in pw: n = max(n, 4)
        if ck == "vmem" and (sonly(pw) - {("s", "exec")}) & cons.r: n = max(n, 5)
        if ck == "salu" and (sonly(pw) - {("s", "exec")}) & cons.r: n = max(n, 1)
    if pk == "mfma":
        big = "32x32" in prod.mn
        raw = 12 if big else 8
        if ck == "valu" and (pw & (cons.r | cons.w)): n = max(n, raw)
        if ck in ("ds", "vmem") and (pw & (cons.r | cons.w)): n = max(n, raw)
        if ck == "mfma":
            if pw & cons.srcab: n = max(n, raw)
            if pw & cons.srcc and cons.srcc != pw: n = max(n, 10 if big else 6)
        if ck == "valu" and (prod.srcc & cons.w): n = max(n, 7 if big else 3)
    if pk == "salu" and ("s", "m0") in pw and ck == "vmem" and cons.lds: n = max(n, 1)
    if pk == "vmem" and "store" in prod.mn and ("x4" in prod.mn or "x3" in prod.mn):
        if ck == "valu" and vonly(prod.r) & cons.w: n = max(n, 2)
    return n

class Asm:
    def __init__(self):
        self.ins = []
    def __call__(self, text):
        for line in text.strip("\n").split("\n"):
            if line.strip():
                self.ins.append(Ins(line.strip()))
    def label(self, name):
        self.ins.append(Ins(name + ":"))
    def pad(self, window=24):
        out = []; added = 0
        for c in self.ins:
            if c.kind != "none":
                dist = 0; worst = 0
                for p in reversed(out[-window * 2:]):
                    if p.kind == "none": continue
                    nd = need(p, c)
                    if nd > dist: worst = max(worst, nd - dist)
                    dist += p.states
                    if dist >= 16: break
                while worst > 0:
                    k = min(worst, 16)
                    out.append(Ins(f"s_nop {k - 1}")); worst -= k; added += 1
            out.append(c)
        self.ins = out
        return added
    def check_loop(self, start_label, end_branch_text):
        names = [i.text for i in self.ins]
        a = names.index(start_label + ":")
        b = max(i for i, t in enumerate(names) if t.startswith(end_branch_text))
        body = [i for i in self.ins[a:b + 1] if i.kind != "none"]
        seq = body + body
        bad = []
        for ci in range(len(body), min(len(seq), len(body) + 40)):
            c = seq[ci]; dist = 0
            for pi in range(ci - 1, max(-1, ci - 40), -1):
                p = seq[pi]
                nd = need(p, c)
                if nd > dist: bad.append((p.text, c.text, nd, dist))
                dist += p.states
                if dist >= 16: break
        return bad
    def text(self):
        o = []
        for i in self.ins:
            if i.is_label or i.is_dir: o.append(i.text)
            else: o.append("    " + i.text)
        return "\n".join(o) + "\n"
```

```python
import sys
from asmlib import Asm

NAME = "gather_scatter__edge_featured_mpnn_mpnn__graph"
KA = "gs_sort_kernel"
KB = NAME + "_kernel"

N_NODES = 10000; N_EDGES = 640000; NB = 256; CH = 2500
WS_TBL = 0; WS_REC = 262144; WS_WF = WS_REC + N_EDGES * 4; WS_END = WS_WF + 52 * 1024
assert WS_WF % 4096 == 0
BF_ONE = 0x3F80
SCALE = -1.4426950408889634
import struct
def f2u(x): return struct.unpack("<I", struct.pack("<f", x))[0]

OPT = dict(debug=False, prio=True)
for a in sys.argv[1:]:
    if "=" in a:
        k, v = a.split("="); OPT[k] = eval(v)

def srd(A, d, base, size, stride=0):
    A(f"s_mov_b32 s{d}, s{base}")
    A(f"s_and_b32 s{d+1}, s{base+1}, 0xffff")
    if stride: A(f"s_or_b32 s{d+1}, s{d+1}, {stride << 16:#x}")
    A(f"s_mov_b32 s{d+2}, {size}")
    A(f"s_mov_b32 s{d+3}, 0x20000")

def wave_scan(A, v):
    for sh in (1, 2, 4, 8):
        A(f"v_add_u32_dpp v{v}, v{v}, v{v} row_shr:{sh} row_mask:0xf bank_mask:0xf")
    A(f"v_add_u32_dpp v{v}, v{v}, v{v} row_bcast:15 row_mask:0xa bank_mask:0xf")
    A(f"v_add_u32_dpp v{v}, v{v}, v{v} row_bcast:31 row_mask:0xc bank_mask:0xf")

def kernel_a():
    A = Asm()
    LH, LB, LS = 0, 1024, 2048
    A.label(KA)
    A(f"""
s_cmp_ge_u32 s2, {NB}
s_cbranch_scc1 A_END
s_load_dwordx4 s[4:7], s[0:1], 16
s_load_dwordx2 s[8:9], s[0:1], 80
s_load_dwordx2 s[10:11], s[0:1], 32
s_load_dwordx2 s[28:29], s[0:1], 48
v_lshrrev_b32 v1, 6, v0
v_readfirstlane_b32 s3, v1
s_cmp_eq_u32 s3, 10
s_cbranch_scc1 A_PREP
v_lshlrev_b32 v2, 2, v0
v_mov_b32 v3, 0
s_cmp_ge_u32 s3, 4
s_cbranch_scc1 A_NOZ
ds_write_b32 v2, v3 offset:{LH}
""")
    A.label("A_NOZ")
    A(f"""
s_mul_i32 s24, s2, {CH * 4}
v_lshlrev_b32 v2, 4, v0
v_cmp_gt_u32 vcc, {CH // 4}, v0
s_waitcnt lgkmcnt(0)
""")
    srd(A, 12, 4, N_EDGES * 4)
    srd(A, 16, 6, N_EDGES * 4)
    srd(A, 20, 8, WS_END)
    A(f"""
s_and_saveexec_b64 s[26:27], vcc
s_mov_b64 s[30:31], exec
buffer_load_dwordx4 v[4:7], v2, s[16:19], s24 offen
buffer_load_dwordx4 v[8:11], v2, s[12:15], s24 offen
s_barrier
v_lshlrev_b32 v12, 8, v0
v_add_u32 v13, 64, v12
v_add_u32 v14, 0x80, v12
v_add_u32 v15, 0xc0, v12
v_mov_b32 v16, 1
s_mov_b32 s25, 429497
s_waitcnt vmcnt(1)
""")
    for i in range(4):
        A(f"v_mul_u32_u24 v{20+i}, s25, v{4+i}")
    for i in range(4):
        A(f"v_lshrrev_b32 v{20+i}, 22, v{20+i}")
    for i in range(4):
        A(f"v_and_b32 v{20+i}, 0x3fc, v{20+i}")
        A(f"ds_add_rtn_u32 v{24+i}, v{20+i}, v16 offset:{LH}")
    A("s_waitcnt vmcnt(0)")
    for i in range(4):
        A(f"v_and_or_b32 v{28+i}, v{4+i}, 63, v{12+i}")
    for i in range(4):
        A(f"v_lshl_or_b32 v{28+i}, v{8+i}, 18, v{28+i}")
    A(f"""
s_waitcnt lgkmcnt(0)
s_barrier
s_mov_b64 exec, -1
v_and_b32 v32, 63, v0
v_lshlrev_b32 v33, 4, v32
ds_read_b128 v[36:39], v33 offset:{LH}
s_waitcnt lgkmcnt(0)
v_add_u32 v40, v36, v37
v_add_u32 v41, v40, v38
v_add_u32 v42, v41, v39
v_mov_b32 v43, v42
""")
    wave_scan(A, 43)
    A(f"""
v_sub_u32 v44, v43, v42
v_add_u32 v45, v44, v36
v_add_u32 v46, v44, v40
v_add_u32 v47, v44, v41
ds_write_b128 v33, v[44:47] offset:{LB}
s_cmp_lg_u32 s3, 0
s_cbranch_scc1 A_NOTBL
v_lshl_or_b32 v48, v36, 16, v44
v_lshl_or_b32 v49, v37, 16, v45
v_lshl_or_b32 v50, v38, 16, v46
v_lshl_or_b32 v51, v39, 16, v47
s_lshl_b32 s32, s2, 10
s_add_u32 s32, s32, {WS_TBL}
buffer_store_dwordx4 v[48:51], v33, s[20:23], s32 offen
""")
    A.label("A_NOTBL")
    A("s_waitcnt lgkmcnt(0)")
    A("s_mov_b64 exec, s[30:31]")
    for i in range(4):
        A(f"ds_read_b32 v{52+i}, v{20+i} offset:{LB}")
    for i in range(4):
        A(f"s_waitcnt lgkmcnt({3-i})")
        A(f"v_add_lshl_u32 v{52+i}, v{52+i}, v{24+i}, 2")
        A(f"ds_write_b32 v{52+i}, v{28+i} offset:{LS}")
    A(f"""
s_waitcnt lgkmcnt(0)
s_barrier
ds_read_b128 v[4:7], v2 offset:{LS}
s_add_u32 s33, s24, {WS_REC}
s_waitcnt lgkmcnt(0)
buffer_store_dwordx4 v[4:7], v2, s[20:23], s33 offen
s_endpgm
""")
    A.label("A_PREP")
    A(f"""
v_and_b32 v1, 63, v0
s_mul_i32 s12, s2, 52
v_add_u32 v2, s12, v1
v_cmp_gt_u32 vcc, 52, v1
s_and_saveexec_b64 s[26:27], vcc
v_lshrrev_b32 v3, 8, v2
v_bfe_u32 v4, v2, 2, 6
v_and_b32 v5, 3, v2
v_and_b32 v6, 31, v4
v_lshrrev_b32 v7, 5, v4
v_lshlrev_b32 v8, 3, v7
v_lshl_add_u32 v8, v5, 1, v8
v_lshrrev_b32 v9, 2, v3
v_lshl_add_u32 v9, v9, 4, v8
v_and_b32 v10, 3, v3
v_lshl_add_u32 v10, v10, 5, v6
v_lshlrev_b32 v9, 8, v9
v_lshl_add_u32 v9, v10, 1, v9
v_subrev_u32 v11, 36, v3
v_lshrrev_b32 v12, 1, v11
v_lshl_add_u32 v12, v12, 4, v8
v_and_b32 v13, 1, v11
v_lshl_add_u32 v13, v13, 5, v6
v_lshlrev_b32 v12, 7, v12
v_lshl_add_u32 v12, v13, 1, v12
v_cmp_gt_u32 vcc, 36, v3
v_mov_b32 v14, 0x7ffffff0
v_mov_b32 v15, 1.0
v_mov_b32 v16, {f2u(SCALE):#x}
v_cndmask_b32 v9, v14, v9, vcc
v_cndmask_b32 v12, v12, v14, vcc
v_cndmask_b32 v15, v15, v16, vcc
s_waitcnt lgkmcnt(0)
""")
    srd(A, 12, 10, 144 * 128 * 2)
    srd(A, 16, 28, 128 * 64 * 2)
    srd(A, 20, 8, WS_END)
    A(f"""
buffer_load_ushort v20, v9, s[12:15], 0 offen
buffer_load_ushort v21, v9, s[12:15], 0 offen offset:256
buffer_load_ushort v22, v12, s[16:19], 0 offen
buffer_load_ushort v23, v12, s[16:19], 0 offen offset:128
v_lshlrev_b32 v2, 2, v2
s_mov_b32 s32, {WS_WF}
s_waitcnt vmcnt(0)
v_or_b32 v20, v20, v22
v_or_b32 v21, v21, v23
v_lshlrev_b32 v20, 16, v20
v_lshlrev_b32 v21, 16, v21
v_mul_f32 v20, v15, v20
v_mul_f32 v21, v15, v21
v_cvt_pk_bf16_f32 v20, v20, v21
buffer_store_dword v20, v2, s[20:23], s32 offen
""")
    A.label("A_END")
    A("s_endpgm")
    A.pad()
    return A, 12288

L_S = 0; L_CNT = 20480; L_NTAB = 20736; L_DEG = 21760; L_FLAG = 22016; L_QT = 22272
L_QADDR = 36608; L_XB0 = 39936; L_OHT = 65408; L_OHZ = 65536; L_XB4 = 65792; L_LIST = 90368
LDS_B = L_LIST + 40960
QSTR = 112; CAPQ = 768; SBSTR = 272
TB = 384

vTID = 0
aX, aG, aO, aQ, aN = 1, 2, 3, 4, 5
xr = [6, 7, 8, 9]; eAddr = 10; vQ = 11; qbase = 12; c1 = 13; lanecol = 14; ohaddr = 15
xi = [16, 18, 20, 22]; ei = 24; node0 = 26; tmp = 27; chk = 28; tmp2 = 30
qa = [32, 36]
E = 40; D = [56, 72]; X = 88; Ea = 104; OH = 108; Qx = 112; We = 128; W = 144
vTbl = 208; vdeg = 209; vLane = 210; vN6 = 211; vOhp = 212; vC25 = 213; vLim = 214; vT = 215
NVGPR_B = 224
R = 40; RK = 56; A4 = 72; NT = 88

sB = 2; SX = 4; SE = 8; SW = 12; SO = 16
sWave = 32; sStart = 33; sNn = 34; sS6 = 35; sXB = 36; sN = 37; sT0 = 38; sMode = 39
sR = 40; sLo = 41; sMax = 42; sFirst = 43; sTot = 44; sT = 45; sT2 = 46; sT3 = 47

def fill_lists(A):
    A(f"v_lshlrev_b32 v{tmp}, 4, v{vTID}")
    A(f"v_add_u32 v{tmp2}, {L_LIST}, v{tmp}")
    for i in range(4): A(f"v_mov_b32 v{E+i}, -1")
    for i in range(4): A(f"v_mov_b32 v{E+4+i}, 0")
    for j in range(5):
        A(f"ds_write_b128 v{tmp2}, v[{E}:{E+3}] offset:{8192*j}")
    A(f"v_cmp_gt_u32 vcc, {(L_XB0 - L_QADDR) // 16}, v{vTID}")
    A(f"s_and_saveexec_b64 s[48:49], vcc")
    A(f"ds_write_b128 v{tmp}, v[{E+4}:{E+7}] offset:{L_QADDR}")
    A(f"v_cmp_gt_u32 vcc, 16, v{vTID}")
    A(f"s_and_b64 exec, exec, vcc")
    A(f"ds_write_b128 v{tmp}, v[{E+4}:{E+7}] offset:{L_CNT}")
    A(f"s_mov_b64 exec, s[48:49]")

def zero_s(A):
    A(f"ds_write_b128 v{tmp}, v[{E+4}:{E+7}] offset:{L_S}")
    A(f"ds_write_b128 v{tmp}, v[{E+4}:{E+7}] offset:{L_S + 8192}")
    A(f"v_cmp_gt_u32 vcc, 256, v{vTID}")
    A(f"s_and_saveexec_b64 s[48:49], vcc")
    A(f"ds_write_b128 v{tmp}, v[{E+4}:{E+7}] offset:{L_S + 16384}")
    A(f"s_mov_b64 exec, s[48:49]")

def silu_list(d, fast):
    e = E
    p = lambda r: f"v[{r}:{r+1}]"
    L = []
    for j in range(16): L.append(f"v_exp_f32 v{e+j}, v{d+j}")
    if fast:
        for o in (0, 8):
            L.append(f"v_pk_add_f32 {p(e+o+2)}, {p(e+o+2)}, 1.0 op_sel_hi:[1,0]")
            L.append(f"v_pk_add_f32 {p(e+o+6)}, {p(e+o+6)}, 1.0 op_sel_hi:[1,0]")
        for o in (0, 8):
            L.append(f"v_pk_fma_f32 {p(d+o)}, {p(d+o)}, {p(e+o+2)}, {p(d+o+2)}")
            L.append(f"v_pk_fma_f32 {p(d+o+4)}, {p(d+o+4)}, {p(e+o+6)}, {p(d+o+6)}")
        for o in (0, 8):
            L.append(f"v_pk_fma_f32 {p(d+o)}, {p(d+o+2)}, {p(e+o)}, {p(d+o)}")
            L.append(f"v_pk_fma_f32 {p(d+o+4)}, {p(d+o+6)}, {p(e+o+4)}, {p(d+o+4)}")
        for o in (0, 8):
            L.append(f"v_pk_fma_f32 {p(e+o)}, {p(e+o)}, {p(e+o+2)}, {p(e+o+2)}")
            L.append(f"v_pk_fma_f32 {p(e+o+4)}, {p(e+o+4)}, {p(e+o+6)}, {p(e+o+6)}")
        for o in (0, 8):
            L.append(f"v_pk_mul_f32 {p(e+o+2)}, {p(e+o)}, {p(e+o+4)}")
        for o in (0, 8):
            L.append(f"v_pk_mul_f32 {p(d+o)}, {p(d+o)}, {p(e+o+4)}")
        for o in (0, 8):
            L.append(f"v_rcp_f32 v{e+o+6}, v{e+o+2}")
            L.append(f"v_rcp_f32 v{e+o+7}, v{e+o+3}")
        for o in (0, 8):
            L.append(f"v_pk_fma_f32 {p(d+o)}, {p(d+o+4)}, {p(e+o)}, {p(d+o)}")
        for o in (0, 8):
            L.append(f"v_pk_add_f32 {p(chk)}, {p(chk)}, {p(e+o+2)}")
        for o in (0, 8):
            L.append(f"v_pk_mul_f32 {p(d+o)}, {p(d+o)}, {p(e+o+6)}")
    else:
        for j in range(0, 16, 2):
            L.append(f"v_pk_add_f32 {p(e+j)}, {p(e+j)}, 1.0 op_sel_hi:[1,0]")
        for j in range(16): L.append(f"v_rcp_f32 v{e+j}, v{e+j}")
        for j in range(0, 16, 2):
            L.append(f"v_pk_mul_f32 {p(d+j)}, {p(d+j)}, {p(e+j)}")
        for o in (0, 8):
            L.append(f"v_pk_add_f32 {p(d+o)}, {p(d+o)}, {p(d+o+2)}")
            L.append(f"v_pk_add_f32 {p(d+o+4)}, {p(d+o+4)}, {p(d+o+6)}")
        for o in (0, 8):
            L.append(f"v_pk_add_f32 {p(d+o)}, {p(d+o)}, {p(d+o+4)}")
    return L

def chain(c, d):
    q = lambda r: f"v[{r}:{r+3}]"
    dd = f"v[{d}:{d+15}]"
    M = []
    for s in range(4):
        M.append(f"v_mfma_f32_32x32x16_bf16 {dd}, {q(X+4*s)}, {q(W+16*s+4*c)}, {'0' if s == 0 else dd}")
    M.append(f"v_mfma_f32_32x32x16_bf16 {dd}, {q(Ea)}, {q(We+4*c)}, {dd}")
    M.append(f"v_mfma_f32_32x32x16_bf16 {dd}, {q(OH)}, {q(Qx+4*c)}, {dd}")
    return M

XOFF = (0, 24, 96, 120)
def dma_x(A, k):
    for i in range(4):
        A(f"s_add_u32 m0, s{sXB}, {1024*i}")
        A(f"s_nop 0")
        A(f"buffer_load_dwordx4 v[{xi[i]}:{xi[i]+1}], s[{SX}:{SX+3}], 0 idxen offen lds")
def dma_e(A, slot):
    A(f"s_add_u32 m0, s{sXB}, {4096 + 1024*slot}")
    A(f"s_nop 0")
    A(f"buffer_load_dwordx4 v[{ei}:{ei+1}], s[{SE}:{SE+3}], 0 idxen offen lds")
def read_xidx(k): return [f"ds_read_b32 v{xi[i]}, v{aX} offset:{TB*k + 12*[0,2,8,10][i]}" for i in range(4)]
def read_eidx(k): return [f"ds_read_b32 v{ei}, v{aG} offset:{TB*k}"]
def read_a(eslot):
    L = [f"ds_read_b128 v[{X+4*s}:{X+4*s+3}], v{xr[s]}" for s in range(4)]
    L.append(f"ds_read_b128 v[{Ea}:{Ea+3}], v{eAddr} offset:{1024*eslot}")
    L.append(f"ds_read_b128 v[{OH}:{OH+3}], v{ohaddr} offset:1")
    return L
def read_q(c): return f"ds_read_b128 v[{Qx+4*c}:{Qx+4*c+3}], v{vQ} offset:{32*QSTR*c}"
def calc_vq():
    return [f"v_add_u32 v{tmp}, v{node0}, v{c1}", f"v_lshrrev_b32 v{tmp}, 13, v{tmp}",
            f"v_lshl_add_u32 v{vQ}, v{tmp}, 5, v{qbase}"]
def read_meta(k, par):
    return [f"ds_read_b128 v[{qa[par]}:{qa[par]+3}], v{aQ} offset:{32*k}",
            f"ds_read_b32 v{node0}, v{aN} offset:{32*k}",
            f"ds_read_u16 v{ohaddr}, v{aO} offset:{TB*k}"]

def tile_iter(A, par, fast):
    k = par
    mpos = [1, 5, 9, 13, 19, 27] if fast else [1, 5, 9, 13, 19, 27]
    for ph in range(4):
        d = D[ph & 1]; dn = D[(ph + 1) & 1]
        V = silu_list(d, fast)
        M = chain((ph + 1) & 3, dn)
        ins = {}
        def at(i, items): ins.setdefault(i, []).extend(items)
        if ph == 0:
            at(2, read_meta(k + 1, 1 - par))
        if ph == 1:
            at(-1, ["s_waitcnt lgkmcnt(4)"])
            at(2, calc_vq())
            at(3, [f"v_add_u32 v{qa[1-par]+j}, v{qa[1-par]+j}, v{lanecol}" for j in range(4)])
            at(6, [read_q(0), read_q(1)])
            at(10, read_xidx(k + 2) + read_eidx(k + 3))
        if ph == 2:
            at(0, [read_q(2)])
        if ph == 3:
            at(7, [read_q(3)])
        for i, x in enumerate(ins.get(-1, [])): A(x)
        mi = 0
        for i, v in enumerate(V):
            A(v)
            for x in ins.get(i, []): A(x)
            if mi < 6 and mpos[mi] == i:
                if ph == 3 and mi == 0:
                    A("s_waitcnt lgkmcnt(4)")
                    dma_x(A, k + 2)
                    dma_e(A, 1 - par)
                A(M[mi]); mi += 1
                if ph == 2 and mi == 6:
                    A("s_waitcnt vmcnt(1)")
                    for x in read_a(1 - par): A(x)
        q = qa[par]
        for j, r in enumerate((d, d + 1, d + 8, d + 9)):
            A(f"ds_add_f32 v{q+j}, v{r} offset:{128*ph}")

def main_loop(A, fast):
    tag = "F" if fast else "S"
    for x in read_xidx(0) + read_eidx(0): A(x)
    for x in read_meta(0, 0): A(x)
    A("s_waitcnt lgkmcnt(0)")
    dma_x(A, 0); dma_e(A, 0)
    for x in read_eidx(1): A(x)
    for x in calc_vq(): A(x)
    for j in range(4): A(f"v_add_u32 v{qa[0]+j}, v{qa[0]+j}, v{lanecol}")
    A("s_waitcnt lgkmcnt(0)")
    dma_e(A, 1)
    for c in range(4): A(read_q(c))
    for x in read_xidx(1) + read_eidx(2): A(x)
    A("s_waitcnt vmcnt(1)")
    for x in read_a(0): A(x)
    A("s_waitcnt lgkmcnt(0)")
    dma_x(A, 1); dma_e(A, 0)
    for m in chain(0, D[0]): A(m)
    A("s_nop 7")
    A("s_nop 7")
    if OPT["prio"]: A("s_setprio 3")
    A.label(f"B_LOOP{tag}")
    for par in (0, 1):
        tile_iter(A, par, fast)
        if par == 1:
            for r in (aX, aG, aO): A(f"v_add_u32 v{r}, {2*TB}, v{r}")
            for r in (aQ, aN): A(f"v_add_u32 v{r}, 64, v{r}")
        A(f"s_sub_u32 s{sN}, s{sN}, 1")
        if OPT["prio"]:
            for rem, pr in ((3, 2), (2, 1), (1, 0)):
                A(f"s_cmp_eq_u32 s{sN}, {rem}")
                A(f"s_cbranch_scc0 B_P{tag}{par}{rem}")
                A(f"s_setprio {pr}")
                A.label(f"B_P{tag}{par}{rem}")
        A(f"s_cmp_eq_u32 s{sN}, 0")
        if par == 0: A(f"s_cbranch_scc1 B_LOOPEND")
        else: A(f"s_cbranch_scc0 B_LOOP{tag}")
    A("s_branch B_LOOPEND")

def sort_slots(A, body, groups, tag):
    for g in groups:
        for i in range(4):
            A(f"v_cmpx_lt_i32 vcc, {8*g+i}, v{vLim}")
            if i % 2 == 0: A(f"s_cbranch_execz {tag}")
            body(g, i)

def kernel_b():
    A = Asm()
    A.label(KB)
    A(f"""
s_cmp_ge_u32 s2, {NB}
s_cbranch_scc1 B_END
s_load_dwordx4 s[20:23], s[0:1], 0
s_load_dwordx2 s[24:25], s[0:1], 40
s_load_dwordx4 s[28:31], s[0:1], 56
s_load_dwordx2 s[26:27], s[0:1], 80
v_lshrrev_b32 v1, 6, v0
v_and_b32 v{vLane}, 63, v0
v_readfirstlane_b32 s{sWave}, v1
s_mul_i32 s{sStart}, s2, 625
s_add_u32 s{sT}, s{sStart}, {625 + 15}
s_add_u32 s{sStart}, s{sStart}, 15
s_lshr_b32 s{sStart}, s{sStart}, 4
s_lshr_b32 s{sT}, s{sT}, 4
s_sub_u32 s{sNn}, s{sT}, s{sStart}
s_and_b32 s{sS6}, s{sStart}, 63
s_mul_i32 s{sXB}, s{sWave}, 6144
s_add_u32 s{sXB}, s{sXB}, {L_XB0}
s_cmp_ge_u32 s{sWave}, 4
s_cselect_b32 s{sT}, {L_XB4 - L_XB0 - 4 * 6144}, 0
s_add_u32 s{sXB}, s{sXB}, s{sT}
s_mov_b32 s{sMode}, 0
B_START:
s_mov_b32 s{sR}, 32
s_mov_b32 s{sLo}, 0
s_mov_b32 s{sFirst}, 1
v_mov_b32 v{vdeg}, 0
v_mov_b32 v{chk}, 0
v_mov_b32 v{chk+1}, 0
""")
    fill_lists(A)
    zero_s(A)
    A(f"""
v_cmp_gt_u32 vcc, 4, v{vTID}
s_and_saveexec_b64 s[48:49], vcc
ds_write_b128 v{tmp}, v[{E+4}:{E+7}] offset:{L_FLAG}
s_mov_b64 exec, s[48:49]
v_cmp_gt_u32 vcc, 36, v{vTID}
s_and_saveexec_b64 s[48:49], vcc
v_lshrrev_b32 v1, 2, v{vTID}
v_and_b32 v2, 3, v{vTID}
v_lshrrev_b32 v3, 1, v1
v_and_b32 v4, 1, v1
v_lshlrev_b32 v4, 4, v4
v_mov_b32 v5, {BF_ONE:#x}
v_lshlrev_b32 v5, v4, v5
v_cmp_eq_u32 vcc, v2, v3
v_lshlrev_b32 v6, 2, v{vTID}
v_cndmask_b32 v5, 0, v5, vcc
v_add_u32 v6, {L_OHT}, v6
ds_write_b32 v6, v5
s_mov_b64 exec, s[48:49]
""")
    A(f"""
v_add_u32 v{vN6}, s{sS6}, v{vLane}
v_and_b32 v{vN6}, 63, v{vN6}
v_lshlrev_b32 v{vN6}, 2, v{vN6}
v_and_b32 v1, 7, v{vLane}
v_lshlrev_b32 v1, 4, v1
v_add_u32 v1, {L_OHT - 1}, v1
v_mov_b32 v2, 0xffff
v_and_b32 v3, 8, v{vLane}
v_cmp_eq_u32 vcc, 0, v3
v_lshrrev_b32 v4, 1, v{vTID}
v_mul_u32_u24 v{vC25}, {CH}, v4
v_cndmask_b32 v5, v2, v1, vcc
v_cndmask_b32 v6, v1, v2, vcc
v_lshl_or_b32 v{vOhp}, v6, 16, v5
v_lshlrev_b32 v4, 10, v4
s_lshl_b32 s{sT}, s2, 2
s_add_u32 s{sT}, s{sT}, {WS_TBL}
s_waitcnt lgkmcnt(0)
""")
    srd(A, SW, 26, WS_END)
    A(f"buffer_load_dword v{vTbl}, v4, s[{SW}:{SW+3}], s{sT} offen")
    A(f"v_lshlrev_b32 v1, 4, v{vLane}")
    for j in range(3):
        A(f"s_lshl_b32 s{sT}, s{sWave}, 10")
        A(f"s_add_u32 m0, s{sT}, {L_XB0 + 8192*j}")
        A(f"s_add_u32 s{sT2}, s{sT}, {WS_WF + (8192*j if j < 2 else 32768)}")
        A(f"buffer_load_dwordx4 v1, s[{SW}:{SW+3}], s{sT2} offen lds")
    srd(A, SX, 20, N_NODES, stride=128)
    srd(A, SE, 22, N_EDGES, stride=32)
    srd(A, SO, 20, N_NODES * 128)
    A(f"""
s_lshr_b32 s{sT}, s{sWave}, 2
s_lshl_b32 s{sT}, s{sT}, 5
s_add_u32 s{sT}, s{sT}, s{sStart}
v_and_b32 v2, 31, v{vLane}
v_lshrrev_b32 v3, 5, v{vLane}
v_add_u32 v4, s{sT}, v2
v_lshlrev_b32 v4, 7, v4
v_lshl_add_u32 v4, v3, 4, v4
s_and_b32 s{sT3}, s{sWave}, 3
s_lshl_b32 s{sT2}, s{sT3}, 10
s_add_u32 s{sT2}, s{sT2}, {WS_WF + 16*1024}
""")
    for s in range(4):
        A(f"buffer_load_dwordx4 v[{X+4*s}:{X+4*s+3}], v4, s[{SO}:{SO+3}], 0 offen offset:{32*s}")
    for s in range(4):
        A(f"buffer_load_dwordx4 v[{D[0]+4*s}:{D[0]+4*s+3}], v1, s[{SW}:{SW+3}], s{sT2} offen")
        if s < 3: A(f"s_add_u32 s{sT2}, s{sT2}, 4096")
    A(f"""
s_lshl_b32 s{sT3}, s{sT3}, 5
v_add_u32 v5, s{sT3}, v2
v_lshlrev_b32 v6, 1, v5
global_load_ushort v7, v6, s[24:25]
s_waitcnt vmcnt(12)
""")
    A.label("B_ROUND")
    A(f"""
v_lshrrev_b32 v{vLim}, 16, v{vTbl}
v_subrev_u32 v{vLim}, s{sLo}, v{vLim}
v_min_i32 v{vLim}, s{sR}, v{vLim}
v_and_b32 v{vT}, 1, v{vTID}
v_lshlrev_b32 v{vT}, 2, v{vT}
v_sub_u32 v{vLim}, v{vLim}, v{vT}
v_and_b32 v{tmp}, 0xffff, v{vTbl}
v_add3_u32 v{tmp}, v{tmp}, v{vC25}, v{vT}
v_add_u32 v{tmp}, s{sLo}, v{tmp}
v_lshlrev_b32 v{tmp}, 2, v{tmp}
v_mov_b32 v{tmp2+1}, 0x7ffffff0
s_mov_b32 s{sT}, {WS_REC}
""")
    for g in range(4):
        A(f"v_cmp_lt_i32 vcc, {8*g}, v{vLim}")
        A(f"v_cndmask_b32 v{tmp2}, v{tmp2+1}, v{tmp}, vcc")
        A(f"buffer_load_dwordx4 v[{R+4*g}:{R+4*g+3}], v{tmp2}, s[{SW}:{SW+3}], s{sT} offen offset:{32*g}")
    A(f"s_cmp_eq_u32 s{sFirst}, 0")
    A(f"s_cbranch_scc1 B_NOTFIRST")
    A(f"""
s_waitcnt vmcnt(4)
v_lshlrev_b32 v7, 16, v7
v_mul_f32 v7, {f2u(SCALE):#x}, v7
""")
    for j in range(16): A(f"v_mov_b32 v{D[1]+j}, v7")
    for s in range(4):
        A(f"v_mfma_f32_32x32x16_bf16 v[{D[1]}:{D[1]+15}], v[{X+4*s}:{X+4*s+3}], v[{D[0]+4*s}:{D[0]+4*s+3}], v[{D[1]}:{D[1]+15}]")
    A(f"""
v_mul_u32_u24 v8, {QSTR}, v5
s_lshr_b32 s{sT}, s{sWave}, 2
s_lshl_b32 s{sT}, s{sT}, 6
v_lshl_add_u32 v8, v3, 3, v8
v_add_u32 v8, s{sT}, v8
""")
    for g in range(4):
        A(f"v_cvt_pk_bf16_f32 v{X+2*g}, v{D[1]+4*g}, v{D[1]+4*g+1}")
        A(f"v_cvt_pk_bf16_f32 v{X+2*g+1}, v{D[1]+4*g+2}, v{D[1]+4*g+3}")
    for g in range(2):
        A(f"ds_write_b64 v8, v[{X+2*g}:{X+2*g+1}] offset:{L_QT + 16*g}")
    A(f"s_cmp_ge_u32 s{sWave}, 4")
    A(f"s_cbranch_scc1 B_QDONE")
    for g in range(2, 4):
        A(f"ds_write_b64 v8, v[{X+2*g}:{X+2*g+1}] offset:{L_QT + 16*g}")
    A.label("B_QDONE")
    A(f"""
s_waitcnt lgkmcnt(0)
s_barrier
v_lshrrev_b32 v8, 16, v{vTbl}
v_mov_b32 v9, {L_FLAG}
ds_max_u32 v9, v8
v_lshlrev_b32 v1, 4, v{vLane}
v_add_u32 v1, {L_XB0}, v1
""")
    for u in range(16): A(f"ds_read_b128 v[{W+4*u}:{W+4*u+3}], v1 offset:{1024*u}")
    for c in range(4): A(f"ds_read_b128 v[{We+4*c}:{We+4*c+3}], v1 offset:{1024*(16+c)}")
    A(f"s_mov_b32 s{sFirst}, 0")
    A(f"s_branch B_COUNT")
    A.label("B_NOTFIRST")
    A("s_waitcnt lgkmcnt(0)")
    A("s_barrier")
    A.label("B_COUNT")
    A(f"v_mov_b32 v{vT}, 1")
    A("s_waitcnt vmcnt(0)")
    def count_body(g, i):
        j = 4 * g + i
        A(f"v_lshlrev_b32 v{A4+j}, 2, v{R+j}")
        A(f"v_and_b32 v{A4+j}, 0xfc, v{A4+j}")
        A(f"ds_add_rtn_u32 v{RK+j}, v{A4+j}, v{vT} offset:{L_CNT}")
    for j in range(16): A(f"v_mov_b32 v{A4+j}, 0")
    sort_slots(A, count_body, range(4), "B_COUNTED")
    A.label("B_COUNTED")
    A(f"""
s_mov_b64 exec, -1
s_waitcnt lgkmcnt(0)
s_barrier
v_mov_b32 v{tmp2}, 0
ds_read_b32 v{tmp}, v{vN6} offset:{L_CNT}
ds_read_b32 v{tmp2}, v{tmp2} offset:{L_FLAG}
v_cmp_gt_u32 vcc, s{sNn}, v{vLane}
s_waitcnt lgkmcnt(0)
v_readfirstlane_b32 s{sMax}, v{tmp2}
v_add_u32 v{NT}, 3, v{tmp}
v_lshrrev_b32 v{NT}, 2, v{NT}
v_max_u32 v{NT}, 1, v{NT}
v_cndmask_b32 v{NT}, 0, v{NT}, vcc
v_mov_b32 v{NT+1}, v{NT}
""")
    wave_scan(A, NT + 1)
    A(f"""
v_readlane_b32 s{sTot}, v{NT+1}, 63
v_sub_u32 v{NT+4}, v{NT+1}, v{NT}
v_lshlrev_b32 v{NT+4}, 2, v{NT+4}
v_mov_b32 v{NT+5}, v{vOhp}
v_lshlrev_b32 v{NT+6}, 9, v{vLane}
s_cmp_gt_u32 s{sTot}, {CAPQ}
s_cbranch_scc1 B_OVERFLOW
s_and_saveexec_b64 s[48:49], vcc
v_add_u32 v{vdeg}, v{vdeg}, v{tmp}
v_lshlrev_b32 v{tmp}, 2, v{vN6}
ds_write_b96 v{tmp}, v[{NT+4}:{NT+6}] offset:{L_NTAB}
ds_write_b32 v{NT+4}, v{NT+6} offset:{L_QADDR}
s_mov_b64 exec, s[48:49]
v_mov_b32 v{vT}, {L_LIST}
s_waitcnt lgkmcnt(0)
""")
    def scatter_batch(groups, tag):
        for n, g in enumerate(groups):
            for i in range(4):
                j = 4 * g + i; t = NT + 4 * (4 * n + i)
                A(f"v_lshlrev_b32 v{tmp}, 2, v{A4+j}")
                A(f"ds_read_b96 v[{t}:{t+2}], v{tmp} offset:{L_NTAB}")
        A("s_waitcnt lgkmcnt(0)")
        def body(g, i):
            j = 4 * g + i; t = NT + 4 * (4 * groups.index(g) + i)
            A(f"v_add_u32 v{t}, v{t}, v{RK+j}")
            A(f"v_lshrrev_b32 v{tmp}, 18, v{R+j}")
            A(f"v_bfe_u32 v{tmp2}, v{R+j}, 6, 12")
            A(f"v_mad_u32_u24 v{t+3}, v{t}, 12, v{vT}")
            A(f"v_add_u32 v{tmp2}, v{vC25}, v{tmp2}")
            A(f"v_and_b32 v{t}, -4, v{t}")
            A(f"ds_write2_b32 v{t+3}, v{tmp}, v{t+1} offset0:0 offset1:1")
            A(f"ds_write_b32 v{t+3}, v{tmp2} offset:8")
            A(f"ds_write_b32 v{t}, v{t+2} offset:{L_QADDR}")
        sort_slots(A, body, groups, tag)
    scatter_batch([0, 1], "B_SC1")
    A.label("B_SC1")
    A(f"""
s_mov_b64 exec, -1
v_cmp_lt_i32 vcc, 16, v{vLim}
s_cbranch_vccz B_SC2
""")
    scatter_batch([2, 3], "B_SC2")
    A.label("B_SC2")
    A("s_mov_b64 exec, -1")
    A(f"""
s_add_u32 s{sT}, s{sTot}, 7
s_lshr_b32 s{sT}, s{sT}, 3
s_lshr_b32 s{sT2}, s{sT}, 3
s_and_b32 s{sT3}, s{sT}, 7
s_mul_i32 s{sT0}, s{sT2}, s{sWave}
s_min_u32 s{sN}, s{sWave}, s{sT3}
s_add_u32 s{sT0}, s{sT0}, s{sN}
s_cmp_lt_u32 s{sWave}, s{sT3}
s_cselect_b32 s{sN}, 1, 0
s_add_u32 s{sN}, s{sN}, s{sT2}
v_and_b32 v40, 31, v{vLane}
v_lshrrev_b32 v41, 5, v{vLane}
v_bfe_u32 v42, v{vLane}, 1, 3
v_lshlrev_b32 v43, 7, v40
v_add_u32 v43, s{sXB}, v43
""")
    for s in range(4):
        A(f"v_or_b32 v44, {2*s}, v41")
        A(f"v_xor_b32 v44, v44, v42")
        A(f"v_lshl_add_u32 v{xr[s]}, v44, 4, v43")
    A(f"""
v_lshlrev_b32 v{eAddr}, 4, v{vLane}
v_add_u32 v{eAddr}, s{sXB}, v{eAddr}
v_add_u32 v{eAddr}, 0x1000, v{eAddr}
v_mul_u32_u24 v{qbase}, {QSTR}, v40
v_lshl_add_u32 v{qbase}, v41, 4, v{qbase}
v_add_u32 v{qbase}, {L_QT}, v{qbase}
v_xor_b32 v{c1}, 1, v41
v_lshlrev_b32 v{c1}, 12, v{c1}
v_lshlrev_b32 v{lanecol}, 2, v40
v_and_b32 v44, 7, v{vLane}
v_lshrrev_b32 v45, 4, v{vLane}
v_xor_b32 v46, v44, v45
v_lshlrev_b32 v{xi[0]+1}, 4, v46
v_mov_b32 v{xi[2]+1}, v{xi[0]+1}
v_xor_b32 v46, 4, v46
v_lshlrev_b32 v{xi[1]+1}, 4, v46
v_mov_b32 v{xi[3]+1}, v{xi[1]+1}
v_lshlrev_b32 v{ei+1}, 4, v41
s_mul_i32 s{sT}, s{sT0}, {TB}
s_add_u32 s{sT}, s{sT}, {L_LIST}
v_bfe_u32 v44, v{vLane}, 3, 1
v_bfe_u32 v45, v{vLane}, 4, 1
v_lshlrev_b32 v46, 4, v41
v_lshl_add_u32 v46, v44, 2, v46
v_add_u32 v46, v46, v45
v_mul_u32_u24 v{aX}, 12, v46
v_add_u32 v{aX}, s{sT}, v{aX}
v_bfe_u32 v44, v{vLane}, 2, 1
v_lshlrev_b32 v46, 4, v44
v_bfe_u32 v44, v{vLane}, 4, 1
v_lshl_add_u32 v46, v44, 3, v46
v_and_b32 v44, 1, v{vLane}
v_lshl_add_u32 v46, v44, 2, v46
v_bfe_u32 v44, v{vLane}, 3, 1
v_lshl_add_u32 v46, v44, 1, v46
v_bfe_u32 v44, v{vLane}, 1, 1
v_add_u32 v46, v46, v44
v_mul_u32_u24 v46, 12, v46
v_add_u32 v46, s{sT}, v46
v_add_u32 v{aG}, 8, v46
v_lshl_add_u32 v{aO}, v41, 1, v46
v_add_u32 v{aO}, 4, v{aO}
s_lshl_b32 s{sT}, s{sT0}, 5
s_add_u32 s{sT}, s{sT}, {L_QADDR}
v_mov_b32 v{aN}, s{sT}
v_lshl_add_u32 v{aQ}, v41, 4, v{aN}
s_waitcnt lgkmcnt(0)
s_barrier
s_cmp_eq_u32 s{sN}, 0
s_cbranch_scc1 B_LOOPEND
s_cmp_lg_u32 s{sMode}, 0
s_cbranch_scc1 B_SAFE
""")
    main_loop(A, True)
    A.label("B_SAFE")
    main_loop(A, False)
    A.label("B_LOOPEND")
    A(f"""
s_setprio 0
s_waitcnt vmcnt(0) lgkmcnt(0)
s_barrier
s_add_u32 s{sLo}, s{sLo}, s{sR}
s_cmp_ge_u32 s{sLo}, s{sMax}
s_cbranch_scc1 B_FINISH
""")
    fill_lists(A)
    A("s_branch B_ROUND")
    A.label("B_OVERFLOW")
    A(f"s_mov_b32 s{sR}, 8")
    A.label("B_RESTART")
    A(f"""
s_barrier
s_mov_b32 s{sLo}, 0
v_mov_b32 v{vdeg}, 0
v_mov_b32 v{chk}, 0
v_mov_b32 v{chk+1}, 0
""")
    fill_lists(A)
    zero_s(A)
    A("s_branch B_ROUND")
    A.label("B_FINISH")
    SB = L_LIST
    A(f"""
s_and_b32 s{sT}, s{sWave}, 1
s_lshl_b32 s{sT2}, s{sT}, 10
s_add_u32 s{sT2}, s{sT2}, {WS_WF + 36*1024}
v_lshlrev_b32 v1, 4, v{vLane}
""")
    for s in range(8):
        A(f"buffer_load_dwordx4 v[{W+4*s}:{W+4*s+3}], v1, s[{SW}:{SW+3}], s{sT2} offen")
        if s < 7: A(f"s_add_u32 s{sT2}, s{sT2}, 2048")
    A(f"""
v_lshrrev_b32 v3, 5, v{vLane}
s_lshl_b32 s{sT}, s{sT}, 6
v_lshlrev_b32 v4, 3, v3
v_add_u32 v4, s{sT}, v4
""")
    for g in range(4):
        A(f"global_load_dwordx2 v[{We+2*g}:{We+2*g+1}], v4, s[28:29] offset:{16*g}")
    A(f"""
v_mov_b32 v5, 0x71800000
v_cmp_nlt_f32 vcc, v{chk}, v5
v_cmp_nlt_f32 s[48:49], v{chk+1}, v5
s_or_b64 vcc, vcc, s[48:49]
v_lshlrev_b32 v6, 2, v{vLane}
ds_write_b32 v6, v{vdeg} offset:{L_DEG}
v_lshlrev_b32 v{tmp}, 4, v{vTID}
ds_read_b128 v[{E}:{E+3}], v{tmp} offset:{L_S}
ds_read_b128 v[{E+4}:{E+7}], v{tmp} offset:{L_S + 8192}
ds_read_b128 v[{E+8}:{E+11}], v{tmp} offset:{L_S + 16384}
v_lshrrev_b32 v7, 5, v{vTID}
v_mul_u32_u24 v7, {SBSTR}, v7
v_and_b32 v8, 31, v{vTID}
v_lshl_add_u32 v7, v8, 3, v7
v_add_u32 v7, {SB}, v7
v_mov_b32 v9, {f2u(1.0 / SCALE):#x}
v_mov_b32 v10, 0x7f800000
s_waitcnt lgkmcnt(0)
""")
    for j in range(12): A(f"v_mul_f32 v{E+j}, v9, v{E+j}")
    A("s_movk_i32 s52, 0x100")
    A(f"v_cmp_gt_u32 s[50:51], s52, v{vTID}")
    for j in range(12):
        A(f"v_cmp_nlt_f32 s[48:49], |v{E+j}|, v10")
        if j >= 8: A("s_and_b64 s[48:49], s[48:49], s[50:51]")
        A("s_or_b64 vcc, vcc, s[48:49]")
    for j in range(3):
        A(f"v_cvt_pk_bf16_f32 v{E+12}, v{E+4*j}, v{E+4*j+1}")
        A(f"v_cvt_pk_bf16_f32 v{E+13}, v{E+4*j+2}, v{E+4*j+3}")
        if j == 2:
            A(f"s_mov_b64 exec, s[50:51]")
        A(f"ds_write_b64 v7, v[{E+12}:{E+13}] offset:{16*SBSTR*j}")
    A(f"""
s_mov_b64 exec, -1
s_cmp_eq_u64 vcc, 0
s_cbranch_scc1 B_NOFLAG
v_mov_b32 v5, {L_FLAG}
v_mov_b32 v6, 1
ds_write_b32 v5, v6 offset:4
""")
    A.label("B_NOFLAG")
    A(f"""
s_waitcnt lgkmcnt(0)
s_barrier
v_mov_b32 v5, {L_FLAG}
ds_read_b32 v6, v5 offset:4
s_waitcnt lgkmcnt(0)
v_readfirstlane_b32 s{sT}, v6
s_cmp_lg_u32 s{sMode}, 0
s_cbranch_scc1 B_OUT
s_cmp_eq_u32 s{sT}, 0
s_cbranch_scc1 B_OUT
s_mov_b32 s{sMode}, 1
s_waitcnt vmcnt(0)
s_barrier
s_branch B_START
""")
    A.label("B_OUT")
    A(f"""
s_cmp_ge_u32 s{sWave}, 4
s_cbranch_scc1 B_END
s_lshr_b32 s{sT}, s{sWave}, 1
s_lshl_b32 s{sT}, s{sT}, 5
v_and_b32 v2, 31, v{vLane}
v_add_u32 v2, s{sT}, v2
v_mul_u32_u24 v5, {SBSTR}, v2
v_lshl_add_u32 v5, v3, 4, v5
v_add_u32 v5, {SB}, v5
v_lshlrev_b32 v6, 2, v2
ds_read_b32 v7, v6 offset:{L_DEG}
""")
    for s in range(8):
        A(f"ds_read_b128 v[{X+4*s}:{X+4*s+3}], v5 offset:{32*s}")
    srd(A, SO, 30, N_NODES * 128)
    A("s_waitcnt vmcnt(0) lgkmcnt(0)")
    d = D[0]
    for s in range(8):
        A(f"v_mfma_f32_32x32x16_bf16 v[{d}:{d+15}], v[{W+4*s}:{W+4*s+3}], v[{X+4*s}:{X+4*s+3}], {'0' if s == 0 else f'v[{d}:{d+15}]'}")
    A(f"""
v_cvt_f32_u32 v7, v7
v_add_u32 v8, s{sStart}, v2
v_lshlrev_b32 v8, 7, v8
v_add_u32 v8, v8, v4
v_cmp_gt_u32 vcc, s{sNn}, v2
""")
    for g in range(4):
        A(f"v_lshlrev_b32 v{E+4*g}, 16, v{We+2*g}")
        A(f"v_and_b32 v{E+4*g+1}, 0xffff0000, v{We+2*g}")
        A(f"v_lshlrev_b32 v{E+4*g+2}, 16, v{We+2*g+1}")
        A(f"v_and_b32 v{E+4*g+3}, 0xffff0000, v{We+2*g+1}")
    for j in range(16):
        A(f"v_fma_f32 v{d+j}, v7, v{E+j}, v{d+j}")
    A("s_and_saveexec_b64 s[48:49], vcc")
    for g in range(4):
        A(f"v_cvt_pk_bf16_f32 v{E+2*g}, v{d+4*g}, v{d+4*g+1}")
        A(f"v_cvt_pk_bf16_f32 v{E+2*g+1}, v{d+4*g+2}, v{d+4*g+3}")
        A(f"buffer_store_dwordx2 v[{E+2*g}:{E+2*g+1}], v8, s[{SO}:{SO+3}], 0 offen offset:{16*g}")
    A.label("B_END")
    A("s_endpgm")
    nops = A.pad()
    for tag in "FS":
        bad = A.check_loop(f"B_LOOP{tag}", f"s_cbranch_scc0 B_LOOP{tag}")
        assert not bad, bad
    return A, LDS_B

def descriptor(name, nv, ns):
    acc = (nv + 3) // 4 * 4
    return f""".amdhsa_kernel {name}
  .amdhsa_next_free_vgpr {nv}
  .amdhsa_next_free_sgpr {ns}
  .amdhsa_accum_offset {acc}
  .amdhsa_group_segment_fixed_size 0
  .amdhsa_kernarg_size 88
  .amdhsa_user_sgpr_count 2
  .amdhsa_user_sgpr_kernarg_segment_ptr 1
  .amdhsa_system_sgpr_workgroup_id_x 1
.end_amdhsa_kernel
"""

def main(path):
    a, la = kernel_a()
    b, lb = kernel_b()
    hdr = open("cdna_kernels/" + NAME + ".s.ref").read().split("; Override launch geometry")[0]
    s = hdr
    s += "; Two launches: a per-chunk bucket sort of the edges (plus weight fragments), then the per-bucket message pass.\n"
    s += f"; @launch kernel={KA} grid=({NB},1,1) block=(704,1,1) lds={la}\n"
    s += f"; @launch kernel={KB} grid=({NB},1,1) block=(512,1,1) lds={lb}\n"
    s += '.amdgcn_target "amdgcn-amd-amdhsa--gfx950"\n.text\n'
    for name, k in ((KA, a), (KB, b)):
        s += f".globl {name}\n.p2align 8\n.type {name},@function\n" + k.text()
    s += '.section .rodata,"a"\n.p2align 6\n' + descriptor(KA, 64, 64) + ".p2align 6\n" + descriptor(KB, NVGPR_B, 80)
    open(path, "w").write(s)

if __name__ == "__main__":
    main(OPT.get("out", "cdna_kernels/" + NAME + ".s"))
```

```python
import re

TRANS = ("v_exp_f32", "v_log_f32", "v_rcp_f32", "v_rsq_f32", "v_sqrt_f32", "v_sin_f32", "v_cos_f32")

def parse_regs(tok):
    tok = tok.strip()
    m = re.fullmatch(r"(-?\|?)([vs])\[(\d+):(\d+)\]\|?", tok)
    if m:
        return {(m.group(2), i) for i in range(int(m.group(3)), int(m.group(4)) + 1)}
    m = re.fullmatch(r"(-?\|?)([vs])(\d+)\|?", tok)
    if m:
        return {(m.group(2), int(m.group(3)))}
    if tok == "vcc":
        return {("s", "vcc")}
    if tok == "exec":
        return {("s", "exec")}
    if tok == "m0":
        return {("s", "m0")}
    return set()

class Ins:
    def __init__(self, text):
        self.text = text
        t = text.split(";")[0].strip()
        self.is_label = t.endswith(":")
        self.is_dir = t.startswith(".")
        self.mn = ""
        self.ops = []
        if not t or self.is_label or self.is_dir:
            self.kind = "none"; self.w = set(); self.r = set(); return
        parts = t.split(None, 1)
        self.mn = parts[0]
        rest = parts[1] if len(parts) > 1 else ""
        ops = []; depth = 0; cur = ""
        for ch in rest:
            if ch == "[": depth += 1
            if ch == "]": depth -= 1
            if ch == "," and depth == 0:
                ops.append(cur.strip()); cur = ""
            else:
                cur += ch
        if cur.strip(): ops.append(cur.strip())
        if ops:
            last = ops[-1].split()
            self.mods = " ".join(last[1:])
            ops[-1] = last[0]
        else:
            self.mods = ""
        self.ops = ops
        mn = self.mn
        R = [parse_regs(o) for o in ops]
        w = set(); r = set()
        self.dpp = "dpp" in mn or "row_" in self.mods or "wave_" in self.mods
        if mn.startswith("v_mfma"):
            self.kind = "mfma"; w = R[0]; r = R[1] | R[2] | R[3]
            self.srcc = R[3]; self.srcab = R[1] | R[2]
        elif mn.startswith("v_cmpx"):
            self.kind = "valu"; w = R[0] | {("s", "exec")}; r = set().union(*R[1:])
        elif mn.startswith("v_cmp"):
            self.kind = "valu"; w = R[0]; r = set().union(*R[1:])
        elif mn.startswith("v_readfirstlane") or mn.startswith("v_readlane"):
            self.kind = "valu"; w = R[0]; r = set().union(*R[1:])
        elif mn.startswith("v_permlane"):
            self.kind = "valu"; w = R[0] | R[1]; r = R[0] | R[1]
        elif mn.startswith("v_"):
            self.kind = "valu"; w = set(R[0]); r = set().union(*R[1:]) if len(R) > 1 else set()
            if "_co_" in mn:
                w |= R[1]; r = set().union(*R[2:])
            if mn.startswith("v_fmac") or mn.startswith("v_pk_fmac") or self.dpp:
                r |= R[0]
            if mn.startswith("v_cndmask") and len(ops) == 3:
                r |= {("s", "vcc")}
        elif mn.startswith("ds_"):
            self.kind = "ds"
            if mn.startswith("ds_read") or "_rtn" in mn or mn.startswith("ds_bpermute") or mn.startswith("ds_swizzle"):
                w = R[0]; r = set().union(*R[1:]) if len(R) > 1 else set()
            else:
                r = set().union(*R)
        elif mn.startswith("buffer_") or mn.startswith("global_"):
            self.kind = "vmem"
            allmods = self.mods
            self.lds = (" lds" in (" " + allmods)) or "_lds_" in mn
            if "store" in mn or "atomic" in mn:
                r = set().union(*R)
            elif self.lds:
                r = set().union(*R) | {("s", "m0")}
            else:
                w = R[0]; r = set().union(*R[1:])
        elif mn.startswith("s_"):
            self.kind = "salu"
            if mn.startswith(("s_cmp", "s_waitcnt", "s_barrier", "s_nop", "s_branch", "s_cbranch", "s_endpgm", "s_setprio", "s_sleep")):
                r = set().union(*R) if R else set()
            else:
                w = R[0] if R else set(); r = set().union(*R[1:]) if len(R) > 1 else set()
                if "saveexec" in mn:
                    w |= {("s", "exec")}; r |= {("s", "exec")}
        else:
            raise ValueError("unknown instruction: " + text)
        self.w = w; self.r = r
        self.states = 1
        if mn == "s_nop":
            self.states = int(ops[0], 0) + 1

def vonly(s): return {x for x in s if x[0] == "v"}
def sonly(s): return {x for x in s if x[0] == "s"}

def need(prod, cons):
    n = 0
    pk, ck = prod.kind, cons.kind
    pw = prod.w
    if pk == "valu":
        if ck == "mfma" and vonly(pw) & cons.r: n = max(n, 2)
        if ck == "valu":
            if prod.mn in TRANS and cons.mn not in TRANS and (vonly(pw) & (cons.r)): n = max(n, 1)
            if cons.dpp and vonly(pw) & cons.r: n = max(n, 2)
            if cons.mn.startswith(("v_readfirstlane", "v_readlane")) and vonly(pw) & cons.r: n = max(n, 1)
            if cons.mn.startswith("v_permlane") and vonly(pw) & cons.r: n = max(n, 2)
            sw = sonly(pw) - {("s", "exec")}
            if sw & cons.r: n = max(n, 4 if cons.mn.startswith(("v_readlane", "v_writelane")) else 2)
            if ("s", "exec") in pw:
                if cons.dpp: n = max(n, 5)
                if cons.mn.startswith(("v_readlane", "v_readfirstlane", "v_writelane", "v_permlane")): n = max(n, 4)
                if ("s", "exec") in cons.r: n = max(n, 2)
        if ck == "mfma" and ("s", "exec") in pw: n = max(n, 4)
        if ck == "vmem" and (sonly(pw) - {("s", "exec")}) & cons.r: n = max(n, 5)
        if ck == "salu" and (sonly(pw) - {("s", "exec")}) & cons.r: n = max(n, 1)
    if pk == "mfma":
        big = "32x32" in prod.mn
        raw = 12 if big else 8
        if ck == "valu" and (pw & (cons.r | cons.w)): n = max(n, raw)
        if ck in ("ds", "vmem") and (pw & (cons.r | cons.w)): n = max(n, raw)
        if ck == "mfma":
            if pw & cons.srcab: n = max(n, raw)
            if pw & cons.srcc and cons.srcc != pw: n = max(n, 10 if big else 6)
        if ck == "valu" and (prod.srcc & cons.w): n = max(n, 7 if big else 3)
    if pk == "salu" and ("s", "m0") in pw and ck == "vmem" and cons.lds: n = max(n, 1)
    if pk == "vmem" and "store" in prod.mn and ("x4" in prod.mn or "x3" in prod.mn):
        if ck == "valu" and vonly(prod.r) & cons.w: n = max(n, 2)
    return n

class Asm:
    def __init__(self, stamps=False):
        self.ins = []
        self.stamps = stamps
    def __call__(self, text):
        for line in text.strip("\n").split("\n"):
            t = line.strip()
            if t.startswith("STAMP"):
                if self.stamps:
                    i = int(t.split()[1])
                    self.ins.append(Ins(f"s_memrealtime s[{64+2*i}:{65+2*i}]"))
                continue
            if t:
                self.ins.append(Ins(t))
    def label(self, name):
        self.ins.append(Ins(name + ":"))
    def pad(self, window=24):
        out = []; added = 0
        for c in self.ins:
            if c.kind != "none":
                dist = 0; worst = 0
                for p in reversed(out[-window * 2:]):
                    if p.kind == "none": continue
                    nd = need(p, c)
                    if nd > dist: worst = max(worst, nd - dist)
                    dist += p.states
                    if dist >= 16: break
                while worst > 0:
                    k = min(worst, 16)
                    out.append(Ins(f"s_nop {k - 1}")); worst -= k; added += 1
            out.append(c)
        self.ins = out
        return added
    def check_loop(self, start_label, end_branch_text):
        names = [i.text for i in self.ins]
        a = names.index(start_label + ":")
        b = max(i for i, t in enumerate(names) if t.startswith(end_branch_text))
        body = [i for i in self.ins[a:b + 1] if i.kind != "none"]
        seq = body + body
        bad = []
        for ci in range(len(body), min(len(seq), len(body) + 40)):
            c = seq[ci]; dist = 0
            for pi in range(ci - 1, max(-1, ci - 40), -1):
                p = seq[pi]
                nd = need(p, c)
                if nd > dist: bad.append((p.text, c.text, nd, dist))
                dist += p.states
                if dist >= 16: break
        return bad
    def text(self):
        o = []
        for i in self.ins:
            if i.is_label or i.is_dir: o.append(i.text)
            else: o.append("    " + i.text)
        return "\n".join(o) + "\n"
```

```python
import sys
from asmlib import Asm

NAME = "gather_scatter__edge_featured_mpnn_mpnn__graph"
KA = "gs_sort_kernel"
KB = NAME + "_kernel"

N_NODES = 10000; N_EDGES = 640000; NB = 256; CH = 2500
WS_TBL = 0; WS_REC = 262144; WS_WF = WS_REC + N_EDGES * 4; WS_END = WS_WF + 52 * 1024
assert WS_WF % 4096 == 0
BF_ONE = 0x3F80
SCALE = -1.4426950408889634
import struct
def f2u(x): return struct.unpack("<I", struct.pack("<f", x))[0]

OPT = dict(debug=False, prio=True, stamps=False)
for a in sys.argv[1:]:
    if "=" in a:
        k, v = a.split("="); OPT[k] = eval(v)

def srd(A, d, base, size, stride=0):
    A(f"s_mov_b32 s{d}, s{base}")
    A(f"s_and_b32 s{d+1}, s{base+1}, 0xffff")
    if stride: A(f"s_or_b32 s{d+1}, s{d+1}, {stride << 16:#x}")
    A(f"s_mov_b32 s{d+2}, {size}")
    A(f"s_mov_b32 s{d+3}, 0x20000")

WS_STAMP = 8 << 20
def stamp_flush(A, n, wsbase, wg, wave, region):
    if not OPT["stamps"]: return
    A("s_waitcnt lgkmcnt(0)")
    A("s_mov_b64 exec, -1")
    A(f"s_lshl_b32 s60, s{wg}, 4")
    A(f"s_add_u32 s60, s60, s{wave}")
    A(f"s_lshl_b32 s60, s60, 6")
    A(f"s_add_u32 s60, s60, {WS_STAMP + region * (1 << 20)}")
    A(f"s_add_u32 s62, s{wsbase}, s60")
    A(f"s_addc_u32 s63, s{wsbase+1}, 0")
    A("v_mov_b32 v1, 0")
    for i in range(n):
        A(f"v_mov_b32 v2, s{64+2*i}")
        A(f"global_store_dword v1, v2, s[62:63] offset:{4*i}")
    A("s_waitcnt vmcnt(0)")

def wave_scan(A, v):
    for sh in (1, 2, 4, 8):
        A(f"v_add_u32_dpp v{v}, v{v}, v{v} row_shr:{sh} row_mask:0xf bank_mask:0xf")
    A(f"v_add_u32_dpp v{v}, v{v}, v{v} row_bcast:15 row_mask:0xa bank_mask:0xf")
    A(f"v_add_u32_dpp v{v}, v{v}, v{v} row_bcast:31 row_mask:0xc bank_mask:0xf")

def kernel_a():
    A = Asm(OPT["stamps"])
    LH, LB, LS = 0, 1024, 2048
    A.label(KA)
    A(f"""
s_cmp_ge_u32 s2, {NB}
s_cbranch_scc1 A_END
STAMP 0
s_load_dwordx4 s[4:7], s[0:1], 16
s_load_dwordx2 s[8:9], s[0:1], 80
s_load_dwordx2 s[10:11], s[0:1], 32
s_load_dwordx2 s[28:29], s[0:1], 48
v_lshrrev_b32 v1, 6, v0
v_readfirstlane_b32 s3, v1
s_cmp_eq_u32 s3, 10
s_cbranch_scc1 A_PREP
v_lshlrev_b32 v2, 2, v0
v_mov_b32 v3, 0
s_cmp_ge_u32 s3, 4
s_cbranch_scc1 A_NOZ
ds_write_b32 v2, v3 offset:{LH}
""")
    A.label("A_NOZ")
    A(f"""
s_mul_i32 s24, s2, {CH * 4}
v_lshlrev_b32 v2, 4, v0
v_cmp_gt_u32 vcc, {CH // 4}, v0
s_waitcnt lgkmcnt(0)
""")
    srd(A, 12, 4, N_EDGES * 4)
    srd(A, 16, 6, N_EDGES * 4)
    srd(A, 20, 8, WS_END)
    A(f"""
s_and_saveexec_b64 s[26:27], vcc
s_mov_b64 s[30:31], exec
buffer_load_dwordx4 v[4:7], v2, s[16:19], s24 offen
buffer_load_dwordx4 v[8:11], v2, s[12:15], s24 offen
s_barrier
v_lshlrev_b32 v12, 8, v0
v_add_u32 v13, 64, v12
v_add_u32 v14, 0x80, v12
v_add_u32 v15, 0xc0, v12
v_mov_b32 v16, 1
s_mov_b32 s25, 429497
STAMP 1
s_waitcnt vmcnt(1)
STAMP 2
""")
    for i in range(4):
        A(f"v_mul_u32_u24 v{20+i}, s25, v{4+i}")
    for i in range(4):
        A(f"v_lshrrev_b32 v{20+i}, 22, v{20+i}")
    for i in range(4):
        A(f"v_and_b32 v{20+i}, 0x3fc, v{20+i}")
        A(f"ds_add_rtn_u32 v{24+i}, v{20+i}, v16 offset:{LH}")
    A("s_waitcnt vmcnt(0)")
    for i in range(4):
        A(f"v_and_or_b32 v{28+i}, v{4+i}, 63, v{12+i}")
    for i in range(4):
        A(f"v_lshl_or_b32 v{28+i}, v{8+i}, 18, v{28+i}")
    A(f"""
s_waitcnt lgkmcnt(0)
s_barrier
STAMP 3
s_mov_b64 exec, -1
v_and_b32 v32, 63, v0
v_lshlrev_b32 v33, 4, v32
ds_read_b128 v[36:39], v33 offset:{LH}
s_waitcnt lgkmcnt(0)
v_add_u32 v40, v36, v37
v_add_u32 v41, v40, v38
v_add_u32 v42, v41, v39
v_mov_b32 v43, v42
""")
    wave_scan(A, 43)
    A(f"""
v_sub_u32 v44, v43, v42
v_add_u32 v45, v44, v36
v_add_u32 v46, v44, v40
v_add_u32 v47, v44, v41
ds_write_b128 v33, v[44:47] offset:{LB}
s_cmp_lg_u32 s3, 0
s_cbranch_scc1 A_NOTBL
v_lshl_or_b32 v48, v36, 16, v44
v_lshl_or_b32 v49, v37, 16, v45
v_lshl_or_b32 v50, v38, 16, v46
v_lshl_or_b32 v51, v39, 16, v47
s_lshl_b32 s32, s2, 10
s_add_u32 s32, s32, {WS_TBL}
buffer_store_dwordx4 v[48:51], v33, s[20:23], s32 offen
""")
    A.label("A_NOTBL")
    A("s_waitcnt lgkmcnt(0)")
    A("s_mov_b64 exec, s[30:31]")
    for i in range(4):
        A(f"ds_read_b32 v{52+i}, v{20+i} offset:{LB}")
    for i in range(4):
        A(f"s_waitcnt lgkmcnt({3-i})")
        A(f"v_add_lshl_u32 v{52+i}, v{52+i}, v{24+i}, 2")
        A(f"ds_write_b32 v{52+i}, v{28+i} offset:{LS}")
    A(f"""
s_waitcnt lgkmcnt(0)
s_barrier
STAMP 4
ds_read_b128 v[4:7], v2 offset:{LS}
s_add_u32 s33, s24, {WS_REC}
s_waitcnt lgkmcnt(0)
buffer_store_dwordx4 v[4:7], v2, s[20:23], s33 offen
""")
    if OPT["stamps"]:
        A("s_waitcnt vmcnt(0)")
        A("STAMP 5")
        stamp_flush(A, 6, 8, 2, 3, 0)
    A("s_endpgm")
    A.label("A_PREP")
    A(f"""
v_and_b32 v1, 63, v0
s_mul_i32 s12, s2, 52
v_add_u32 v2, s12, v1
v_cmp_gt_u32 vcc, 52, v1
s_and_saveexec_b64 s[26:27], vcc
v_lshrrev_b32 v3, 8, v2
v_bfe_u32 v4, v2, 2, 6
v_and_b32 v5, 3, v2
v_and_b32 v6, 31, v4
v_lshrrev_b32 v7, 5, v4
v_lshlrev_b32 v8, 3, v7
v_lshl_add_u32 v8, v5, 1, v8
v_lshrrev_b32 v9, 2, v3
v_lshl_add_u32 v9, v9, 4, v8
v_and_b32 v10, 3, v3
v_lshl_add_u32 v10, v10, 5, v6
v_lshlrev_b32 v9, 8, v9
v_lshl_add_u32 v9, v10, 1, v9
v_subrev_u32 v11, 36, v3
v_lshrrev_b32 v12, 1, v11
v_lshl_add_u32 v12, v12, 4, v8
v_and_b32 v13, 1, v11
v_lshl_add_u32 v13, v13, 5, v6
v_lshlrev_b32 v12, 7, v12
v_lshl_add_u32 v12, v13, 1, v12
v_cmp_gt_u32 vcc, 36, v3
v_mov_b32 v14, 0x7ffffff0
v_mov_b32 v15, 1.0
v_mov_b32 v16, {f2u(SCALE):#x}
v_cndmask_b32 v9, v14, v9, vcc
v_cndmask_b32 v12, v12, v14, vcc
v_cndmask_b32 v15, v15, v16, vcc
s_waitcnt lgkmcnt(0)
""")
    srd(A, 12, 10, 144 * 128 * 2)
    srd(A, 16, 28, 128 * 64 * 2)
    srd(A, 20, 8, WS_END)
    A(f"""
buffer_load_ushort v20, v9, s[12:15], 0 offen
buffer_load_ushort v21, v9, s[12:15], 0 offen offset:256
buffer_load_ushort v22, v12, s[16:19], 0 offen
buffer_load_ushort v23, v12, s[16:19], 0 offen offset:128
v_lshlrev_b32 v2, 2, v2
s_mov_b32 s32, {WS_WF}
s_waitcnt vmcnt(0)
v_or_b32 v20, v20, v22
v_or_b32 v21, v21, v23
v_lshlrev_b32 v20, 16, v20
v_lshlrev_b32 v21, 16, v21
v_mul_f32 v20, v15, v20
v_mul_f32 v21, v15, v21
v_cvt_pk_bf16_f32 v20, v20, v21
buffer_store_dword v20, v2, s[20:23], s32 offen
""")
    A.label("A_END")
    A("s_endpgm")
    A.pad()
    return A, 12288

L_S = 0; L_CNT = 40960; L_NTAB = 41216; L_DEG = 42240; L_FLAG = 42496; L_QT = 42752
L_QADDR = 57088; L_QEND = 60416; L_OHT = 65408; L_OHZ = 65536; L_XB0 = 65792; L_LIST = L_XB0 + 8 * 6144
LDS_B = L_LIST + 40960
QSTR = 112; CAPQ = 768; SBSTR = 272
TB = 384

vTID = 0
aX, aG, aO, aQ, aN = 1, 2, 3, 4, 5
xr = [6, 7, 8, 9]; eAddr = 10; vQ = 11; qbase = 12; c1 = 13; lanecol = 14; ohaddr = 15
xi = [16, 18, 20, 22]; ei = 24; node0 = 26; tmp = 27; chk = 28; tmp2 = 30
qa = [32, 36]
E = 40; D = [56, 72]; X = 88; Ea = 104; OH = 108; Qx = 112; We = 128; W = 144
vTbl = 208; vdeg = 209; vLane = 210; vN6 = 211; vOhp = 212; vC25 = 213; vLim = 214; vT = 215
NVGPR_B = 224
R = 40; RK = 56; A4 = 72; NT = 88

sB = 2; SX = 4; SE = 8; SW = 12; SO = 16
sWave = 32; sStart = 33; sNn = 34; sS6 = 35; sXB = 36; sN = 37; sT0 = 38; sMode = 39
sR = 40; sLo = 41; sMax = 42; sFirst = 43; sTot = 44; sT = 45; sT2 = 46; sT3 = 47

def fill_lists(A):
    A(f"v_lshlrev_b32 v{tmp}, 4, v{vTID}")
    A(f"v_add_u32 v{tmp2}, {L_LIST}, v{tmp}")
    for i in range(4): A(f"v_mov_b32 v{E+i}, -1")
    for i in range(4): A(f"v_mov_b32 v{E+4+i}, 0")
    for j in range(5):
        A(f"ds_write_b128 v{tmp2}, v[{E}:{E+3}] offset:{8192*j}")
    A(f"v_cmp_gt_u32 vcc, {(L_QEND - L_QADDR) // 16}, v{vTID}")
    A(f"s_and_saveexec_b64 s[48:49], vcc")
    A(f"ds_write_b128 v{tmp}, v[{E+4}:{E+7}] offset:{L_QADDR}")
    A(f"v_cmp_gt_u32 vcc, 16, v{vTID}")
    A(f"s_and_b64 exec, exec, vcc")
    A(f"ds_write_b128 v{tmp}, v[{E+4}:{E+7}] offset:{L_CNT}")
    A(f"s_mov_b64 exec, s[48:49]")

def zero_s(A):
    for j in range(5):
        A(f"ds_write_b128 v{tmp}, v[{E+4}:{E+7}] offset:{L_S + 8192*j}")

def silu_list(d, fast):
    e = E
    p = lambda r: f"v[{r}:{r+1}]"
    L = []
    for j in range(16): L.append(f"v_exp_f32 v{e+j}, v{d+j}")
    if fast:
        for o in (0, 8):
            L.append(f"v_pk_add_f32 {p(e+o+2)}, {p(e+o+2)}, 1.0 op_sel_hi:[1,0]")
            L.append(f"v_pk_add_f32 {p(e+o+6)}, {p(e+o+6)}, 1.0 op_sel_hi:[1,0]")
        for o in (0, 8):
            L.append(f"v_pk_fma_f32 {p(d+o)}, {p(d+o)}, {p(e+o+2)}, {p(d+o+2)}")
            L.append(f"v_pk_fma_f32 {p(d+o+4)}, {p(d+o+4)}, {p(e+o+6)}, {p(d+o+6)}")
        for o in (0, 8):
            L.append(f"v_pk_fma_f32 {p(d+o)}, {p(d+o+2)}, {p(e+o)}, {p(d+o)}")
            L.append(f"v_pk_fma_f32 {p(d+o+4)}, {p(d+o+6)}, {p(e+o+4)}, {p(d+o+4)}")
        for o in (0, 8):
            L.append(f"v_pk_fma_f32 {p(e+o)}, {p(e+o)}, {p(e+o+2)}, {p(e+o+2)}")
            L.append(f"v_pk_fma_f32 {p(e+o+4)}, {p(e+o+4)}, {p(e+o+6)}, {p(e+o+6)}")
        for o in (0, 8):
            L.append(f"v_pk_mul_f32 {p(e+o+2)}, {p(e+o)}, {p(e+o+4)}")
        for o in (0, 8):
            L.append(f"v_pk_mul_f32 {p(d+o)}, {p(d+o)}, {p(e+o+4)}")
        for o in (0, 8):
            L.append(f"v_rcp_f32 v{e+o+6}, v{e+o+2}")
            L.append(f"v_rcp_f32 v{e+o+7}, v{e+o+3}")
        for o in (0, 8):
            L.append(f"v_pk_fma_f32 {p(d+o)}, {p(d+o+4)}, {p(e+o)}, {p(d+o)}")
        for o in (0, 8):
            L.append(f"v_pk_add_f32 {p(chk)}, {p(chk)}, {p(e+o+2)}")
        for o in (0, 8):
            L.append(f"v_pk_mul_f32 {p(d+o)}, {p(d+o)}, {p(e+o+6)}")
    else:
        for j in range(0, 16, 2):
            L.append(f"v_pk_add_f32 {p(e+j)}, {p(e+j)}, 1.0 op_sel_hi:[1,0]")
        for j in range(16): L.append(f"v_rcp_f32 v{e+j}, v{e+j}")
        for j in range(0, 16, 2):
            L.append(f"v_pk_mul_f32 {p(d+j)}, {p(d+j)}, {p(e+j)}")
        for o in (0, 8):
            L.append(f"v_pk_add_f32 {p(d+o)}, {p(d+o)}, {p(d+o+2)}")
            L.append(f"v_pk_add_f32 {p(d+o+4)}, {p(d+o+4)}, {p(d+o+6)}")
        for o in (0, 8):
            L.append(f"v_pk_add_f32 {p(d+o)}, {p(d+o)}, {p(d+o+4)}")
    return L

def chain(c, d):
    q = lambda r: f"v[{r}:{r+3}]"
    dd = f"v[{d}:{d+15}]"
    M = []
    for s in range(4):
        M.append(f"v_mfma_f32_32x32x16_bf16 {dd}, {q(X+4*s)}, {q(W+16*s+4*c)}, {'0' if s == 0 else dd}")
    M.append(f"v_mfma_f32_32x32x16_bf16 {dd}, {q(Ea)}, {q(We+4*c)}, {dd}")
    M.append(f"v_mfma_f32_32x32x16_bf16 {dd}, {q(OH)}, {q(Qx+4*c)}, {dd}")
    return M

XOFF = (0, 24, 96, 120)
def dma_x(A, k):
    for i in range(4):
        A(f"s_add_u32 m0, s{sXB}, {1024*i}")
        A(f"s_nop 0")
        A(f"buffer_load_dwordx4 v[{xi[i]}:{xi[i]+1}], s[{SX}:{SX+3}], 0 idxen offen lds")
def dma_e(A, slot):
    A(f"s_add_u32 m0, s{sXB}, {4096 + 1024*slot}")
    A(f"s_nop 0")
    A(f"buffer_load_dwordx4 v[{ei}:{ei+1}], s[{SE}:{SE+3}], 0 idxen offen lds")
def read_xidx(k): return [f"ds_read_b32 v{xi[i]}, v{aX} offset:{TB*k + 12*[0,2,8,10][i]}" for i in range(4)]
def read_eidx(k): return [f"ds_read_b32 v{ei}, v{aG} offset:{TB*k}"]
def read_a(eslot):
    L = [f"ds_read_b128 v[{X+4*s}:{X+4*s+3}], v{xr[s]}" for s in range(4)]
    L.append(f"ds_read_b128 v[{Ea}:{Ea+3}], v{eAddr} offset:{1024*eslot}")
    L.append(f"ds_read_b128 v[{OH}:{OH+3}], v{ohaddr} offset:1")
    return L
def read_q(c): return f"ds_read_b128 v[{Qx+4*c}:{Qx+4*c+3}], v{vQ} offset:{32*QSTR*c}"
def calc_vq():
    return [f"v_add_u32 v{tmp}, v{node0}, v{c1}", f"v_lshrrev_b32 v{tmp}, 14, v{tmp}",
            f"v_lshl_add_u32 v{vQ}, v{tmp}, 5, v{qbase}"]
def read_meta(k, par):
    return [f"ds_read_b128 v[{qa[par]}:{qa[par]+3}], v{aQ} offset:{32*k}",
            f"ds_read_b32 v{node0}, v{aN} offset:{32*k}",
            f"ds_read_u16 v{ohaddr}, v{aO} offset:{TB*k}"]

def tile_iter(A, par, fast):
    k = par
    mpos = [1, 5, 9, 13, 19, 27] if fast else [1, 5, 9, 13, 19, 27]
    for ph in range(4):
        d = D[ph & 1]; dn = D[(ph + 1) & 1]
        V = silu_list(d, fast)
        M = chain((ph + 1) & 3, dn)
        ins = {}
        def at(i, items): ins.setdefault(i, []).extend(items)
        if ph == 0:
            at(2, read_meta(k + 1, 1 - par))
        if ph == 1:
            at(-1, ["s_waitcnt lgkmcnt(4)"])
            at(2, calc_vq())
            at(3, [f"v_add_u32 v{qa[1-par]+j}, v{qa[1-par]+j}, v{lanecol}" for j in range(4)])
            at(6, [read_q(0), read_q(1)])
            at(10, read_xidx(k + 2) + read_eidx(k + 3))
        if ph == 2:
            at(0, [read_q(2)])
        if ph == 3:
            at(7, [read_q(3)])
        for i, x in enumerate(ins.get(-1, [])): A(x)
        mi = 0
        for i, v in enumerate(V):
            A(v)
            for x in ins.get(i, []): A(x)
            if mi < 6 and mpos[mi] == i:
                if ph == 3 and mi == 0:
                    A("s_waitcnt lgkmcnt(4)")
                    dma_x(A, k + 2)
                    dma_e(A, 1 - par)
                A(M[mi]); mi += 1
                if ph == 2 and mi == 6:
                    A("s_waitcnt vmcnt(1)")
                    for x in read_a(1 - par): A(x)
        q = qa[par]
        for j, (r, t) in enumerate(((d, d + 2), (d + 1, d + 4), (d + 8, d + 10), (d + 9, d + 12))):
            A(f"v_cvt_f64_f32 v[{t}:{t+1}], v{r}")
        for j, (r, t) in enumerate(((d, d + 2), (d + 1, d + 4), (d + 8, d + 10), (d + 9, d + 12))):
            A(f"ds_add_f64 v{q+j}, v[{t}:{t+1}] offset:{256*ph}")

def main_loop(A, fast):
    tag = "F" if fast else "S"
    for x in read_xidx(0) + read_eidx(0): A(x)
    for x in read_meta(0, 0): A(x)
    A("s_waitcnt lgkmcnt(0)")
    dma_x(A, 0); dma_e(A, 0)
    for x in read_eidx(1): A(x)
    for x in calc_vq(): A(x)
    for j in range(4): A(f"v_add_u32 v{qa[0]+j}, v{qa[0]+j}, v{lanecol}")
    A("s_waitcnt lgkmcnt(0)")
    dma_e(A, 1)
    for c in range(4): A(read_q(c))
    for x in read_xidx(1) + read_eidx(2): A(x)
    A("s_waitcnt vmcnt(1)")
    for x in read_a(0): A(x)
    A("s_waitcnt lgkmcnt(0)")
    dma_x(A, 1); dma_e(A, 0)
    for m in chain(0, D[0]): A(m)
    A("s_nop 7")
    A("s_nop 7")
    if OPT["prio"]: A("s_setprio 3")
    if fast: A("STAMP 7")
    A.label(f"B_LOOP{tag}")
    for par in (0, 1):
        tile_iter(A, par, fast)
        if par == 1:
            for r in (aX, aG, aO): A(f"v_add_u32 v{r}, {2*TB}, v{r}")
            for r in (aQ, aN): A(f"v_add_u32 v{r}, 64, v{r}")
        A(f"s_sub_u32 s{sN}, s{sN}, 1")
        if OPT["prio"]:
            for rem, pr in ((3, 2), (2, 1), (1, 0)):
                A(f"s_cmp_eq_u32 s{sN}, {rem}")
                A(f"s_cbranch_scc0 B_P{tag}{par}{rem}")
                A(f"s_setprio {pr}")
                A.label(f"B_P{tag}{par}{rem}")
        A(f"s_cmp_eq_u32 s{sN}, 0")
        if par == 0: A(f"s_cbranch_scc1 B_LOOPEND")
        else: A(f"s_cbranch_scc0 B_LOOP{tag}")
    A("s_branch B_LOOPEND")

def sort_slots(A, body, groups, tag):
    for g in groups:
        for i in range(4):
            A(f"v_cmpx_lt_i32 vcc, {8*g+i}, v{vLim}")
            if i % 2 == 0: A(f"s_cbranch_execz {tag}")
            body(g, i)

def kernel_b():
    A = Asm(OPT["stamps"])
    A.label(KB)
    A(f"""
s_cmp_ge_u32 s2, {NB}
s_cbranch_scc1 B_END
STAMP 0
s_load_dwordx4 s[20:23], s[0:1], 0
s_load_dwordx2 s[24:25], s[0:1], 40
s_load_dwordx4 s[28:31], s[0:1], 56
s_load_dwordx2 s[26:27], s[0:1], 80
v_lshrrev_b32 v1, 6, v0
v_and_b32 v{vLane}, 63, v0
v_readfirstlane_b32 s{sWave}, v1
s_mul_i32 s{sStart}, s2, 625
s_add_u32 s{sT}, s{sStart}, {625 + 15}
s_add_u32 s{sStart}, s{sStart}, 15
s_lshr_b32 s{sStart}, s{sStart}, 4
s_lshr_b32 s{sT}, s{sT}, 4
s_sub_u32 s{sNn}, s{sT}, s{sStart}
s_and_b32 s{sS6}, s{sStart}, 63
s_mul_i32 s{sXB}, s{sWave}, 6144
s_add_u32 s{sXB}, s{sXB}, {L_XB0}
s_mov_b32 s{sMode}, 0
B_START:
s_mov_b32 s{sR}, 32
s_mov_b32 s{sLo}, 0
s_mov_b32 s{sFirst}, 1
v_mov_b32 v{vdeg}, 0
v_mov_b32 v{chk}, 0
v_mov_b32 v{chk+1}, 0
""")
    fill_lists(A)
    zero_s(A)
    A(f"""
v_cmp_gt_u32 vcc, 4, v{vTID}
s_and_saveexec_b64 s[48:49], vcc
ds_write_b128 v{tmp}, v[{E+4}:{E+7}] offset:{L_FLAG}
s_mov_b64 exec, s[48:49]
v_cmp_gt_u32 vcc, 36, v{vTID}
s_and_saveexec_b64 s[48:49], vcc
v_lshrrev_b32 v1, 2, v{vTID}
v_and_b32 v2, 3, v{vTID}
v_lshrrev_b32 v3, 1, v1
v_and_b32 v4, 1, v1
v_lshlrev_b32 v4, 4, v4
v_mov_b32 v5, {BF_ONE:#x}
v_lshlrev_b32 v5, v4, v5
v_cmp_eq_u32 vcc, v2, v3
v_lshlrev_b32 v6, 2, v{vTID}
v_cndmask_b32 v5, 0, v5, vcc
v_add_u32 v6, {L_OHT}, v6
ds_write_b32 v6, v5
s_mov_b64 exec, s[48:49]
""")
    A(f"""
v_add_u32 v{vN6}, s{sS6}, v{vLane}
v_and_b32 v{vN6}, 63, v{vN6}
v_lshlrev_b32 v{vN6}, 2, v{vN6}
v_and_b32 v1, 7, v{vLane}
v_lshlrev_b32 v1, 4, v1
v_add_u32 v1, {L_OHT - 1}, v1
v_mov_b32 v2, 0xffff
v_and_b32 v3, 8, v{vLane}
v_cmp_eq_u32 vcc, 0, v3
v_lshrrev_b32 v4, 1, v{vTID}
v_mul_u32_u24 v{vC25}, {CH}, v4
v_cndmask_b32 v5, v2, v1, vcc
v_cndmask_b32 v6, v1, v2, vcc
v_lshl_or_b32 v{vOhp}, v6, 16, v5
v_lshlrev_b32 v4, 10, v4
s_lshl_b32 s{sT}, s2, 2
s_add_u32 s{sT}, s{sT}, {WS_TBL}
s_waitcnt lgkmcnt(0)
""")
    srd(A, SW, 26, WS_END)
    A(f"buffer_load_dword v{vTbl}, v4, s[{SW}:{SW+3}], s{sT} offen")
    A(f"v_lshlrev_b32 v1, 4, v{vLane}")
    for j in range(3):
        A(f"s_lshl_b32 s{sT}, s{sWave}, 10")
        A(f"s_add_u32 m0, s{sT}, {L_XB0 + 8192*j}")
        A(f"s_add_u32 s{sT2}, s{sT}, {WS_WF + (8192*j if j < 2 else 32768)}")
        A(f"buffer_load_dwordx4 v1, s[{SW}:{SW+3}], s{sT2} offen lds")
    srd(A, SX, 20, N_NODES, stride=128)
    srd(A, SE, 22, N_EDGES, stride=32)
    srd(A, SO, 20, N_NODES * 128)
    A(f"""
s_lshr_b32 s{sT}, s{sWave}, 2
s_lshl_b32 s{sT}, s{sT}, 5
s_add_u32 s{sT}, s{sT}, s{sStart}
v_and_b32 v2, 31, v{vLane}
v_lshrrev_b32 v3, 5, v{vLane}
v_add_u32 v4, s{sT}, v2
v_lshlrev_b32 v4, 7, v4
v_lshl_add_u32 v4, v3, 4, v4
s_and_b32 s{sT3}, s{sWave}, 3
s_lshl_b32 s{sT2}, s{sT3}, 10
s_add_u32 s{sT2}, s{sT2}, {WS_WF + 16*1024}
""")
    for s in range(4):
        A(f"buffer_load_dwordx4 v[{X+4*s}:{X+4*s+3}], v4, s[{SO}:{SO+3}], 0 offen offset:{32*s}")
    for s in range(4):
        A(f"buffer_load_dwordx4 v[{D[0]+4*s}:{D[0]+4*s+3}], v1, s[{SW}:{SW+3}], s{sT2} offen")
        if s < 3: A(f"s_add_u32 s{sT2}, s{sT2}, 4096")
    A(f"""
s_lshl_b32 s{sT3}, s{sT3}, 5
v_add_u32 v5, s{sT3}, v2
v_lshlrev_b32 v6, 1, v5
global_load_ushort v7, v6, s[24:25]
STAMP 1
s_waitcnt vmcnt(12)
STAMP 2
""")
    A.label("B_ROUND")
    A(f"""
v_lshrrev_b32 v{vLim}, 16, v{vTbl}
v_subrev_u32 v{vLim}, s{sLo}, v{vLim}
v_min_i32 v{vLim}, s{sR}, v{vLim}
v_and_b32 v{vT}, 1, v{vTID}
v_lshlrev_b32 v{vT}, 2, v{vT}
v_sub_u32 v{vLim}, v{vLim}, v{vT}
v_and_b32 v{tmp}, 0xffff, v{vTbl}
v_add3_u32 v{tmp}, v{tmp}, v{vC25}, v{vT}
v_add_u32 v{tmp}, s{sLo}, v{tmp}
v_lshlrev_b32 v{tmp}, 2, v{tmp}
v_mov_b32 v{tmp2+1}, 0x7ffffff0
s_mov_b32 s{sT}, {WS_REC}
""")
    for g in range(4):
        A(f"v_cmp_lt_i32 vcc, {8*g}, v{vLim}")
        A(f"v_cndmask_b32 v{tmp2}, v{tmp2+1}, v{tmp}, vcc")
        A(f"buffer_load_dwordx4 v[{R+4*g}:{R+4*g+3}], v{tmp2}, s[{SW}:{SW+3}], s{sT} offen offset:{32*g}")
    A(f"s_cmp_eq_u32 s{sFirst}, 0")
    A(f"s_cbranch_scc1 B_NOTFIRST")
    A(f"""
s_waitcnt vmcnt(4)
v_lshlrev_b32 v7, 16, v7
v_mul_f32 v7, {f2u(SCALE):#x}, v7
""")
    for j in range(16): A(f"v_mov_b32 v{D[1]+j}, v7")
    for s in range(4):
        A(f"v_mfma_f32_32x32x16_bf16 v[{D[1]}:{D[1]+15}], v[{X+4*s}:{X+4*s+3}], v[{D[0]+4*s}:{D[0]+4*s+3}], v[{D[1]}:{D[1]+15}]")
    A(f"""
v_mul_u32_u24 v8, {QSTR}, v5
s_lshr_b32 s{sT}, s{sWave}, 2
s_lshl_b32 s{sT}, s{sT}, 6
v_lshl_add_u32 v8, v3, 3, v8
v_add_u32 v8, s{sT}, v8
""")
    for g in range(4):
        A(f"v_cvt_pk_bf16_f32 v{X+2*g}, v{D[1]+4*g}, v{D[1]+4*g+1}")
        A(f"v_cvt_pk_bf16_f32 v{X+2*g+1}, v{D[1]+4*g+2}, v{D[1]+4*g+3}")
    for g in range(2):
        A(f"ds_write_b64 v8, v[{X+2*g}:{X+2*g+1}] offset:{L_QT + 16*g}")
    A(f"s_cmp_ge_u32 s{sWave}, 4")
    A(f"s_cbranch_scc1 B_QDONE")
    for g in range(2, 4):
        A(f"ds_write_b64 v8, v[{X+2*g}:{X+2*g+1}] offset:{L_QT + 16*g}")
    A.label("B_QDONE")
    A(f"""
s_waitcnt lgkmcnt(0)
s_barrier
v_lshrrev_b32 v8, 16, v{vTbl}
v_mov_b32 v9, {L_FLAG}
ds_max_u32 v9, v8
v_lshlrev_b32 v1, 4, v{vLane}
v_add_u32 v1, {L_XB0}, v1
""")
    for u in range(16): A(f"ds_read_b128 v[{W+4*u}:{W+4*u+3}], v1 offset:{1024*u}")
    for c in range(4): A(f"ds_read_b128 v[{We+4*c}:{We+4*c+3}], v1 offset:{1024*(16+c)}")
    A(f"s_mov_b32 s{sFirst}, 0")
    A(f"s_branch B_COUNT")
    A.label("B_NOTFIRST")
    A("s_waitcnt lgkmcnt(0)")
    A("s_barrier")
    A.label("B_COUNT")
    A(f"v_mov_b32 v{vT}, 1")
    A("STAMP 3")
    A("s_waitcnt vmcnt(0)")
    A("STAMP 4")
    def count_body(g, i):
        j = 4 * g + i
        A(f"v_lshlrev_b32 v{A4+j}, 2, v{R+j}")
        A(f"v_and_b32 v{A4+j}, 0xfc, v{A4+j}")
        A(f"ds_add_rtn_u32 v{RK+j}, v{A4+j}, v{vT} offset:{L_CNT}")
    for j in range(16): A(f"v_mov_b32 v{A4+j}, 0")
    sort_slots(A, count_body, range(4), "B_COUNTED")
    A.label("B_COUNTED")
    A(f"""
s_mov_b64 exec, -1
s_waitcnt lgkmcnt(0)
s_barrier
STAMP 5
v_mov_b32 v{tmp2}, 0
ds_read_b32 v{tmp}, v{vN6} offset:{L_CNT}
ds_read_b32 v{tmp2}, v{tmp2} offset:{L_FLAG}
v_cmp_gt_u32 vcc, s{sNn}, v{vLane}
s_waitcnt lgkmcnt(0)
v_readfirstlane_b32 s{sMax}, v{tmp2}
v_add_u32 v{NT}, 3, v{tmp}
v_lshrrev_b32 v{NT}, 2, v{NT}
v_max_u32 v{NT}, 1, v{NT}
v_cndmask_b32 v{NT}, 0, v{NT}, vcc
v_mov_b32 v{NT+1}, v{NT}
""")
    wave_scan(A, NT + 1)
    A(f"""
v_readlane_b32 s{sTot}, v{NT+1}, 63
v_sub_u32 v{NT+4}, v{NT+1}, v{NT}
v_lshlrev_b32 v{NT+4}, 2, v{NT+4}
v_mov_b32 v{NT+5}, v{vOhp}
v_lshlrev_b32 v{NT+6}, 10, v{vLane}
s_cmp_gt_u32 s{sTot}, {CAPQ}
s_cbranch_scc1 B_OVERFLOW
s_and_saveexec_b64 s[48:49], vcc
v_add_u32 v{vdeg}, v{vdeg}, v{tmp}
v_lshlrev_b32 v{tmp}, 2, v{vN6}
ds_write_b96 v{tmp}, v[{NT+4}:{NT+6}] offset:{L_NTAB}
ds_write_b32 v{NT+4}, v{NT+6} offset:{L_QADDR}
s_mov_b64 exec, s[48:49]
v_mov_b32 v{vT}, {L_LIST}
s_waitcnt lgkmcnt(0)
""")
    def scatter_batch(groups, tag):
        for n, g in enumerate(groups):
            for i in range(4):
                j = 4 * g + i; t = NT + 4 * (4 * n + i)
                A(f"v_lshlrev_b32 v{tmp}, 2, v{A4+j}")
                A(f"ds_read_b96 v[{t}:{t+2}], v{tmp} offset:{L_NTAB}")
        A("s_waitcnt lgkmcnt(0)")
        def body(g, i):
            j = 4 * g + i; t = NT + 4 * (4 * groups.index(g) + i)
            A(f"v_add_u32 v{t}, v{t}, v{RK+j}")
            A(f"v_lshrrev_b32 v{tmp}, 18, v{R+j}")
            A(f"v_bfe_u32 v{tmp2}, v{R+j}, 6, 12")
            A(f"v_mad_u32_u24 v{t+3}, v{t}, 12, v{vT}")
            A(f"v_add_u32 v{tmp2}, v{vC25}, v{tmp2}")
            A(f"v_and_b32 v{t}, -4, v{t}")
            A(f"ds_write2_b32 v{t+3}, v{tmp}, v{t+1} offset0:0 offset1:1")
            A(f"ds_write_b32 v{t+3}, v{tmp2} offset:8")
            A(f"ds_write_b32 v{t}, v{t+2} offset:{L_QADDR}")
        sort_slots(A, body, groups, tag)
    scatter_batch([0, 1], "B_SC1")
    A.label("B_SC1")
    A(f"""
s_mov_b64 exec, -1
v_cmp_lt_i32 vcc, 16, v{vLim}
s_cbranch_vccz B_SC2
""")
    scatter_batch([2, 3], "B_SC2")
    A.label("B_SC2")
    A("s_mov_b64 exec, -1")
    A(f"""
s_add_u32 s{sT}, s{sTot}, 7
s_lshr_b32 s{sT}, s{sT}, 3
s_lshr_b32 s{sT2}, s{sT}, 3
s_and_b32 s{sT3}, s{sT}, 7
s_mul_i32 s{sT0}, s{sT2}, s{sWave}
s_min_u32 s{sN}, s{sWave}, s{sT3}
s_add_u32 s{sT0}, s{sT0}, s{sN}
s_cmp_lt_u32 s{sWave}, s{sT3}
s_cselect_b32 s{sN}, 1, 0
s_add_u32 s{sN}, s{sN}, s{sT2}
v_and_b32 v40, 31, v{vLane}
v_lshrrev_b32 v41, 5, v{vLane}
v_bfe_u32 v42, v{vLane}, 1, 3
v_lshlrev_b32 v43, 7, v40
v_add_u32 v43, s{sXB}, v43
""")
    for s in range(4):
        A(f"v_or_b32 v44, {2*s}, v41")
        A(f"v_xor_b32 v44, v44, v42")
        A(f"v_lshl_add_u32 v{xr[s]}, v44, 4, v43")
    A(f"""
v_lshlrev_b32 v{eAddr}, 4, v{vLane}
v_add_u32 v{eAddr}, s{sXB}, v{eAddr}
v_add_u32 v{eAddr}, 0x1000, v{eAddr}
v_mul_u32_u24 v{qbase}, {QSTR}, v40
v_lshl_add_u32 v{qbase}, v41, 4, v{qbase}
v_add_u32 v{qbase}, {L_QT}, v{qbase}
v_xor_b32 v{c1}, 1, v41
v_lshlrev_b32 v{c1}, 13, v{c1}
v_lshlrev_b32 v{lanecol}, 3, v40
v_and_b32 v44, 7, v{vLane}
v_lshrrev_b32 v45, 4, v{vLane}
v_xor_b32 v46, v44, v45
v_lshlrev_b32 v{xi[0]+1}, 4, v46
v_mov_b32 v{xi[2]+1}, v{xi[0]+1}
v_xor_b32 v46, 4, v46
v_lshlrev_b32 v{xi[1]+1}, 4, v46
v_mov_b32 v{xi[3]+1}, v{xi[1]+1}
v_lshlrev_b32 v{ei+1}, 4, v41
s_mul_i32 s{sT}, s{sT0}, {TB}
s_add_u32 s{sT}, s{sT}, {L_LIST}
v_bfe_u32 v44, v{vLane}, 3, 1
v_bfe_u32 v45, v{vLane}, 4, 1
v_lshlrev_b32 v46, 4, v41
v_lshl_add_u32 v46, v44, 2, v46
v_add_u32 v46, v46, v45
v_mul_u32_u24 v{aX}, 12, v46
v_add_u32 v{aX}, s{sT}, v{aX}
v_bfe_u32 v44, v{vLane}, 2, 1
v_lshlrev_b32 v46, 4, v44
v_bfe_u32 v44, v{vLane}, 4, 1
v_lshl_add_u32 v46, v44, 3, v46
v_and_b32 v44, 1, v{vLane}
v_lshl_add_u32 v46, v44, 2, v46
v_bfe_u32 v44, v{vLane}, 3, 1
v_lshl_add_u32 v46, v44, 1, v46
v_bfe_u32 v44, v{vLane}, 1, 1
v_add_u32 v46, v46, v44
v_mul_u32_u24 v46, 12, v46
v_add_u32 v46, s{sT}, v46
v_add_u32 v{aG}, 8, v46
v_lshl_add_u32 v{aO}, v41, 1, v46
v_add_u32 v{aO}, 4, v{aO}
s_lshl_b32 s{sT}, s{sT0}, 5
s_add_u32 s{sT}, s{sT}, {L_QADDR}
v_mov_b32 v{aN}, s{sT}
v_lshl_add_u32 v{aQ}, v41, 4, v{aN}
s_waitcnt lgkmcnt(0)
s_barrier
STAMP 6
s_cmp_eq_u32 s{sN}, 0
s_cbranch_scc1 B_LOOPEND
s_cmp_lg_u32 s{sMode}, 0
s_cbranch_scc1 B_SAFE
""")
    main_loop(A, True)
    A.label("B_SAFE")
    main_loop(A, False)
    A.label("B_LOOPEND")
    A(f"""
s_setprio 0
STAMP 8
s_waitcnt vmcnt(0) lgkmcnt(0)
s_barrier
STAMP 9
s_add_u32 s{sLo}, s{sLo}, s{sR}
s_cmp_ge_u32 s{sLo}, s{sMax}
s_cbranch_scc1 B_FINISH
""")
    fill_lists(A)
    A("s_branch B_ROUND")
    A.label("B_OVERFLOW")
    A(f"s_mov_b32 s{sR}, 8")
    A.label("B_RESTART")
    A(f"""
s_barrier
s_mov_b32 s{sLo}, 0
v_mov_b32 v{vdeg}, 0
v_mov_b32 v{chk}, 0
v_mov_b32 v{chk+1}, 0
""")
    fill_lists(A)
    zero_s(A)
    A("s_branch B_ROUND")
    A.label("B_FINISH")
    SB = L_LIST
    A(f"""
s_and_b32 s{sT}, s{sWave}, 1
s_lshl_b32 s{sT2}, s{sT}, 10
s_add_u32 s{sT2}, s{sT2}, {WS_WF + 36*1024}
v_lshlrev_b32 v1, 4, v{vLane}
""")
    for s in range(8):
        A(f"buffer_load_dwordx4 v[{W+4*s}:{W+4*s+3}], v1, s[{SW}:{SW+3}], s{sT2} offen")
        if s < 7: A(f"s_add_u32 s{sT2}, s{sT2}, 2048")
    A(f"""
v_lshrrev_b32 v3, 5, v{vLane}
s_lshl_b32 s{sT}, s{sT}, 6
v_lshlrev_b32 v4, 3, v3
v_add_u32 v4, s{sT}, v4
""")
    for g in range(4):
        A(f"global_load_dwordx2 v[{We+2*g}:{We+2*g+1}], v4, s[28:29] offset:{16*g}")
    A(f"""
v_mov_b32 v5, 0x71800000
v_cmp_nlt_f32 vcc, v{chk}, v5
v_cmp_nlt_f32 s[48:49], v{chk+1}, v5
s_or_b64 vcc, vcc, s[48:49]
v_lshlrev_b32 v6, 2, v{vLane}
ds_write_b32 v6, v{vdeg} offset:{L_DEG}
v_lshlrev_b32 v{tmp}, 4, v{vTID}
ds_read_b128 v[{E}:{E+3}], v{tmp} offset:{L_S}
ds_read_b128 v[{E+4}:{E+7}], v{tmp} offset:{L_S + 8192}
ds_read_b128 v[{E+8}:{E+11}], v{tmp} offset:{L_S + 16384}
ds_read_b128 v[{E+12}:{E+15}], v{tmp} offset:{L_S + 24576}
ds_read_b128 v[{D[0]}:{D[0]+3}], v{tmp} offset:{L_S + 32768}
v_lshrrev_b32 v7, 6, v{vTID}
v_mul_u32_u24 v7, {SBSTR}, v7
v_and_b32 v8, 63, v{vTID}
v_lshl_add_u32 v7, v8, 2, v7
v_add_u32 v7, {SB}, v7
v_mov_b32 v9, {f2u(1.0 / SCALE):#x}
v_mov_b32 v10, 0x7f800000
s_waitcnt lgkmcnt(0)
""")
    for j in range(10): A(f"v_cvt_f32_f64 v{D[1]+j}, v[{E+2*j}:{E+2*j+1}]")
    for j in range(10): A(f"v_mul_f32 v{D[1]+j}, v9, v{D[1]+j}")
    for j in range(10):
        A(f"v_cmp_nlt_f32 s[48:49], |v{D[1]+j}|, v10")
        A("s_or_b64 vcc, vcc, s[48:49]")
    for j in range(5):
        A(f"v_cvt_pk_bf16_f32 v{E+j}, v{D[1]+2*j}, v{D[1]+2*j+1}")
        A(f"ds_write_b32 v7, v{E+j} offset:{8*SBSTR*j}")
    A(f"""
s_mov_b64 exec, -1
s_cmp_eq_u64 vcc, 0
s_cbranch_scc1 B_NOFLAG
v_mov_b32 v5, {L_FLAG}
v_mov_b32 v6, 1
ds_write_b32 v5, v6 offset:4
""")
    A.label("B_NOFLAG")
    A(f"""
s_waitcnt lgkmcnt(0)
s_barrier
v_mov_b32 v5, {L_FLAG}
ds_read_b32 v6, v5 offset:4
s_waitcnt lgkmcnt(0)
v_readfirstlane_b32 s{sT}, v6
s_cmp_lg_u32 s{sMode}, 0
s_cbranch_scc1 B_OUT
s_cmp_eq_u32 s{sT}, 0
s_cbranch_scc1 B_OUT
s_mov_b32 s{sMode}, 1
s_waitcnt vmcnt(0)
s_barrier
s_branch B_START
""")
    A.label("B_OUT")
    A(f"""
s_cmp_ge_u32 s{sWave}, 4
s_cbranch_scc1 B_END
s_lshr_b32 s{sT}, s{sWave}, 1
s_lshl_b32 s{sT}, s{sT}, 5
v_and_b32 v2, 31, v{vLane}
v_add_u32 v2, s{sT}, v2
v_mul_u32_u24 v5, {SBSTR}, v2
v_lshl_add_u32 v5, v3, 4, v5
v_add_u32 v5, {SB}, v5
v_lshlrev_b32 v6, 2, v2
ds_read_b32 v7, v6 offset:{L_DEG}
""")
    for s in range(8):
        A(f"ds_read_b128 v[{X+4*s}:{X+4*s+3}], v5 offset:{32*s}")
    srd(A, SO, 30, N_NODES * 128)
    A("s_waitcnt vmcnt(0) lgkmcnt(0)")
    d = D[0]
    for s in range(8):
        A(f"v_mfma_f32_32x32x16_bf16 v[{d}:{d+15}], v[{W+4*s}:{W+4*s+3}], v[{X+4*s}:{X+4*s+3}], {'0' if s == 0 else f'v[{d}:{d+15}]'}")
    A(f"""
v_cvt_f32_u32 v7, v7
v_add_u32 v8, s{sStart}, v2
v_lshlrev_b32 v8, 7, v8
v_add_u32 v8, v8, v4
v_cmp_gt_u32 vcc, s{sNn}, v2
""")
    for g in range(4):
        A(f"v_lshlrev_b32 v{E+4*g}, 16, v{We+2*g}")
        A(f"v_and_b32 v{E+4*g+1}, 0xffff0000, v{We+2*g}")
        A(f"v_lshlrev_b32 v{E+4*g+2}, 16, v{We+2*g+1}")
        A(f"v_and_b32 v{E+4*g+3}, 0xffff0000, v{We+2*g+1}")
    for j in range(16):
        A(f"v_fma_f32 v{d+j}, v7, v{E+j}, v{d+j}")
    A("s_and_saveexec_b64 s[48:49], vcc")
    for g in range(4):
        A(f"v_cvt_pk_bf16_f32 v{E+2*g}, v{d+4*g}, v{d+4*g+1}")
        A(f"v_cvt_pk_bf16_f32 v{E+2*g+1}, v{d+4*g+2}, v{d+4*g+3}")
        A(f"buffer_store_dwordx2 v[{E+2*g}:{E+2*g+1}], v8, s[{SO}:{SO+3}], 0 offen offset:{16*g}")
    if OPT["stamps"]:
        A("s_waitcnt vmcnt(0)")
        A("STAMP 10")
        stamp_flush(A, 11, 26, 2, sWave, 1)
    A.label("B_END")
    A("s_endpgm")
    nops = A.pad()
    for tag in "FS":
        bad = A.check_loop(f"B_LOOP{tag}", f"s_cbranch_scc0 B_LOOP{tag}")
        assert not bad, bad
    return A, LDS_B

def descriptor(name, nv, ns):
    acc = (nv + 3) // 4 * 4
    return f""".amdhsa_kernel {name}
  .amdhsa_next_free_vgpr {nv}
  .amdhsa_next_free_sgpr {ns}
  .amdhsa_accum_offset {acc}
  .amdhsa_group_segment_fixed_size 0
  .amdhsa_kernarg_size 88
  .amdhsa_user_sgpr_count 2
  .amdhsa_user_sgpr_kernarg_segment_ptr 1
  .amdhsa_system_sgpr_workgroup_id_x 1
.end_amdhsa_kernel
"""

def main(path):
    a, la = kernel_a()
    b, lb = kernel_b()
    hdr = open("cdna_kernels/" + NAME + ".s.ref").read().split("; Override launch geometry")[0]
    s = hdr
    s += "; Two launches: a per-chunk bucket sort of the edges (plus weight fragments), then the per-bucket message pass.\n"
    s += f"; @launch kernel={KA} grid=({NB},1,1) block=(704,1,1) lds={la}\n"
    s += f"; @launch kernel={KB} grid=({NB},1,1) block=(512,1,1) lds={lb}\n"
    s += '.amdgcn_target "amdgcn-amd-amdhsa--gfx950"\n.text\n'
    for name, k in ((KA, a), (KB, b)):
        s += f".globl {name}\n.p2align 8\n.type {name},@function\n" + k.text()
    s += '.section .rodata,"a"\n.p2align 6\n' + descriptor(KA, 64, 96) + ".p2align 6\n" + descriptor(KB, NVGPR_B, 96)
    open(path, "w").write(s)

if __name__ == "__main__":
    main(OPT.get("out", "cdna_kernels/" + NAME + ".s"))
```

```python
import re

TRANS = ("v_exp_f32", "v_log_f32", "v_rcp_f32", "v_rsq_f32", "v_sqrt_f32", "v_sin_f32", "v_cos_f32")

def parse_regs(tok):
    tok = tok.strip()
    m = re.fullmatch(r"(-?\|?)([vs])\[(\d+):(\d+)\]\|?", tok)
    if m:
        return {(m.group(2), i) for i in range(int(m.group(3)), int(m.group(4)) + 1)}
    m = re.fullmatch(r"(-?\|?)([vs])(\d+)\|?", tok)
    if m:
        return {(m.group(2), int(m.group(3)))}
    if tok == "vcc":
        return {("s", "vcc")}
    if tok == "exec":
        return {("s", "exec")}
    if tok == "m0":
        return {("s", "m0")}
    return set()

class Ins:
    def __init__(self, text):
        self.text = text
        t = text.split(";")[0].strip()
        self.is_label = t.endswith(":")
        self.is_dir = t.startswith(".")
        self.mn = ""
        self.ops = []
        if not t or self.is_label or self.is_dir:
            self.kind = "none"; self.w = set(); self.r = set(); return
        parts = t.split(None, 1)
        self.mn = parts[0]
        rest = parts[1] if len(parts) > 1 else ""
        ops = []; depth = 0; cur = ""
        for ch in rest:
            if ch == "[": depth += 1
            if ch == "]": depth -= 1
            if ch == "," and depth == 0:
                ops.append(cur.strip()); cur = ""
            else:
                cur += ch
        if cur.strip(): ops.append(cur.strip())
        if ops:
            last = ops[-1].split()
            self.mods = " ".join(last[1:])
            ops[-1] = last[0]
        else:
            self.mods = ""
        self.ops = ops
        mn = self.mn
        R = [parse_regs(o) for o in ops]
        w = set(); r = set()
        self.dpp = "dpp" in mn or "row_" in self.mods or "wave_" in self.mods
        if mn.startswith("v_mfma"):
            self.kind = "mfma"; w = R[0]; r = R[1] | R[2] | R[3]
            self.srcc = R[3]; self.srcab = R[1] | R[2]
        elif mn.startswith("v_cmpx"):
            self.kind = "valu"; w = R[0] | {("s", "exec")}; r = set().union(*R[1:])
        elif mn.startswith("v_cmp"):
            self.kind = "valu"; w = R[0]; r = set().union(*R[1:])
        elif mn.startswith("v_readfirstlane") or mn.startswith("v_readlane"):
            self.kind = "valu"; w = R[0]; r = set().union(*R[1:])
        elif mn.startswith("v_permlane"):
            self.kind = "valu"; w = R[0] | R[1]; r = R[0] | R[1]
        elif mn.startswith("v_"):
            self.kind = "valu"; w = set(R[0]); r = set().union(*R[1:]) if len(R) > 1 else set()
            if "_co_" in mn:
                w |= R[1]; r = set().union(*R[2:])
            if mn.startswith("v_fmac") or mn.startswith("v_pk_fmac") or self.dpp:
                r |= R[0]
            if mn.startswith("v_cndmask") and len(ops) == 3:
                r |= {("s", "vcc")}
        elif mn.startswith("ds_"):
            self.kind = "ds"
            if mn.startswith("ds_read") or "_rtn" in mn or mn.startswith("ds_bpermute") or mn.startswith("ds_swizzle"):
                w = R[0]; r = set().union(*R[1:]) if len(R) > 1 else set()
            else:
                r = set().union(*R)
        elif mn.startswith("buffer_") or mn.startswith("global_"):
            self.kind = "vmem"
            allmods = self.mods
            self.lds = (" lds" in (" " + allmods)) or "_lds_" in mn
            if "store" in mn or "atomic" in mn:
                r = set().union(*R)
            elif self.lds:
                r = set().union(*R) | {("s", "m0")}
            else:
                w = R[0]; r = set().union(*R[1:])
        elif mn.startswith("s_"):
            self.kind = "salu"
            if mn.startswith(("s_cmp", "s_waitcnt", "s_barrier", "s_nop", "s_branch", "s_cbranch", "s_endpgm", "s_setprio", "s_sleep")):
                r = set().union(*R) if R else set()
            else:
                w = R[0] if R else set(); r = set().union(*R[1:]) if len(R) > 1 else set()
                if "saveexec" in mn:
                    w |= {("s", "exec")}; r |= {("s", "exec")}
        else:
            raise ValueError("unknown instruction: " + text)
        self.w = w; self.r = r
        self.states = 1
        if mn == "s_nop":
            self.states = int(ops[0], 0) + 1

def vonly(s): return {x for x in s if x[0] == "v"}
def sonly(s): return {x for x in s if x[0] == "s"}

def need(prod, cons):
    n = 0
    pk, ck = prod.kind, cons.kind
    pw = prod.w
    if pk == "valu":
        if ck == "mfma" and vonly(pw) & cons.r: n = max(n, 2)
        if ck == "valu":
            if prod.mn in TRANS and cons.mn not in TRANS and (vonly(pw) & (cons.r)): n = max(n, 1)
            if cons.dpp and vonly(pw) & cons.r: n = max(n, 2)
            if cons.mn.startswith(("v_readfirstlane", "v_readlane")) and vonly(pw) & cons.r: n = max(n, 1)
            if cons.mn.startswith("v_permlane") and vonly(pw) & cons.r: n = max(n, 2)
            sw = sonly(pw) - {("s", "exec")}
            if sw & cons.r: n = max(n, 4 if cons.mn.startswith(("v_readlane", "v_writelane")) else 2)
            if ("s", "exec") in pw:
                if cons.dpp: n = max(n, 5)
                if cons.mn.startswith(("v_readlane", "v_readfirstlane", "v_writelane", "v_permlane")): n = max(n, 4)
                if ("s", "exec") in cons.r: n = max(n, 2)
        if ck == "mfma" and ("s", "exec") in pw: n = max(n, 4)
        if ck == "vmem" and (sonly(pw) - {("s", "exec")}) & cons.r: n = max(n, 5)
        if ck == "salu" and (sonly(pw) - {("s", "exec")}) & cons.r: n = max(n, 1)
    if pk == "mfma":
        big = "32x32" in prod.mn
        raw = 12 if big else 8
        if ck == "valu" and (pw & (cons.r | cons.w)): n = max(n, raw)
        if ck in ("ds", "vmem") and (pw & (cons.r | cons.w)): n = max(n, raw)
        if ck == "mfma":
            if pw & cons.srcab: n = max(n, raw)
            if pw & cons.srcc and cons.srcc != pw: n = max(n, 10 if big else 6)
        if ck == "valu" and (prod.srcc & cons.w): n = max(n, 7 if big else 3)
    if pk == "salu" and ("s", "m0") in pw and ck == "vmem" and cons.lds: n = max(n, 1)
    if pk == "vmem" and "store" in prod.mn and ("x4" in prod.mn or "x3" in prod.mn):
        if ck == "valu" and vonly(prod.r) & cons.w: n = max(n, 2)
    return n

class Asm:
    def __init__(self, stamps=False):
        self.ins = []
        self.stamps = stamps
    def __call__(self, text):
        for line in text.strip("\n").split("\n"):
            t = line.strip()
            if t.startswith("CSTAMP"):
                if self.stamps:
                    i = int(t.split()[1])
                    self.ins.append(Ins(f"s_memtime s[{64+2*i}:{65+2*i}]"))
                continue
            if t.startswith("STAMP"):
                if self.stamps:
                    i = int(t.split()[1])
                    self.ins.append(Ins(f"s_memrealtime s[{64+2*i}:{65+2*i}]"))
                continue
            if t:
                self.ins.append(Ins(t))
    def label(self, name):
        self.ins.append(Ins(name + ":"))
    def pad(self, window=24):
        out = []; added = 0
        for c in self.ins:
            if c.kind != "none":
                dist = 0; worst = 0
                for p in reversed(out[-window * 2:]):
                    if p.kind == "none": continue
                    nd = need(p, c)
                    if nd > dist: worst = max(worst, nd - dist)
                    dist += p.states
                    if dist >= 16: break
                while worst > 0:
                    k = min(worst, 16)
                    out.append(Ins(f"s_nop {k - 1}")); worst -= k; added += 1
            out.append(c)
        self.ins = out
        return added
    def check_loop(self, start_label, end_branch_text):
        names = [i.text for i in self.ins]
        a = names.index(start_label + ":")
        b = max(i for i, t in enumerate(names) if t.startswith(end_branch_text))
        body = [i for i in self.ins[a:b + 1] if i.kind != "none"]
        seq = body + body
        bad = []
        for ci in range(len(body), min(len(seq), len(body) + 40)):
            c = seq[ci]; dist = 0
            for pi in range(ci - 1, max(-1, ci - 40), -1):
                p = seq[pi]
                nd = need(p, c)
                if nd > dist: bad.append((p.text, c.text, nd, dist))
                dist += p.states
                if dist >= 16: break
        return bad
    def text(self):
        o = []
        for i in self.ins:
            if i.is_label or i.is_dir: o.append(i.text)
            else: o.append("    " + i.text)
        return "\n".join(o) + "\n"
```

```python
import sys
from asmlib import Asm

NAME = "gather_scatter__edge_featured_mpnn_mpnn__graph"
KA = "gs_sort_kernel"
KB = NAME + "_kernel"

N_NODES = 10000; N_EDGES = 640000; NB = 256; CH = 2500
WS_TBL = 0; WS_REC = 262144; WS_WF = WS_REC + N_EDGES * 4; WS_END = WS_WF + 52 * 1024
assert WS_WF % 4096 == 0
BF_ONE = 0x3F80
SCALE = -1.4426950408889634
import struct
def f2u(x): return struct.unpack("<I", struct.pack("<f", x))[0]

OPT = dict(debug=False, prio=True, stamps=False, noadd=False, nodma=False, nomfma=False, novalu=False, nolds=False)
for a in sys.argv[1:]:
    if "=" in a:
        k, v = a.split("="); OPT[k] = eval(v)

def srd(A, d, base, size, stride=0):
    A(f"s_mov_b32 s{d}, s{base}")
    A(f"s_and_b32 s{d+1}, s{base+1}, 0xffff")
    if stride: A(f"s_or_b32 s{d+1}, s{d+1}, {stride << 16:#x}")
    A(f"s_mov_b32 s{d+2}, {size}")
    A(f"s_mov_b32 s{d+3}, 0x20000")

WS_STAMP = 8 << 20
def stamp_flush(A, n, wsbase, wg, wave, region):
    if not OPT["stamps"]: return
    A("s_waitcnt lgkmcnt(0)")
    A("s_mov_b64 exec, -1")
    A(f"s_lshl_b32 s60, s{wg}, 4")
    A(f"s_add_u32 s60, s60, s{wave}")
    A(f"s_lshl_b32 s60, s60, 6")
    A(f"s_add_u32 s60, s60, {WS_STAMP + region * (1 << 20)}")
    A(f"s_add_u32 s62, s{wsbase}, s60")
    A(f"s_addc_u32 s63, s{wsbase+1}, 0")
    A("v_mov_b32 v1, 0")
    for i in range(n):
        A(f"v_mov_b32 v2, s{64+2*i}")
        A(f"global_store_dword v1, v2, s[62:63] offset:{4*i}")
    A("s_waitcnt vmcnt(0)")

def wave_scan(A, v):
    for sh in (1, 2, 4, 8):
        A(f"v_add_u32_dpp v{v}, v{v}, v{v} row_shr:{sh} row_mask:0xf bank_mask:0xf")
    A(f"v_add_u32_dpp v{v}, v{v}, v{v} row_bcast:15 row_mask:0xa bank_mask:0xf")
    A(f"v_add_u32_dpp v{v}, v{v}, v{v} row_bcast:31 row_mask:0xc bank_mask:0xf")

def kernel_a():
    A = Asm(OPT["stamps"])
    LH, LB, LS = 0, 1024, 2048
    A.label(KA)
    A(f"""
s_cmp_ge_u32 s2, {NB}
s_cbranch_scc1 A_END
STAMP 0
s_load_dwordx4 s[4:7], s[0:1], 16
s_load_dwordx2 s[8:9], s[0:1], 80
s_load_dwordx2 s[10:11], s[0:1], 32
s_load_dwordx2 s[28:29], s[0:1], 48
v_lshrrev_b32 v1, 6, v0
v_readfirstlane_b32 s3, v1
s_cmp_eq_u32 s3, 10
s_cbranch_scc1 A_PREP
v_lshlrev_b32 v2, 2, v0
v_mov_b32 v3, 0
s_cmp_ge_u32 s3, 4
s_cbranch_scc1 A_NOZ
ds_write_b32 v2, v3 offset:{LH}
""")
    A.label("A_NOZ")
    A(f"""
s_mul_i32 s24, s2, {CH * 4}
v_lshlrev_b32 v2, 4, v0
v_cmp_gt_u32 vcc, {CH // 4}, v0
s_waitcnt lgkmcnt(0)
""")
    srd(A, 12, 4, N_EDGES * 4)
    srd(A, 16, 6, N_EDGES * 4)
    srd(A, 20, 8, WS_END)
    A(f"""
s_and_saveexec_b64 s[26:27], vcc
s_mov_b64 s[30:31], exec
buffer_load_dwordx4 v[4:7], v2, s[16:19], s24 offen
buffer_load_dwordx4 v[8:11], v2, s[12:15], s24 offen
s_barrier
v_lshlrev_b32 v12, 8, v0
v_add_u32 v13, 64, v12
v_add_u32 v14, 0x80, v12
v_add_u32 v15, 0xc0, v12
v_mov_b32 v16, 1
s_mov_b32 s25, 429497
STAMP 1
s_waitcnt vmcnt(1)
STAMP 2
""")
    for i in range(4):
        A(f"v_mul_u32_u24 v{20+i}, s25, v{4+i}")
    for i in range(4):
        A(f"v_lshrrev_b32 v{20+i}, 22, v{20+i}")
    for i in range(4):
        A(f"v_and_b32 v{20+i}, 0x3fc, v{20+i}")
        A(f"ds_add_rtn_u32 v{24+i}, v{20+i}, v16 offset:{LH}")
    A("s_waitcnt vmcnt(0)")
    for i in range(4):
        A(f"v_and_or_b32 v{28+i}, v{4+i}, 63, v{12+i}")
    for i in range(4):
        A(f"v_lshl_or_b32 v{28+i}, v{8+i}, 18, v{28+i}")
    A(f"""
s_waitcnt lgkmcnt(0)
s_barrier
STAMP 3
s_mov_b64 exec, -1
v_and_b32 v32, 63, v0
v_lshlrev_b32 v33, 4, v32
ds_read_b128 v[36:39], v33 offset:{LH}
s_waitcnt lgkmcnt(0)
v_add_u32 v40, v36, v37
v_add_u32 v41, v40, v38
v_add_u32 v42, v41, v39
v_mov_b32 v43, v42
""")
    wave_scan(A, 43)
    A(f"""
v_sub_u32 v44, v43, v42
v_add_u32 v45, v44, v36
v_add_u32 v46, v44, v40
v_add_u32 v47, v44, v41
ds_write_b128 v33, v[44:47] offset:{LB}
s_cmp_lg_u32 s3, 0
s_cbranch_scc1 A_NOTBL
v_lshl_or_b32 v48, v36, 16, v44
v_lshl_or_b32 v49, v37, 16, v45
v_lshl_or_b32 v50, v38, 16, v46
v_lshl_or_b32 v51, v39, 16, v47
s_lshl_b32 s32, s2, 10
s_add_u32 s32, s32, {WS_TBL}
buffer_store_dwordx4 v[48:51], v33, s[20:23], s32 offen
""")
    A.label("A_NOTBL")
    A("s_waitcnt lgkmcnt(0)")
    A("s_mov_b64 exec, s[30:31]")
    for i in range(4):
        A(f"ds_read_b32 v{52+i}, v{20+i} offset:{LB}")
    for i in range(4):
        A(f"s_waitcnt lgkmcnt({3-i})")
        A(f"v_add_lshl_u32 v{52+i}, v{52+i}, v{24+i}, 2")
        A(f"ds_write_b32 v{52+i}, v{28+i} offset:{LS}")
    A(f"""
s_waitcnt lgkmcnt(0)
s_barrier
STAMP 4
ds_read_b128 v[4:7], v2 offset:{LS}
s_add_u32 s33, s24, {WS_REC}
s_waitcnt lgkmcnt(0)
buffer_store_dwordx4 v[4:7], v2, s[20:23], s33 offen
""")
    if OPT["stamps"]:
        A("s_waitcnt vmcnt(0)")
        A("STAMP 5")
        stamp_flush(A, 6, 8, 2, 3, 0)
    A("s_endpgm")
    A.label("A_PREP")
    A(f"""
v_and_b32 v1, 63, v0
s_mul_i32 s12, s2, 52
v_add_u32 v2, s12, v1
v_cmp_gt_u32 vcc, 52, v1
s_and_saveexec_b64 s[26:27], vcc
v_lshrrev_b32 v3, 8, v2
v_bfe_u32 v4, v2, 2, 6
v_and_b32 v5, 3, v2
v_and_b32 v6, 31, v4
v_lshrrev_b32 v7, 5, v4
v_lshlrev_b32 v8, 3, v7
v_lshl_add_u32 v8, v5, 1, v8
v_lshrrev_b32 v9, 2, v3
v_lshl_add_u32 v9, v9, 4, v8
v_and_b32 v10, 3, v3
v_lshl_add_u32 v10, v10, 5, v6
v_lshlrev_b32 v9, 8, v9
v_lshl_add_u32 v9, v10, 1, v9
v_subrev_u32 v11, 36, v3
v_lshrrev_b32 v12, 1, v11
v_lshl_add_u32 v12, v12, 4, v8
v_and_b32 v13, 1, v11
v_lshl_add_u32 v13, v13, 5, v6
v_lshlrev_b32 v12, 7, v12
v_lshl_add_u32 v12, v13, 1, v12
v_cmp_gt_u32 vcc, 36, v3
v_mov_b32 v14, 0x7ffffff0
v_mov_b32 v15, 1.0
v_mov_b32 v16, {f2u(SCALE):#x}
v_cndmask_b32 v9, v14, v9, vcc
v_cndmask_b32 v12, v12, v14, vcc
v_cndmask_b32 v15, v15, v16, vcc
s_waitcnt lgkmcnt(0)
""")
    srd(A, 12, 10, 144 * 128 * 2)
    srd(A, 16, 28, 128 * 64 * 2)
    srd(A, 20, 8, WS_END)
    A(f"""
buffer_load_ushort v20, v9, s[12:15], 0 offen
buffer_load_ushort v21, v9, s[12:15], 0 offen offset:256
buffer_load_ushort v22, v12, s[16:19], 0 offen
buffer_load_ushort v23, v12, s[16:19], 0 offen offset:128
v_lshlrev_b32 v2, 2, v2
s_mov_b32 s32, {WS_WF}
s_waitcnt vmcnt(0)
v_or_b32 v20, v20, v22
v_or_b32 v21, v21, v23
v_lshlrev_b32 v20, 16, v20
v_lshlrev_b32 v21, 16, v21
v_mul_f32 v20, v15, v20
v_mul_f32 v21, v15, v21
v_cvt_pk_bf16_f32 v20, v20, v21
buffer_store_dword v20, v2, s[20:23], s32 offen
""")
    A.label("A_END")
    A("s_endpgm")
    A.pad()
    return A, 12288

L_S = 0; L_CNT = 40960; L_NTAB = 41216; L_DEG = 42240; L_FLAG = 42496; L_QT = 42752
L_QADDR = 57088; L_QEND = 60416; L_OHT = 65408; L_OHZ = 65536; L_XB0 = 65792; L_LIST = L_XB0 + 8 * 6144
LDS_B = L_LIST + 40960
QSTR = 112; CAPQ = 768; SBSTR = 272
TB = 384

vTID = 0
aX, aG, aO, aQ, aN = 1, 2, 3, 4, 5
xr = [6, 7, 8, 9]; eAddr = 10; vQ = 11; qbase = 12; c1 = 13; lanecol = 14; ohaddr = 15
xi = [16, 18, 20, 22]; ei = 24; node0 = 26; tmp = 27; chk = 28; tmp2 = 30
qa = [32, 36]
E = 40; D = [56, 72]; X = 88; Ea = 104; OH = 108; Qx = 112; We = 128; W = 144
vTbl = 208; vdeg = 209; vLane = 210; vN6 = 211; vOhp = 212; vC25 = 213; vLim = 214; vT = 215
TU = [216, 224]; F64 = 232
NVGPR_B = 240
R = 40; RK = 56; A4 = 72; NT = 88

sB = 2; SX = 4; SE = 8; SW = 12; SO = 16
sWave = 32; sStart = 33; sNn = 34; sS6 = 35; sXB = 36; sN = 37; sT0 = 38; sMode = 39
sR = 40; sLo = 41; sMax = 42; sFirst = 43; sTot = 44; sT = 45; sT2 = 46; sT3 = 47

def fill_lists(A):
    A(f"v_lshlrev_b32 v{tmp}, 4, v{vTID}")
    A(f"v_add_u32 v{tmp2}, {L_LIST}, v{tmp}")
    for i in range(4): A(f"v_mov_b32 v{E+i}, -1")
    for i in range(4): A(f"v_mov_b32 v{E+4+i}, 0")
    for j in range(5):
        A(f"ds_write_b128 v{tmp2}, v[{E}:{E+3}] offset:{8192*j}")
    A(f"v_cmp_gt_u32 vcc, {(L_QEND - L_QADDR) // 16}, v{vTID}")
    A(f"s_and_saveexec_b64 s[48:49], vcc")
    A(f"ds_write_b128 v{tmp}, v[{E+4}:{E+7}] offset:{L_QADDR}")
    A(f"v_cmp_gt_u32 vcc, 16, v{vTID}")
    A(f"s_and_b64 exec, exec, vcc")
    A(f"ds_write_b128 v{tmp}, v[{E+4}:{E+7}] offset:{L_CNT}")
    A(f"s_mov_b64 exec, s[48:49]")

def zero_s(A):
    for j in range(5):
        A(f"ds_write_b128 v{tmp}, v[{E+4}:{E+7}] offset:{L_S + 8192*j}")

def silu_list(d, fast):
    e = E
    p = lambda r: f"v[{r}:{r+1}]"
    L = []
    for j in range(16): L.append(f"v_exp_f32 v{e+j}, v{d+j}")
    if fast:
        for o in (0, 8):
            L.append(f"v_pk_add_f32 {p(e+o+2)}, {p(e+o+2)}, 1.0 op_sel_hi:[1,0]")
            L.append(f"v_pk_add_f32 {p(e+o+6)}, {p(e+o+6)}, 1.0 op_sel_hi:[1,0]")
        for o in (0, 8):
            L.append(f"v_pk_fma_f32 {p(d+o)}, {p(d+o)}, {p(e+o+2)}, {p(d+o+2)}")
            L.append(f"v_pk_fma_f32 {p(d+o+4)}, {p(d+o+4)}, {p(e+o+6)}, {p(d+o+6)}")
        for o in (0, 8):
            L.append(f"v_pk_fma_f32 {p(d+o)}, {p(d+o+2)}, {p(e+o)}, {p(d+o)}")
            L.append(f"v_pk_fma_f32 {p(d+o+4)}, {p(d+o+6)}, {p(e+o+4)}, {p(d+o+4)}")
        for o in (0, 8):
            L.append(f"v_pk_fma_f32 {p(e+o)}, {p(e+o)}, {p(e+o+2)}, {p(e+o+2)}")
            L.append(f"v_pk_fma_f32 {p(e+o+4)}, {p(e+o+4)}, {p(e+o+6)}, {p(e+o+6)}")
        for o in (0, 8):
            L.append(f"v_pk_mul_f32 {p(e+o+2)}, {p(e+o)}, {p(e+o+4)}")
        for o in (0, 8):
            L.append(f"v_pk_mul_f32 {p(d+o)}, {p(d+o)}, {p(e+o+4)}")
        for o in (0, 8):
            L.append(f"v_rcp_f32 v{e+o+6}, v{e+o+2}")
            L.append(f"v_rcp_f32 v{e+o+7}, v{e+o+3}")
        for o in (0, 8):
            L.append(f"v_pk_fma_f32 {p(d+o)}, {p(d+o+4)}, {p(e+o)}, {p(d+o)}")
        for o in (0, 8):
            L.append(f"v_pk_add_f32 {p(chk)}, {p(chk)}, {p(e+o+2)}")
        for o in (0, 8):
            L.append(f"v_pk_mul_f32 {p(d+o)}, {p(d+o)}, {p(e+o+6)}")
    else:
        for j in range(0, 16, 2):
            L.append(f"v_pk_add_f32 {p(e+j)}, {p(e+j)}, 1.0 op_sel_hi:[1,0]")
        for j in range(16): L.append(f"v_rcp_f32 v{e+j}, v{e+j}")
        for j in range(0, 16, 2):
            L.append(f"v_pk_mul_f32 {p(d+j)}, {p(d+j)}, {p(e+j)}")
        for o in (0, 8):
            L.append(f"v_pk_add_f32 {p(d+o)}, {p(d+o)}, {p(d+o+2)}")
            L.append(f"v_pk_add_f32 {p(d+o+4)}, {p(d+o+4)}, {p(d+o+6)}")
        for o in (0, 8):
            L.append(f"v_pk_add_f32 {p(d+o)}, {p(d+o)}, {p(d+o+4)}")
    return L

def chain(c, d):
    q = lambda r: f"v[{r}:{r+3}]"
    dd = f"v[{d}:{d+15}]"
    M = []
    for s in range(4):
        M.append(f"v_mfma_f32_32x32x16_bf16 {dd}, {q(X+4*s)}, {q(W+16*s+4*c)}, {'0' if s == 0 else dd}")
    M.append(f"v_mfma_f32_32x32x16_bf16 {dd}, {q(Ea)}, {q(We+4*c)}, {dd}")
    M.append(f"v_mfma_f32_32x32x16_bf16 {dd}, {q(OH)}, {q(Qx+4*c)}, {dd}")
    return M

XOFF = (0, 24, 96, 120)
def dma_x(A, k):
    for i in range(4):
        A(f"s_add_u32 m0, s{sXB}, {1024*i}")
        A(f"s_nop 0")
        A(f"buffer_load_dwordx4 v[{xi[i]}:{xi[i]+1}], s[{SX}:{SX+3}], 0 idxen offen lds")
def dma_e(A, slot):
    A(f"s_add_u32 m0, s{sXB}, {4096 + 1024*slot}")
    A(f"s_nop 0")
    A(f"buffer_load_dwordx4 v[{ei}:{ei+1}], s[{SE}:{SE+3}], 0 idxen offen lds")
def read_xidx(k): return [f"ds_read_b32 v{xi[i]}, v{aX} offset:{TB*k + 12*[0,2,8,10][i]}" for i in range(4)]
def read_eidx(k): return [f"ds_read_b32 v{ei}, v{aG} offset:{TB*k}"]
def read_a(eslot):
    L = [f"ds_read_b128 v[{X+4*s}:{X+4*s+3}], v{xr[s]}" for s in range(4)]
    L.append(f"ds_read_b128 v[{Ea}:{Ea+3}], v{eAddr} offset:{1024*eslot}")
    L.append(f"ds_read_b128 v[{OH}:{OH+3}], v{ohaddr} offset:1")
    return L
def read_q(c): return f"ds_read_b128 v[{Qx+4*c}:{Qx+4*c+3}], v{vQ} offset:{32*QSTR*c}"
def calc_vq():
    return [f"v_add_u32 v{tmp}, v{node0}, v{c1}", f"v_lshrrev_b32 v{tmp}, 14, v{tmp}",
            f"v_lshl_add_u32 v{vQ}, v{tmp}, 5, v{qbase}"]
def read_meta(k, par):
    return [f"ds_read_b128 v[{qa[par]}:{qa[par]+3}], v{aQ} offset:{32*k}",
            f"ds_read_b32 v{node0}, v{aN} offset:{32*k}",
            f"ds_read_u16 v{ohaddr}, v{aO} offset:{TB*k}"]

def pk_list(d, c):
    e = E; p = lambda r: f"v[{r}:{r+1}]"
    T = TU[c & 1]; U = T + 4; Tp = TU[(c + 1) & 1]; Up = Tp + 4
    L = []
    for o, j in ((0, 0), (8, 2)):
        L.append(f"v_pk_mul_f32 {p(Up+j)}, {p(Up+j)}, {p(Tp+j)}")
    for o in (0, 8):
        L.append(f"v_pk_add_f32 {p(e+o+2)}, {p(e+o+2)}, 1.0 op_sel_hi:[1,0]")
        L.append(f"v_pk_add_f32 {p(e+o+6)}, {p(e+o+6)}, 1.0 op_sel_hi:[1,0]")
    for o in (0, 8):
        L.append(f"v_pk_fma_f32 {p(d+o)}, {p(d+o)}, {p(e+o+2)}, {p(d+o+2)}")
        L.append(f"v_pk_fma_f32 {p(d+o+4)}, {p(d+o+4)}, {p(e+o+6)}, {p(d+o+6)}")
    for o in (0, 8):
        L.append(f"v_pk_fma_f32 {p(d+o)}, {p(d+o+2)}, {p(e+o)}, {p(d+o)}")
        L.append(f"v_pk_fma_f32 {p(d+o+4)}, {p(d+o+6)}, {p(e+o+4)}, {p(d+o+4)}")
    for o in (0, 8):
        L.append(f"v_pk_fma_f32 {p(e+o)}, {p(e+o)}, {p(e+o+2)}, {p(e+o+2)}")
        L.append(f"v_pk_fma_f32 {p(e+o+4)}, {p(e+o+4)}, {p(e+o+6)}, {p(e+o+6)}")
    for o, j in ((0, 0), (8, 2)):
        L.append(f"v_pk_mul_f32 {p(T+j)}, {p(e+o)}, {p(e+o+4)}")
    for o in (0, 8):
        L.append(f"v_pk_mul_f32 {p(d+o)}, {p(d+o)}, {p(e+o+4)}")
    for o, j in ((0, 0), (8, 2)):
        L.append(f"v_pk_fma_f32 {p(U+j)}, {p(d+o+4)}, {p(e+o)}, {p(d+o)}")
    for j in (0, 2):
        L.append(f"v_pk_add_f32 {p(chk)}, {p(chk)}, {p(T+j)}")
    return L

def flush_q(c, q):
    U = TU[c & 1] + 4
    cv = [f"v_cvt_f64_f32 v[{F64+2*j}:{F64+2*j+1}], v{U+j}" for j in range(4)]
    ad = [f"ds_add_f64 v{q+j}, v[{F64+2*j}:{F64+2*j+1}] offset:{256*(c & 3)}" for j in range(4)]
    return cv, ad

def tile_iter_fast(A, par):
    k = par
    for ph in range(4):
        d = D[ph & 1]; dn = D[(ph + 1) & 1]
        M = chain((ph + 1) & 3, dn)
        Tp = TU[(ph + 1) & 1]
        tr = [f"v_rcp_f32 v{Tp+j}, v{Tp+j}" for j in range(4)] + [f"v_exp_f32 v{E+j}, v{d+j}" for j in range(16)]
        cv, ad = flush_q(ph + 2, qa[par] if ph >= 2 else qa[1 - par])
        extra = {i: [] for i in range(7)}
        pre = []
        if ph == 0:
            extra[0] += read_meta(k + 1, 1 - par)[1:]
        if ph == 1:
            pre += ["s_waitcnt lgkmcnt(4)"]
            extra[0] += calc_vq()
            extra[1] += [read_q(0), read_q(1)]
            extra[2] += read_xidx(k + 2) + read_eidx(k + 3)
        if ph == 2:
            extra[0] += [read_q(2), read_meta(k + 1, 1 - par)[0]]
            extra[5] += ["s_waitcnt vmcnt(1)"] + read_a(1 - par)
        if ph == 3:
            pre += ["s_waitcnt lgkmcnt(4)", "DMA"]
            extra[1] += [read_q(3)]
            extra[2] += [f"v_add_u32 v{qa[1-par]+j}, v{qa[1-par]+j}, v{lanecol}" for j in range(4)]
        for x in pre:
            if x == "DMA":
                if not OPT["nodma"]:
                    dma_x(A, k + 2); dma_e(A, 1 - par)
            else: A(x)
        ti = 0
        for m in range(6):
            if not OPT["nomfma"]: A(M[m])
            if m == 5 and ph == 2:
                for x in extra[5]: A(x)
            n = 3 if m < 5 else 5
            for x in tr[ti:ti + n]:
                if not OPT["novalu"]: A(x)
            ti += n
            if not (m == 5 and ph == 2):
                for x in extra[m]: A(x)
        for x in cv: A(x)
        for x in ad:
            if not OPT["noadd"]: A(x)
            else: A(f"ds_read_b32 v{tmp2}, v{tmp2+1}")
        if not OPT["novalu"]:
            for x in pk_list(d, ph): A(x)

def drain_fast(A, par):
    p = lambda r: f"v[{r}:{r+1}]"
    cv, ad = flush_q(2, qa[par])
    T = TU[1]; U = T + 4
    for j in range(4): A(f"v_rcp_f32 v{T+j}, v{T+j}")
    for x in cv + ad: A(x)
    for j in (0, 2): A(f"v_pk_mul_f32 {p(U+j)}, {p(U+j)}, {p(T+j)}")
    cv, ad = flush_q(3, qa[par])
    for x in cv + ad: A(x)

def tile_iter(A, par, fast):
    k = par
    mpos = [1, 5, 9, 13, 19, 27] if fast else [1, 5, 9, 13, 19, 27]
    for ph in range(4):
        d = D[ph & 1]; dn = D[(ph + 1) & 1]
        V = silu_list(d, fast)
        M = chain((ph + 1) & 3, dn)
        ins = {}
        def at(i, items): ins.setdefault(i, []).extend(items)
        if ph == 0:
            at(2, read_meta(k + 1, 1 - par))
        if ph == 1:
            at(-1, ["s_waitcnt lgkmcnt(4)"])
            at(2, calc_vq())
            at(3, [f"v_add_u32 v{qa[1-par]+j}, v{qa[1-par]+j}, v{lanecol}" for j in range(4)])
            at(6, [read_q(0), read_q(1)])
            at(10, read_xidx(k + 2) + read_eidx(k + 3))
        if ph == 2:
            at(0, [read_q(2)])
        if ph == 3:
            at(7, [read_q(3)])
        for i, x in enumerate(ins.get(-1, [])): A(x)
        mi = 0
        for i, v in enumerate(V):
            if not OPT["novalu"]: A(v)
            for x in ins.get(i, []): A(x)
            if mi < 6 and mpos[mi] == i:
                if ph == 3 and mi == 0:
                    A("s_waitcnt lgkmcnt(4)")
                    if not OPT["nodma"]:
                        dma_x(A, k + 2)
                        dma_e(A, 1 - par)
                if not OPT["nomfma"]: A(M[mi])
                mi += 1
                if ph == 2 and mi == 6:
                    A("s_waitcnt vmcnt(1)")
                    for x in read_a(1 - par): A(x)
        q = qa[par]
        for j, (r, t) in enumerate(((d, d + 2), (d + 1, d + 4), (d + 8, d + 10), (d + 9, d + 12))):
            A(f"v_cvt_f64_f32 v[{t}:{t+1}], v{r}")
        for j, (r, t) in enumerate(((d, d + 2), (d + 1, d + 4), (d + 8, d + 10), (d + 9, d + 12))):
            if not OPT["noadd"]: A(f"ds_add_f64 v{q+j}, v[{t}:{t+1}] offset:{256*ph}")
            else: A(f"ds_read_b32 v{tmp2}, v{q+j}")

def main_loop(A, fast):
    tag = "F" if fast else "S"
    for x in read_xidx(0) + read_eidx(0): A(x)
    for x in read_meta(0, 0): A(x)
    A("s_waitcnt lgkmcnt(0)")
    dma_x(A, 0); dma_e(A, 0)
    for x in read_eidx(1): A(x)
    for x in calc_vq(): A(x)
    for j in range(4): A(f"v_add_u32 v{qa[0]+j}, v{qa[0]+j}, v{lanecol}")
    A("s_waitcnt lgkmcnt(0)")
    dma_e(A, 1)
    for c in range(4): A(read_q(c))
    for x in read_xidx(1) + read_eidx(2): A(x)
    A("s_waitcnt vmcnt(1)")
    for x in read_a(0): A(x)
    A("s_waitcnt lgkmcnt(0)")
    dma_x(A, 1); dma_e(A, 0)
    for m in chain(0, D[0]): A(m)
    A("s_nop 7")
    A("s_nop 7")
    if fast:
        for t in TU:
            for j in range(4):
                A(f"v_mov_b32 v{t+j}, 1.0")
                A(f"v_mov_b32 v{t+4+j}, 0")
        for j in range(4): A(f"v_mov_b32 v{qa[1]+j}, v{lanecol}")
    if OPT["prio"]: A("s_setprio 3")
    if fast: A("STAMP 7"); A("CSTAMP 11")
    A.label(f"B_LOOP{tag}")
    for par in (0, 1):
        if fast: tile_iter_fast(A, par)
        else: tile_iter(A, par, fast)
        if par == 1:
            for r in (aX, aG, aO): A(f"v_add_u32 v{r}, {2*TB}, v{r}")
            for r in (aQ, aN): A(f"v_add_u32 v{r}, 64, v{r}")
        A(f"s_sub_u32 s{sN}, s{sN}, 1")
        if OPT["prio"]:
            for rem, pr in ((3, 2), (2, 1), (1, 0)):
                A(f"s_cmp_eq_u32 s{sN}, {rem}")
                A(f"s_cbranch_scc0 B_P{tag}{par}{rem}")
                A(f"s_setprio {pr}")
                A.label(f"B_P{tag}{par}{rem}")
        A(f"s_cmp_eq_u32 s{sN}, 0")
        if par == 0: A(f"s_cbranch_scc1 {'B_DRAIN0' if fast else 'B_LOOPEND'}")
        else: A(f"s_cbranch_scc0 B_LOOP{tag}")
    if fast:
        drain_fast(A, 1)
        A("s_branch B_LOOPEND")
        A.label("B_DRAIN0")
        drain_fast(A, 0)
    A("s_branch B_LOOPEND")

def sort_slots(A, body, groups, tag):
    for g in groups:
        for i in range(4):
            A(f"v_cmpx_lt_i32 vcc, {8*g+i}, v{vLim}")
            if i % 2 == 0: A(f"s_cbranch_execz {tag}")
            body(g, i)

def kernel_b():
    A = Asm(OPT["stamps"])
    A.label(KB)
    A(f"""
s_cmp_ge_u32 s2, {NB}
s_cbranch_scc1 B_END
STAMP 0
CSTAMP 13
s_load_dwordx4 s[20:23], s[0:1], 0
s_load_dwordx2 s[24:25], s[0:1], 40
s_load_dwordx4 s[28:31], s[0:1], 56
s_load_dwordx2 s[26:27], s[0:1], 80
v_lshrrev_b32 v1, 6, v0
v_and_b32 v{vLane}, 63, v0
v_readfirstlane_b32 s{sWave}, v1
s_mul_i32 s{sStart}, s2, 625
s_add_u32 s{sT}, s{sStart}, {625 + 15}
s_add_u32 s{sStart}, s{sStart}, 15
s_lshr_b32 s{sStart}, s{sStart}, 4
s_lshr_b32 s{sT}, s{sT}, 4
s_sub_u32 s{sNn}, s{sT}, s{sStart}
s_and_b32 s{sS6}, s{sStart}, 63
s_mul_i32 s{sXB}, s{sWave}, 6144
s_add_u32 s{sXB}, s{sXB}, {L_XB0}
s_mov_b32 s{sMode}, 0
B_START:
s_mov_b32 s{sR}, 32
s_mov_b32 s{sLo}, 0
s_mov_b32 s{sFirst}, 1
v_mov_b32 v{vdeg}, 0
v_mov_b32 v{chk}, 0
v_mov_b32 v{chk+1}, 0
""")
    fill_lists(A)
    zero_s(A)
    A(f"""
v_cmp_gt_u32 vcc, 4, v{vTID}
s_and_saveexec_b64 s[48:49], vcc
ds_write_b128 v{tmp}, v[{E+4}:{E+7}] offset:{L_FLAG}
s_mov_b64 exec, s[48:49]
v_cmp_gt_u32 vcc, 36, v{vTID}
s_and_saveexec_b64 s[48:49], vcc
v_lshrrev_b32 v1, 2, v{vTID}
v_and_b32 v2, 3, v{vTID}
v_lshrrev_b32 v3, 1, v1
v_and_b32 v4, 1, v1
v_lshlrev_b32 v4, 4, v4
v_mov_b32 v5, {BF_ONE:#x}
v_lshlrev_b32 v5, v4, v5
v_cmp_eq_u32 vcc, v2, v3
v_lshlrev_b32 v6, 2, v{vTID}
v_cndmask_b32 v5, 0, v5, vcc
v_add_u32 v6, {L_OHT}, v6
ds_write_b32 v6, v5
s_mov_b64 exec, s[48:49]
""")
    A(f"""
v_add_u32 v{vN6}, s{sS6}, v{vLane}
v_and_b32 v{vN6}, 63, v{vN6}
v_lshlrev_b32 v{vN6}, 2, v{vN6}
v_and_b32 v1, 7, v{vLane}
v_lshlrev_b32 v1, 4, v1
v_add_u32 v1, {L_OHT - 1}, v1
v_mov_b32 v2, 0xffff
v_and_b32 v3, 8, v{vLane}
v_cmp_eq_u32 vcc, 0, v3
v_lshrrev_b32 v4, 1, v{vTID}
v_mul_u32_u24 v{vC25}, {CH}, v4
v_cndmask_b32 v5, v2, v1, vcc
v_cndmask_b32 v6, v1, v2, vcc
v_lshl_or_b32 v{vOhp}, v6, 16, v5
v_lshlrev_b32 v4, 10, v4
s_lshl_b32 s{sT}, s2, 2
s_add_u32 s{sT}, s{sT}, {WS_TBL}
s_waitcnt lgkmcnt(0)
""")
    srd(A, SW, 26, WS_END)
    A(f"buffer_load_dword v{vTbl}, v4, s[{SW}:{SW+3}], s{sT} offen")
    A(f"v_lshlrev_b32 v1, 4, v{vLane}")
    for j in range(3):
        A(f"s_lshl_b32 s{sT}, s{sWave}, 10")
        A(f"s_add_u32 m0, s{sT}, {L_XB0 + 8192*j}")
        A(f"s_add_u32 s{sT2}, s{sT}, {WS_WF + (8192*j if j < 2 else 32768)}")
        A(f"buffer_load_dwordx4 v1, s[{SW}:{SW+3}], s{sT2} offen lds")
    srd(A, SX, 20, N_NODES, stride=128)
    srd(A, SE, 22, N_EDGES, stride=32)
    srd(A, SO, 20, N_NODES * 128)
    A(f"""
s_lshr_b32 s{sT}, s{sWave}, 2
s_lshl_b32 s{sT}, s{sT}, 5
s_add_u32 s{sT}, s{sT}, s{sStart}
v_and_b32 v2, 31, v{vLane}
v_lshrrev_b32 v3, 5, v{vLane}
v_add_u32 v4, s{sT}, v2
v_lshlrev_b32 v4, 7, v4
v_lshl_add_u32 v4, v3, 4, v4
s_and_b32 s{sT3}, s{sWave}, 3
s_lshl_b32 s{sT2}, s{sT3}, 10
s_add_u32 s{sT2}, s{sT2}, {WS_WF + 16*1024}
""")
    for s in range(4):
        A(f"buffer_load_dwordx4 v[{X+4*s}:{X+4*s+3}], v4, s[{SO}:{SO+3}], 0 offen offset:{32*s}")
    for s in range(4):
        A(f"buffer_load_dwordx4 v[{D[0]+4*s}:{D[0]+4*s+3}], v1, s[{SW}:{SW+3}], s{sT2} offen")
        if s < 3: A(f"s_add_u32 s{sT2}, s{sT2}, 4096")
    A(f"""
s_lshl_b32 s{sT3}, s{sT3}, 5
v_add_u32 v5, s{sT3}, v2
v_lshlrev_b32 v6, 1, v5
global_load_ushort v7, v6, s[24:25]
STAMP 1
s_waitcnt vmcnt(12)
STAMP 2
""")
    A.label("B_ROUND")
    A(f"""
v_lshrrev_b32 v{vLim}, 16, v{vTbl}
v_subrev_u32 v{vLim}, s{sLo}, v{vLim}
v_min_i32 v{vLim}, s{sR}, v{vLim}
v_and_b32 v{vT}, 1, v{vTID}
v_lshlrev_b32 v{vT}, 2, v{vT}
v_sub_u32 v{vLim}, v{vLim}, v{vT}
v_and_b32 v{tmp}, 0xffff, v{vTbl}
v_add3_u32 v{tmp}, v{tmp}, v{vC25}, v{vT}
v_add_u32 v{tmp}, s{sLo}, v{tmp}
v_lshlrev_b32 v{tmp}, 2, v{tmp}
v_mov_b32 v{tmp2+1}, 0x7ffffff0
s_mov_b32 s{sT}, {WS_REC}
""")
    for g in range(4):
        A(f"v_cmp_lt_i32 vcc, {8*g}, v{vLim}")
        A(f"v_cndmask_b32 v{tmp2}, v{tmp2+1}, v{tmp}, vcc")
        A(f"buffer_load_dwordx4 v[{R+4*g}:{R+4*g+3}], v{tmp2}, s[{SW}:{SW+3}], s{sT} offen offset:{32*g}")
    A(f"s_cmp_eq_u32 s{sFirst}, 0")
    A(f"s_cbranch_scc1 B_NOTFIRST")
    A(f"""
s_waitcnt vmcnt(4)
v_lshlrev_b32 v7, 16, v7
v_mul_f32 v7, {f2u(SCALE):#x}, v7
""")
    for j in range(16): A(f"v_mov_b32 v{D[1]+j}, v7")
    for s in range(4):
        A(f"v_mfma_f32_32x32x16_bf16 v[{D[1]}:{D[1]+15}], v[{X+4*s}:{X+4*s+3}], v[{D[0]+4*s}:{D[0]+4*s+3}], v[{D[1]}:{D[1]+15}]")
    A(f"""
v_mul_u32_u24 v8, {QSTR}, v5
s_lshr_b32 s{sT}, s{sWave}, 2
s_lshl_b32 s{sT}, s{sT}, 6
v_lshl_add_u32 v8, v3, 3, v8
v_add_u32 v8, s{sT}, v8
""")
    for g in range(4):
        A(f"v_cvt_pk_bf16_f32 v{X+2*g}, v{D[1]+4*g}, v{D[1]+4*g+1}")
        A(f"v_cvt_pk_bf16_f32 v{X+2*g+1}, v{D[1]+4*g+2}, v{D[1]+4*g+3}")
    for g in range(2):
        A(f"ds_write_b64 v8, v[{X+2*g}:{X+2*g+1}] offset:{L_QT + 16*g}")
    A(f"s_cmp_ge_u32 s{sWave}, 4")
    A(f"s_cbranch_scc1 B_QDONE")
    for g in range(2, 4):
        A(f"ds_write_b64 v8, v[{X+2*g}:{X+2*g+1}] offset:{L_QT + 16*g}")
    A.label("B_QDONE")
    A(f"""
s_waitcnt lgkmcnt(0)
s_barrier
v_lshrrev_b32 v8, 16, v{vTbl}
v_mov_b32 v9, {L_FLAG}
ds_max_u32 v9, v8
v_lshlrev_b32 v1, 4, v{vLane}
v_add_u32 v1, {L_XB0}, v1
""")
    for u in range(16): A(f"ds_read_b128 v[{W+4*u}:{W+4*u+3}], v1 offset:{1024*u}")
    for c in range(4): A(f"ds_read_b128 v[{We+4*c}:{We+4*c+3}], v1 offset:{1024*(16+c)}")
    A(f"s_mov_b32 s{sFirst}, 0")
    A(f"s_branch B_COUNT")
    A.label("B_NOTFIRST")
    A("s_waitcnt lgkmcnt(0)")
    A("s_barrier")
    A.label("B_COUNT")
    A(f"v_mov_b32 v{vT}, 1")
    A("STAMP 3")
    A("s_waitcnt vmcnt(0)")
    A("STAMP 4")
    def count_body(g, i):
        j = 4 * g + i
        A(f"v_lshlrev_b32 v{A4+j}, 2, v{R+j}")
        A(f"v_and_b32 v{A4+j}, 0xfc, v{A4+j}")
        A(f"ds_add_rtn_u32 v{RK+j}, v{A4+j}, v{vT} offset:{L_CNT}")
    for j in range(16): A(f"v_mov_b32 v{A4+j}, 0")
    sort_slots(A, count_body, range(4), "B_COUNTED")
    A.label("B_COUNTED")
    A(f"""
s_mov_b64 exec, -1
s_waitcnt lgkmcnt(0)
s_barrier
STAMP 5
v_mov_b32 v{tmp2}, 0
ds_read_b32 v{tmp}, v{vN6} offset:{L_CNT}
ds_read_b32 v{tmp2}, v{tmp2} offset:{L_FLAG}
v_cmp_gt_u32 vcc, s{sNn}, v{vLane}
s_waitcnt lgkmcnt(0)
v_readfirstlane_b32 s{sMax}, v{tmp2}
v_add_u32 v{NT}, 3, v{tmp}
v_lshrrev_b32 v{NT}, 2, v{NT}
v_max_u32 v{NT}, 1, v{NT}
v_cndmask_b32 v{NT}, 0, v{NT}, vcc
v_mov_b32 v{NT+1}, v{NT}
""")
    wave_scan(A, NT + 1)
    A(f"""
v_readlane_b32 s{sTot}, v{NT+1}, 63
v_sub_u32 v{NT+4}, v{NT+1}, v{NT}
v_lshlrev_b32 v{NT+4}, 2, v{NT+4}
v_mov_b32 v{NT+5}, v{vOhp}
v_lshlrev_b32 v{NT+6}, 10, v{vLane}
s_cmp_gt_u32 s{sTot}, {CAPQ}
s_cbranch_scc1 B_OVERFLOW
s_and_saveexec_b64 s[48:49], vcc
v_add_u32 v{vdeg}, v{vdeg}, v{tmp}
v_lshlrev_b32 v{tmp}, 2, v{vN6}
ds_write_b96 v{tmp}, v[{NT+4}:{NT+6}] offset:{L_NTAB}
ds_write_b32 v{NT+4}, v{NT+6} offset:{L_QADDR}
s_mov_b64 exec, s[48:49]
v_mov_b32 v{vT}, {L_LIST}
s_waitcnt lgkmcnt(0)
""")
    def scatter_batch(groups, tag):
        for n, g in enumerate(groups):
            for i in range(4):
                j = 4 * g + i; t = NT + 4 * (4 * n + i)
                A(f"v_lshlrev_b32 v{tmp}, 2, v{A4+j}")
                A(f"ds_read_b96 v[{t}:{t+2}], v{tmp} offset:{L_NTAB}")
        A("s_waitcnt lgkmcnt(0)")
        def body(g, i):
            j = 4 * g + i; t = NT + 4 * (4 * groups.index(g) + i)
            A(f"v_add_u32 v{t}, v{t}, v{RK+j}")
            A(f"v_lshrrev_b32 v{tmp}, 18, v{R+j}")
            A(f"v_bfe_u32 v{tmp2}, v{R+j}, 6, 12")
            A(f"v_mad_u32_u24 v{t+3}, v{t}, 12, v{vT}")
            A(f"v_add_u32 v{tmp2}, v{vC25}, v{tmp2}")
            A(f"v_and_b32 v{t}, -4, v{t}")
            A(f"ds_write2_b32 v{t+3}, v{tmp}, v{t+1} offset0:0 offset1:1")
            A(f"ds_write_b32 v{t+3}, v{tmp2} offset:8")
            A(f"ds_write_b32 v{t}, v{t+2} offset:{L_QADDR}")
        sort_slots(A, body, groups, tag)
    scatter_batch([0, 1], "B_SC1")
    A.label("B_SC1")
    A(f"""
s_mov_b64 exec, -1
v_cmp_lt_i32 vcc, 16, v{vLim}
s_cbranch_vccz B_SC2
""")
    scatter_batch([2, 3], "B_SC2")
    A.label("B_SC2")
    A("s_mov_b64 exec, -1")
    A(f"""
s_add_u32 s{sT}, s{sTot}, 7
s_lshr_b32 s{sT}, s{sT}, 3
s_lshr_b32 s{sT2}, s{sT}, 3
s_and_b32 s{sT3}, s{sT}, 7
s_mul_i32 s{sT0}, s{sT2}, s{sWave}
s_min_u32 s{sN}, s{sWave}, s{sT3}
s_add_u32 s{sT0}, s{sT0}, s{sN}
s_cmp_lt_u32 s{sWave}, s{sT3}
s_cselect_b32 s{sN}, 1, 0
s_add_u32 s{sN}, s{sN}, s{sT2}
v_and_b32 v40, 31, v{vLane}
v_lshrrev_b32 v41, 5, v{vLane}
v_bfe_u32 v42, v{vLane}, 1, 3
v_lshlrev_b32 v43, 7, v40
v_add_u32 v43, s{sXB}, v43
""")
    for s in range(4):
        A(f"v_or_b32 v44, {2*s}, v41")
        A(f"v_xor_b32 v44, v44, v42")
        A(f"v_lshl_add_u32 v{xr[s]}, v44, 4, v43")
    A(f"""
v_lshlrev_b32 v{eAddr}, 4, v{vLane}
v_add_u32 v{eAddr}, s{sXB}, v{eAddr}
v_add_u32 v{eAddr}, 0x1000, v{eAddr}
v_mul_u32_u24 v{qbase}, {QSTR}, v40
v_lshl_add_u32 v{qbase}, v41, 4, v{qbase}
v_add_u32 v{qbase}, {L_QT}, v{qbase}
v_xor_b32 v{c1}, 1, v41
v_lshlrev_b32 v{c1}, 13, v{c1}
v_lshlrev_b32 v{lanecol}, 3, v40
v_and_b32 v44, 7, v{vLane}
v_lshrrev_b32 v45, 4, v{vLane}
v_xor_b32 v46, v44, v45
v_lshlrev_b32 v{xi[0]+1}, 4, v46
v_mov_b32 v{xi[2]+1}, v{xi[0]+1}
v_xor_b32 v46, 4, v46
v_lshlrev_b32 v{xi[1]+1}, 4, v46
v_mov_b32 v{xi[3]+1}, v{xi[1]+1}
v_lshlrev_b32 v{ei+1}, 4, v41
s_mul_i32 s{sT}, s{sT0}, {TB}
s_add_u32 s{sT}, s{sT}, {L_LIST}
v_bfe_u32 v44, v{vLane}, 3, 1
v_bfe_u32 v45, v{vLane}, 4, 1
v_lshlrev_b32 v46, 4, v41
v_lshl_add_u32 v46, v44, 2, v46
v_add_u32 v46, v46, v45
v_mul_u32_u24 v{aX}, 12, v46
v_add_u32 v{aX}, s{sT}, v{aX}
v_bfe_u32 v44, v{vLane}, 2, 1
v_lshlrev_b32 v46, 4, v44
v_bfe_u32 v44, v{vLane}, 4, 1
v_lshl_add_u32 v46, v44, 3, v46
v_and_b32 v44, 1, v{vLane}
v_lshl_add_u32 v46, v44, 2, v46
v_bfe_u32 v44, v{vLane}, 3, 1
v_lshl_add_u32 v46, v44, 1, v46
v_bfe_u32 v44, v{vLane}, 1, 1
v_add_u32 v46, v46, v44
v_mul_u32_u24 v46, 12, v46
v_add_u32 v46, s{sT}, v46
v_add_u32 v{aG}, 8, v46
v_lshl_add_u32 v{aO}, v41, 1, v46
v_add_u32 v{aO}, 4, v{aO}
s_lshl_b32 s{sT}, s{sT0}, 5
s_add_u32 s{sT}, s{sT}, {L_QADDR}
v_mov_b32 v{aN}, s{sT}
v_lshl_add_u32 v{aQ}, v41, 4, v{aN}
s_waitcnt lgkmcnt(0)
s_barrier
STAMP 6
CSTAMP 14
s_cmp_eq_u32 s{sN}, 0
s_cbranch_scc1 B_LOOPEND
s_cmp_lg_u32 s{sMode}, 0
s_cbranch_scc1 B_SAFE
""")
    main_loop(A, True)
    A.label("B_SAFE")
    main_loop(A, False)
    A.label("B_LOOPEND")
    A(f"""
s_setprio 0
STAMP 8
CSTAMP 12
s_waitcnt vmcnt(0) lgkmcnt(0)
s_barrier
STAMP 9
s_add_u32 s{sLo}, s{sLo}, s{sR}
s_cmp_ge_u32 s{sLo}, s{sMax}
s_cbranch_scc1 B_FINISH
""")
    fill_lists(A)
    A("s_branch B_ROUND")
    A.label("B_OVERFLOW")
    A(f"s_mov_b32 s{sR}, 8")
    A.label("B_RESTART")
    A(f"""
s_barrier
s_mov_b32 s{sLo}, 0
v_mov_b32 v{vdeg}, 0
v_mov_b32 v{chk}, 0
v_mov_b32 v{chk+1}, 0
""")
    fill_lists(A)
    zero_s(A)
    A("s_branch B_ROUND")
    A.label("B_FINISH")
    SB = L_LIST
    A(f"""
s_and_b32 s{sT}, s{sWave}, 1
s_lshl_b32 s{sT2}, s{sT}, 10
s_add_u32 s{sT2}, s{sT2}, {WS_WF + 36*1024}
v_lshlrev_b32 v1, 4, v{vLane}
""")
    for s in range(8):
        A(f"buffer_load_dwordx4 v[{W+4*s}:{W+4*s+3}], v1, s[{SW}:{SW+3}], s{sT2} offen")
        if s < 7: A(f"s_add_u32 s{sT2}, s{sT2}, 2048")
    A(f"""
v_lshrrev_b32 v3, 5, v{vLane}
s_lshl_b32 s{sT}, s{sT}, 6
v_lshlrev_b32 v4, 3, v3
v_add_u32 v4, s{sT}, v4
""")
    for g in range(4):
        A(f"global_load_dwordx2 v[{We+2*g}:{We+2*g+1}], v4, s[28:29] offset:{16*g}")
    A(f"""
v_mov_b32 v5, 0x71800000
v_cmp_nlt_f32 vcc, v{chk}, v5
v_cmp_nlt_f32 s[48:49], v{chk+1}, v5
s_or_b64 vcc, vcc, s[48:49]
v_lshlrev_b32 v6, 2, v{vLane}
ds_write_b32 v6, v{vdeg} offset:{L_DEG}
v_lshlrev_b32 v{tmp}, 4, v{vTID}
ds_read_b128 v[{E}:{E+3}], v{tmp} offset:{L_S}
ds_read_b128 v[{E+4}:{E+7}], v{tmp} offset:{L_S + 8192}
ds_read_b128 v[{E+8}:{E+11}], v{tmp} offset:{L_S + 16384}
ds_read_b128 v[{E+12}:{E+15}], v{tmp} offset:{L_S + 24576}
ds_read_b128 v[{D[0]}:{D[0]+3}], v{tmp} offset:{L_S + 32768}
v_lshrrev_b32 v7, 6, v{vTID}
v_mul_u32_u24 v7, {SBSTR}, v7
v_and_b32 v8, 63, v{vTID}
v_lshl_add_u32 v7, v8, 2, v7
v_add_u32 v7, {SB}, v7
v_mov_b32 v9, {f2u(1.0 / SCALE):#x}
v_mov_b32 v10, 0x7f800000
s_waitcnt lgkmcnt(0)
""")
    for j in range(10): A(f"v_cvt_f32_f64 v{D[1]+j}, v[{E+2*j}:{E+2*j+1}]")
    for j in range(10): A(f"v_mul_f32 v{D[1]+j}, v9, v{D[1]+j}")
    for j in range(10):
        A(f"v_cmp_nlt_f32 s[48:49], |v{D[1]+j}|, v10")
        A("s_or_b64 vcc, vcc, s[48:49]")
    for j in range(5):
        A(f"v_cvt_pk_bf16_f32 v{E+j}, v{D[1]+2*j}, v{D[1]+2*j+1}")
        A(f"ds_write_b32 v7, v{E+j} offset:{8*SBSTR*j}")
    A(f"""
s_mov_b64 exec, -1
s_cmp_eq_u64 vcc, 0
s_cbranch_scc1 B_NOFLAG
v_mov_b32 v5, {L_FLAG}
v_mov_b32 v6, 1
ds_write_b32 v5, v6 offset:4
""")
    A.label("B_NOFLAG")
    A(f"""
s_waitcnt lgkmcnt(0)
s_barrier
v_mov_b32 v5, {L_FLAG}
ds_read_b32 v6, v5 offset:4
s_waitcnt lgkmcnt(0)
v_readfirstlane_b32 s{sT}, v6
s_cmp_lg_u32 s{sMode}, 0
s_cbranch_scc1 B_OUT
s_cmp_eq_u32 s{sT}, 0
s_cbranch_scc1 B_OUT
s_mov_b32 s{sMode}, 1
s_waitcnt vmcnt(0)
s_barrier
s_branch B_START
""")
    A.label("B_OUT")
    A(f"""
s_cmp_ge_u32 s{sWave}, 4
s_cbranch_scc1 {"B_FLUSH" if OPT["stamps"] else "B_END"}
s_lshr_b32 s{sT}, s{sWave}, 1
s_lshl_b32 s{sT}, s{sT}, 5
v_and_b32 v2, 31, v{vLane}
v_add_u32 v2, s{sT}, v2
v_mul_u32_u24 v5, {SBSTR}, v2
v_lshl_add_u32 v5, v3, 4, v5
v_add_u32 v5, {SB}, v5
v_lshlrev_b32 v6, 2, v2
ds_read_b32 v7, v6 offset:{L_DEG}
""")
    for s in range(8):
        A(f"ds_read_b128 v[{X+4*s}:{X+4*s+3}], v5 offset:{32*s}")
    srd(A, SO, 30, N_NODES * 128)
    A("s_waitcnt vmcnt(0) lgkmcnt(0)")
    d = D[0]
    for s in range(8):
        A(f"v_mfma_f32_32x32x16_bf16 v[{d}:{d+15}], v[{W+4*s}:{W+4*s+3}], v[{X+4*s}:{X+4*s+3}], {'0' if s == 0 else f'v[{d}:{d+15}]'}")
    A(f"""
v_cvt_f32_u32 v7, v7
v_add_u32 v8, s{sStart}, v2
v_lshlrev_b32 v8, 7, v8
v_add_u32 v8, v8, v4
v_cmp_gt_u32 vcc, s{sNn}, v2
""")
    for g in range(4):
        A(f"v_lshlrev_b32 v{E+4*g}, 16, v{We+2*g}")
        A(f"v_and_b32 v{E+4*g+1}, 0xffff0000, v{We+2*g}")
        A(f"v_lshlrev_b32 v{E+4*g+2}, 16, v{We+2*g+1}")
        A(f"v_and_b32 v{E+4*g+3}, 0xffff0000, v{We+2*g+1}")
    for j in range(16):
        A(f"v_fma_f32 v{d+j}, v7, v{E+j}, v{d+j}")
    A("s_and_saveexec_b64 s[48:49], vcc")
    for g in range(4):
        A(f"v_cvt_pk_bf16_f32 v{E+2*g}, v{d+4*g}, v{d+4*g+1}")
        A(f"v_cvt_pk_bf16_f32 v{E+2*g+1}, v{d+4*g+2}, v{d+4*g+3}")
        A(f"buffer_store_dwordx2 v[{E+2*g}:{E+2*g+1}], v8, s[{SO}:{SO+3}], 0 offen offset:{16*g}")
    if OPT["stamps"]:
        A.label("B_FLUSH")
        A("s_waitcnt vmcnt(0)")
        A("STAMP 10")
        stamp_flush(A, 15, 26, 2, sWave, 1)
    A.label("B_END")
    A("s_endpgm")
    nops = A.pad()
    for tag in "FS":
        bad = A.check_loop(f"B_LOOP{tag}", f"s_cbranch_scc0 B_LOOP{tag}")
        assert not bad, bad
    return A, LDS_B

def descriptor(name, nv, ns):
    acc = (nv + 3) // 4 * 4
    return f""".amdhsa_kernel {name}
  .amdhsa_next_free_vgpr {nv}
  .amdhsa_next_free_sgpr {ns}
  .amdhsa_accum_offset {acc}
  .amdhsa_group_segment_fixed_size 0
  .amdhsa_kernarg_size 88
  .amdhsa_user_sgpr_count 2
  .amdhsa_user_sgpr_kernarg_segment_ptr 1
  .amdhsa_system_sgpr_workgroup_id_x 1
.end_amdhsa_kernel
"""

def main(path):
    a, la = kernel_a()
    b, lb = kernel_b()
    hdr = open("cdna_kernels/" + NAME + ".s.ref").read().split("; Override launch geometry")[0]
    s = hdr
    s += "; Two launches: a per-chunk bucket sort of the edges (plus weight fragments), then the per-bucket message pass.\n"
    s += f"; @launch kernel={KA} grid=({NB},1,1) block=(704,1,1) lds={la}\n"
    s += f"; @launch kernel={KB} grid=({NB},1,1) block=(512,1,1) lds={lb}\n"
    s += '.amdgcn_target "amdgcn-amd-amdhsa--gfx950"\n.text\n'
    for name, k in ((KA, a), (KB, b)):
        s += f".globl {name}\n.p2align 8\n.type {name},@function\n" + k.text()
    s += '.section .rodata,"a"\n.p2align 6\n' + descriptor(KA, 64, 96) + ".p2align 6\n" + descriptor(KB, NVGPR_B, 100)
    open(path, "w").write(s)

if __name__ == "__main__":
    main(OPT.get("out", "cdna_kernels/" + NAME + ".s"))
```

```python
import sys, struct
from asmlib import Asm

NAME = "gather_scatter__edge_featured_mpnn_mpnn__graph"
KB = NAME + "_kernel"
N_NODES = 10000; N_EDGES = 640000; NB = 256; CH = 2500
WS_TBL = 0; WS_REC = NB * NB * 8; WS_END = WS_REC + N_EDGES * 4 + 4096
BF_ONE = 0x3F80
SCALE = -1.4426950408889634
def f2u(x): return struct.unpack("<I", struct.pack("<f", x))[0]

OPT = dict(prio=True, stamps=False, noadd=False, nodma=False, nomfma=False, novalu=False, xwarm=False, ewarm=False, psched=((2, 1), (1, 0)), estream=0, es=(4, 3, 3), out=None)
for a in sys.argv[1:]:
    if "=" in a:
        k, v = a.split("=", 1); OPT[k] = eval(v)

L_S = 0; L_CNT = 40960; L_NTAB = 41216; L_DEG = 42240; L_FLAG = 42496; L_QT = 42752
L_QADDR = 57088; L_QEND = 60416; L_OHT = 65024; L_OHZ = 65536; L_XB0 = 65792; XBS = 6144
L_LIST = L_XB0 + 8 * XBS; LDS_B = L_LIST + 40960
L_HIST = 0; L_BASE = 1024; L_SORT = 2048; L_WRAW = L_LIST; L_WST = L_XB0
QSTR = 112; CAPQ = 768; SBSTR = 272
TB = 256

vTID = 0
aX, aG, aO, aQ, aN = 1, 2, 3, 4, 5
xr = [6, 7, 8, 9]; eAddr = 10; vQ = 11; qbase = 12; c1 = 13; lanecol = 14; ohaddr = 15
xi = [16, 18, 20, 22]; ei = 24; node0 = 26; tmp = 27; chk = 28; tmp2 = 30
qa = [32, 36]
E = 40; D = [56, 72]; X = 88; Ea = 104; OH = 108; Qx = 112; We = 128; W = 144
vTbl = 208; vdeg = 210; vLane = 211; vN6 = 212; vOhp = 213; vC25 = 214; vLim = 215
TU = [216, 224]; F64 = 232; vT = 240; v16h = 241
cX, cG, cO = 242, 243, 244
NVGPR = 248
R = 40; RK = 56; A4 = 72; NT = 88

SX = 4; SE = 8; SW = 12; SO = 16; SP = 20
sEx = 24; sEx2 = 26; sT = 28; sT2 = 29; sT3 = 30; sT4 = 31
sWave = 32; sStart = 33; sNn = 34; sS6 = 35; sXB = 36; sN = 37; sT0 = 38; sMode = 39
sR = 40; sLo = 41; sMax = 42; sTagLo = 43; sTot = 44; sTagB = 45; sCnt = 46
pX, pE, pSrc, pDst, pW1, pB1, pW2, pB2 = 48, 50, 52, 54, 56, 58, 60, 62
pOut, pDbg, pWs = 96, 98, 100
WS_STAMP = 8 << 20

def srd(A, d, base, size, stride=0):
    A(f"s_mov_b32 s{d}, s{base}")
    A(f"s_and_b32 s{d+1}, s{base+1}, 0xffff")
    if stride: A(f"s_or_b32 s{d+1}, s{d+1}, {stride << 16:#x}")
    A(f"s_mov_b32 s{d+2}, {size}")
    A(f"s_mov_b32 s{d+3}, 0x20000")

def stamp_flush(A, n):
    if not OPT["stamps"]: return
    A("s_waitcnt vmcnt(0) lgkmcnt(0)")
    A("s_mov_b64 exec, -1")
    A(f"s_lshl_b32 s{sT}, s2, 4")
    A(f"s_add_u32 s{sT}, s{sT}, s{sWave}")
    A(f"s_lshl_b32 s{sT}, s{sT}, 6")
    A(f"s_add_u32 s{sT}, s{sT}, {WS_STAMP}")
    A(f"s_add_u32 s{sEx}, s{pWs}, s{sT}")
    A(f"s_addc_u32 s{sEx+1}, s{pWs+1}, 0")
    A("v_mov_b32 v1, 0")
    for i in range(n):
        A(f"v_mov_b32 v2, s{64+2*i}")
        A(f"global_store_dword v1, v2, s[{sEx}:{sEx+1}] offset:{4*i}")
    A("s_waitcnt vmcnt(0)")

def wave_scan(A, v):
    for sh in (1, 2, 4, 8):
        A(f"v_add_u32_dpp v{v}, v{v}, v{v} row_shr:{sh} row_mask:0xf bank_mask:0xf")
    A(f"v_add_u32_dpp v{v}, v{v}, v{v} row_bcast:15 row_mask:0xa bank_mask:0xf")
    A(f"v_add_u32_dpp v{v}, v{v}, v{v} row_bcast:31 row_mask:0xc bank_mask:0xf")

def fill_lists(A):
    A(f"v_lshlrev_b32 v{tmp}, 4, v{vTID}")
    A(f"v_add_u32 v{tmp2}, {L_LIST}, v{tmp}")
    for i in range(4): A(f"v_mov_b32 v{E+i}, -1")
    for i in range(4): A(f"v_mov_b32 v{E+4+i}, 0")
    for j in range(4):
        A(f"ds_write_b128 v{tmp2}, v[{E}:{E+3}] offset:{8192*j}")
    A(f"v_cmp_gt_u32 vcc, {(L_QEND - L_QADDR) // 16}, v{vTID}")
    A(f"s_and_saveexec_b64 s[{sEx}:{sEx+1}], vcc")
    A(f"ds_write_b128 v{tmp}, v[{E+4}:{E+7}] offset:{L_QADDR}")
    A(f"v_cmp_gt_u32 vcc, 16, v{vTID}")
    A(f"s_and_b64 exec, exec, vcc")
    A(f"ds_write_b128 v{tmp}, v[{E+4}:{E+7}] offset:{L_CNT}")
    A(f"s_mov_b64 exec, s[{sEx}:{sEx+1}]")

def zero_s(A):
    for j in range(5):
        A(f"ds_write_b128 v{tmp}, v[{E+4}:{E+7}] offset:{L_S + 8192*j}")

def chain(c, d):
    q = lambda r: f"v[{r}:{r+3}]"
    dd = f"v[{d}:{d+15}]"
    M = []
    for s in range(4):
        M.append(f"v_mfma_f32_32x32x16_bf16 {dd}, {q(X+4*s)}, {q(W+16*s+4*c)}, {'0' if s == 0 else dd}")
    M.append(f"v_mfma_f32_32x32x16_bf16 {dd}, {q(Ea)}, {q(We+4*c)}, {dd}")
    M.append(f"v_mfma_f32_32x32x16_bf16 {dd}, {q(OH)}, {q(Qx+4*c)}, {dd}")
    return M

def dma_x(A):
    for i in range(4):
        A(f"s_add_u32 m0, s{sXB}, {1024*i}")
        A(f"s_nop 0")
        A(f"buffer_load_dwordx4 v[{xi[i]}:{xi[i]+1}], s[{SX}:{SX+3}], 0 idxen offen lds")
def dma_e(A, slot):
    A(f"s_add_u32 m0, s{sXB}, {4096 + 1024*slot}")
    A(f"s_nop 0")
    A(f"buffer_load_dwordx4 v[{ei}:{ei+1}], s[{SE}:{SE+3}], 0 idxen offen lds")
def read_xidx(k): return [f"ds_read_u16 v{xi[i]}, v{aX} offset:{TB*k + 8*[0,2,8,10][i]}" for i in range(4)]
def read_eidx(k): return [f"ds_read_b32 v{ei}, v{aG} offset:{TB*k}"]
def read_a(eslot):
    L = [f"ds_read_b128 v[{X+4*s}:{X+4*s+3}], v{xr[s]}" for s in range(4)]
    L.append(f"ds_read_b128 v[{Ea}:{Ea+3}], v{eAddr} offset:{1024*eslot}")
    L.append(f"ds_read_b128 v[{OH}:{OH+3}], v{ohaddr} offset:1")
    return L
def read_q(c): return f"ds_read_b128 v[{Qx+4*c}:{Qx+4*c+3}], v{vQ} offset:{32*QSTR*c}"
def calc_vq():
    return [f"v_add_u32 v{tmp}, v{node0}, v{c1}", f"v_lshrrev_b32 v{tmp}, 14, v{tmp}",
            f"v_lshl_add_u32 v{vQ}, v{tmp}, 5, v{qbase}", f"v_add_u32 v{ohaddr}, v{ohaddr}, v{v16h}"]
def read_meta(k, par):
    return [f"ds_read_b128 v[{qa[par]}:{qa[par]+3}], v{aQ} offset:{32*k}",
            f"ds_read_b32 v{node0}, v{aN} offset:{32*k}",
            f"ds_read_u16 v{ohaddr}, v{aO} offset:{TB*k}"]

def pk_list(d, c):
    e = E; p = lambda r: f"v[{r}:{r+1}]"
    T = TU[c & 1]; U = T + 4; Tp = TU[(c + 1) & 1]; Up = Tp + 4
    L = []
    for o, j in ((0, 0), (8, 2)):
        L.append(f"v_pk_mul_f32 {p(Up+j)}, {p(Up+j)}, {p(Tp+j)}")
    for o in (0, 8):
        L.append(f"v_pk_add_f32 {p(e+o+2)}, {p(e+o+2)}, 1.0 op_sel_hi:[1,0]")
        L.append(f"v_pk_add_f32 {p(e+o+6)}, {p(e+o+6)}, 1.0 op_sel_hi:[1,0]")
    for o in (0, 8):
        L.append(f"v_pk_fma_f32 {p(d+o)}, {p(d+o)}, {p(e+o+2)}, {p(d+o+2)}")
        L.append(f"v_pk_fma_f32 {p(d+o+4)}, {p(d+o+4)}, {p(e+o+6)}, {p(d+o+6)}")
    for o in (0, 8):
        L.append(f"v_pk_fma_f32 {p(d+o)}, {p(d+o+2)}, {p(e+o)}, {p(d+o)}")
        L.append(f"v_pk_fma_f32 {p(d+o+4)}, {p(d+o+6)}, {p(e+o+4)}, {p(d+o+4)}")
    for o in (0, 8):
        L.append(f"v_pk_fma_f32 {p(e+o)}, {p(e+o)}, {p(e+o+2)}, {p(e+o+2)}")
        L.append(f"v_pk_fma_f32 {p(e+o+4)}, {p(e+o+4)}, {p(e+o+6)}, {p(e+o+6)}")
    for o, j in ((0, 0), (8, 2)):
        L.append(f"v_pk_mul_f32 {p(T+j)}, {p(e+o)}, {p(e+o+4)}")
    for o in (0, 8):
        L.append(f"v_pk_mul_f32 {p(d+o)}, {p(d+o)}, {p(e+o+4)}")
    for o, j in ((0, 0), (8, 2)):
        L.append(f"v_pk_fma_f32 {p(U+j)}, {p(d+o+4)}, {p(e+o)}, {p(d+o)}")
    for j in (0, 2):
        L.append(f"v_pk_add_f32 {p(chk)}, {p(chk)}, {p(T+j)}")
    return L

def flush_q(c, q):
    U = TU[c & 1] + 4
    cv = [f"v_cvt_f64_f32 v[{F64+2*j}:{F64+2*j+1}], v{U+j}" for j in range(4)]
    ad = [f"ds_add_f64 v{q+j}, v[{F64+2*j}:{F64+2*j+1}] offset:{256*(c & 3)}" for j in range(4)]
    return cv, ad

def tile_iter_fast(A, par):
    k = par
    for ph in range(4):
        d = D[ph & 1]; dn = D[(ph + 1) & 1]
        M = chain((ph + 1) & 3, dn)
        Tp = TU[(ph + 1) & 1]
        tr = [f"v_rcp_f32 v{Tp+j}, v{Tp+j}" for j in range(4)] + [f"v_exp_f32 v{E+j}, v{d+j}" for j in range(16)]
        cv, ad = flush_q(ph + 2, qa[par] if ph >= 2 else qa[1 - par])
        extra = {i: [] for i in range(7)}
        pre = []
        if ph == 0:
            extra[0] += read_meta(k + 1, 1 - par)[1:]
        if ph == 1:
            pre += ["s_waitcnt lgkmcnt(4)"]
            extra[0] += calc_vq()
            extra[1] += [read_q(0), read_q(1)]
            extra[2] += read_xidx(k + 2) + read_eidx(k + 3)
        if ph == 2:
            extra[0] += [read_q(2), read_meta(k + 1, 1 - par)[0]]
            extra[5] += ["s_waitcnt vmcnt(1)"] + read_a(1 - par)
        if ph == 3:
            pre += ["s_waitcnt lgkmcnt(4)", "DMA"]
            extra[1] += [read_q(3)]
            extra[2] += [f"v_add_u32 v{qa[1-par]+j}, v{qa[1-par]+j}, v{lanecol}" for j in range(4)]
        for x in pre:
            if x == "DMA":
                if not OPT["nodma"]:
                    dma_x(A); dma_e(A, 1 - par)
            else: A(x)
        ti = 0
        for m in range(6):
            if not OPT["nomfma"]: A(M[m])
            if m == 5 and ph == 2:
                for x in extra[5]: A(x)
            n = 3 if m < 5 else 5
            for x in tr[ti:ti + n]:
                if not OPT["novalu"]: A(x)
            ti += n
            if not (m == 5 and ph == 2):
                for x in extra[m]: A(x)
        for x in cv: A(x)
        for x in ad:
            if not OPT["noadd"]: A(x)
            else: A(f"ds_read_b32 v{tmp2}, v{tmp2+1}")
        if not OPT["novalu"]:
            for x in pk_list(d, ph): A(x)

def drain_fast(A, par):
    p = lambda r: f"v[{r}:{r+1}]"
    cv, ad = flush_q(2, qa[par])
    T = TU[1]; U = T + 4
    for j in range(4): A(f"v_rcp_f32 v{T+j}, v{T+j}")
    for x in cv + ad: A(x)
    for j in (0, 2): A(f"v_pk_mul_f32 {p(U+j)}, {p(U+j)}, {p(T+j)}")
    cv, ad = flush_q(3, qa[par])
    for x in cv + ad: A(x)

def tile_iter_safe(A, par):
    k = par; e = E; p = lambda r: f"v[{r}:{r+1}]"
    for ph in range(4):
        d = D[ph & 1]; dn = D[(ph + 1) & 1]
        if ph == 0:
            for x in read_meta(k + 1, 1 - par): A(x)
        if ph == 1:
            A("s_waitcnt lgkmcnt(4)")
            for x in calc_vq(): A(x)
            for j in range(4): A(f"v_add_u32 v{qa[1-par]+j}, v{qa[1-par]+j}, v{lanecol}")
            for x in [read_q(0), read_q(1)] + read_xidx(k + 2) + read_eidx(k + 3): A(x)
        if ph == 2: A(read_q(2))
        if ph == 3:
            A("s_waitcnt lgkmcnt(4)")
            dma_x(A); dma_e(A, 1 - par)
            A(read_q(3))
        for m in chain((ph + 1) & 3, dn): A(m)
        if ph == 2:
            A("s_waitcnt vmcnt(1)")
            for x in read_a(1 - par): A(x)
        for j in range(16): A(f"v_exp_f32 v{e+j}, v{d+j}")
        for j in range(0, 16, 2): A(f"v_pk_add_f32 {p(e+j)}, {p(e+j)}, 1.0 op_sel_hi:[1,0]")
        for j in range(16): A(f"v_rcp_f32 v{e+j}, v{e+j}")
        for j in range(0, 16, 2): A(f"v_pk_mul_f32 {p(d+j)}, {p(d+j)}, {p(e+j)}")
        for o in (0, 8):
            A(f"v_pk_add_f32 {p(d+o)}, {p(d+o)}, {p(d+o+2)}")
            A(f"v_pk_add_f32 {p(d+o+4)}, {p(d+o+4)}, {p(d+o+6)}")
        for o in (0, 8): A(f"v_pk_add_f32 {p(d+o)}, {p(d+o)}, {p(d+o+4)}")
        cvt = ((d, F64), (d + 1, F64 + 2), (d + 8, F64 + 4), (d + 9, F64 + 6))
        for r, t in cvt: A(f"v_cvt_f64_f32 v[{t}:{t+1}], v{r}")
        for j, (r, t) in enumerate(cvt): A(f"ds_add_f64 v{qa[par]+j}, v[{t}:{t+1}] offset:{256*ph}")

def main_loop(A, fast):
    tag = "F" if fast else "S"
    if OPT["prio"]: A("s_setprio 3")
    for x in read_xidx(0) + read_eidx(0): A(x)
    for x in read_meta(0, 0): A(x)
    A("s_waitcnt lgkmcnt(0)")
    dma_x(A); dma_e(A, 0)
    for x in read_eidx(1): A(x)
    for x in calc_vq(): A(x)
    for j in range(4): A(f"v_add_u32 v{qa[0]+j}, v{qa[0]+j}, v{lanecol}")
    for c in range(4): A(read_q(c))
    for x in read_xidx(1): A(x)
    A("s_waitcnt lgkmcnt(8)")
    dma_e(A, 1)
    for x in read_eidx(2): A(x)
    if fast:
        for t in TU:
            for j in range(4):
                A(f"v_mov_b32 v{t+j}, 1.0")
                A(f"v_mov_b32 v{t+4+j}, 0")
        for j in range(4): A(f"v_mov_b32 v{qa[1]+j}, v{lanecol}")
    A("s_waitcnt vmcnt(1)")
    for x in read_a(0): A(x)
    A("s_waitcnt lgkmcnt(0)")
    dma_x(A); dma_e(A, 0)
    for m in chain(0, D[0]): A(m)
    if OPT["prio"]: A("s_setprio 2")
    A("s_nop 7")
    A("s_nop 3")
    if fast: A("STAMP 9"); A("CSTAMP 13")
    A.label(f"B_LOOP{tag}")
    for par in (0, 1):
        if fast: tile_iter_fast(A, par)
        else: tile_iter_safe(A, par)
        if par == 1:
            for r in (aX, aG, aO): A(f"v_add_u32 v{r}, {2*TB}, v{r}")
            for r in (aQ, aN): A(f"v_add_u32 v{r}, 64, v{r}")
        A(f"s_sub_u32 s{sN}, s{sN}, 1")
        if OPT["prio"]:
            for rem, pr in OPT["psched"]:
                A(f"s_cmp_eq_u32 s{sN}, {rem}")
                A(f"s_cbranch_scc0 B_P{tag}{par}{rem}")
                A(f"s_setprio {pr}")
                A.label(f"B_P{tag}{par}{rem}")
        A(f"s_cmp_eq_u32 s{sN}, 0")
        if par == 0: A(f"s_cbranch_scc1 {'B_DRAIN0' if fast else 'B_LOOPEND'}")
        else: A(f"s_cbranch_scc0 B_LOOP{tag}")
    if fast:
        drain_fast(A, 1)
        A("s_branch B_LOOPEND")
        A.label("B_DRAIN0")
        drain_fast(A, 0)
    A("s_branch B_LOOPEND")

def sort_slots(A, body, groups, tag):
    for g in groups:
        for i in range(4):
            A(f"v_cmpx_lt_i32 vcc, {8*g+i}, v{vLim}")
            if i % 2 == 0: A(f"s_cbranch_execz {tag}")
            body(g, i)

def estream(A, first, n, vaddr):
    srd(A, SP, pE, N_EDGES * 32)
    A(f"s_mul_i32 s{sT}, s2, {CH * 32}")
    A(f"s_mul_i32 s{sT2}, s{sWave}, 10240")
    A(f"s_add_u32 s{sT}, s{sT}, s{sT2}")
    A(f"s_add_u32 s{sT}, s{sT}, {1024 * first}")
    A(f"v_lshlrev_b32 v{vaddr}, 4, v{vLane}")
    for j in range(n):
        A(f"buffer_load_dwordx4 v[{F64}:{F64+3}], v{vaddr}, s[{SP}:{SP+3}], s{sT} offen offset:{1024*j}")

def tr_addr(A, dst, base, rowbytes):
    A(f"v_lshrrev_b32 v{tmp}, 5, v{vLane}")
    A(f"v_bfe_u32 v{tmp2}, v{vLane}, 2, 2")
    A(f"v_lshl_add_u32 v{tmp}, v{tmp}, 3, v{tmp2}")
    A(f"v_mul_u32_u24 v{dst}, {rowbytes}, v{tmp}")
    A(f"v_bfe_u32 v{tmp}, v{vLane}, 4, 1")
    A(f"v_lshl_add_u32 v{dst}, v{tmp}, 5, v{dst}")
    A(f"v_and_b32 v{tmp}, 3, v{vLane}")
    A(f"v_lshl_add_u32 v{dst}, v{tmp}, 3, v{dst}")
    A(f"v_add_u32 v{dst}, {base}, v{dst}")

def lane_consts(A):
    A(f"""
v_add_u32 v{vN6}, s{sS6}, v{vLane}
v_and_b32 v{vN6}, 63, v{vN6}
v_lshlrev_b32 v{vN6}, 2, v{vN6}
v_and_b32 v1, 15, v{vLane}
v_lshlrev_b32 v1, 5, v1
v_add_u32 v1, {L_OHT - 1}, v1
v_lshlrev_b32 v{vOhp}, 16, v1
v_lshrrev_b32 v4, 1, v{vTID}
v_mul_u32_u24 v{vC25}, {CH}, v4
v_and_b32 v40, 31, v{vLane}
v_lshrrev_b32 v41, 5, v{vLane}
v_bfe_u32 v42, v{vLane}, 1, 3
v_lshlrev_b32 v43, 7, v40
v_add_u32 v43, s{sXB}, v43
""")
    for s in range(4):
        A(f"v_or_b32 v44, {2*s}, v41")
        A(f"v_xor_b32 v44, v44, v42")
        A(f"v_lshl_add_u32 v{xr[s]}, v44, 4, v43")
    A(f"""
v_lshlrev_b32 v{eAddr}, 4, v{vLane}
v_add_u32 v{eAddr}, s{sXB}, v{eAddr}
v_add_u32 v{eAddr}, 0x1000, v{eAddr}
v_mul_u32_u24 v{qbase}, {QSTR}, v40
v_lshl_add_u32 v{qbase}, v41, 4, v{qbase}
v_add_u32 v{qbase}, {L_QT}, v{qbase}
v_xor_b32 v{c1}, 1, v41
v_lshlrev_b32 v{c1}, 13, v{c1}
v_lshlrev_b32 v{lanecol}, 3, v40
v_lshlrev_b32 v{v16h}, 4, v41
v_and_b32 v44, 7, v{vLane}
v_lshrrev_b32 v45, 4, v{vLane}
v_xor_b32 v46, v44, v45
v_lshlrev_b32 v{xi[0]+1}, 4, v46
v_mov_b32 v{xi[2]+1}, v{xi[0]+1}
v_xor_b32 v46, 4, v46
v_lshlrev_b32 v{xi[1]+1}, 4, v46
v_mov_b32 v{xi[3]+1}, v{xi[1]+1}
v_lshlrev_b32 v{ei+1}, 4, v41
v_bfe_u32 v44, v{vLane}, 3, 1
v_bfe_u32 v45, v{vLane}, 4, 1
v_lshlrev_b32 v46, 4, v41
v_lshl_add_u32 v46, v44, 2, v46
v_add_u32 v46, v46, v45
v_lshlrev_b32 v{cX}, 3, v46
v_bfe_u32 v44, v{vLane}, 2, 1
v_lshlrev_b32 v46, 4, v44
v_bfe_u32 v44, v{vLane}, 4, 1
v_lshl_add_u32 v46, v44, 3, v46
v_and_b32 v44, 1, v{vLane}
v_lshl_add_u32 v46, v44, 2, v46
v_bfe_u32 v44, v{vLane}, 3, 1
v_lshl_add_u32 v46, v44, 1, v46
v_bfe_u32 v44, v{vLane}, 1, 1
v_add_u32 v46, v46, v44
v_lshlrev_b32 v{cO}, 3, v46
v_add_u32 v{cG}, 4, v{cO}
v_add_u32 v{cO}, 2, v{cO}
""")

def kernel():
    A = Asm(OPT["stamps"])
    A.label(KB)
    A(f"""
s_cmp_ge_u32 s2, {NB}
s_cbranch_scc1 B_END
STAMP 0
CSTAMP 11
s_load_dwordx16 s[48:63], s[0:1], 0
s_load_dwordx4 s[96:99], s[0:1], 64
s_load_dwordx2 s[100:101], s[0:1], 80
s_memrealtime s[{sEx2}:{sEx2+1}]
v_lshrrev_b32 v1, 6, v0
v_and_b32 v{vLane}, 63, v0
v_readfirstlane_b32 s{sWave}, v1
s_mul_i32 s{sStart}, s2, 625
s_add_u32 s{sT}, s{sStart}, {625 + 15}
s_add_u32 s{sStart}, s{sStart}, 15
s_lshr_b32 s{sStart}, s{sStart}, 4
s_lshr_b32 s{sT}, s{sT}, 4
s_sub_u32 s{sNn}, s{sT}, s{sStart}
s_and_b32 s{sS6}, s{sStart}, 63
s_mul_i32 s{sXB}, s{sWave}, {XBS}
s_add_u32 s{sXB}, s{sXB}, {L_XB0}
s_mov_b32 s{sMode}, 0
s_mov_b32 s{sR}, 32
s_mov_b32 s{sLo}, 0
s_mov_b32 s{sCnt}, 0x400000
v_mov_b32 v{vdeg}, 0
v_mov_b32 v{chk}, 0
v_mov_b32 v{chk+1}, 0
v_mov_b32 v40, 0
v_mov_b32 v41, 0
v_mov_b32 v42, 0
v_mov_b32 v43, 0
v_lshlrev_b32 v2, 4, v{vTID}
v_cmp_gt_u32 vcc, 64, v{vTID}
s_and_saveexec_b64 s[{sEx}:{sEx+1}], vcc
ds_write_b128 v2, v[40:43] offset:{L_HIST}
s_mov_b64 exec, s[{sEx}:{sEx+1}]
v_cmp_gt_u32 vcc, 0x88, v{vTID}
s_and_saveexec_b64 s[{sEx}:{sEx+1}], vcc
v_lshrrev_b32 v3, 3, v{vTID}
v_and_b32 v4, 7, v{vTID}
v_lshrrev_b32 v5, 1, v3
v_and_b32 v6, 1, v3
v_lshlrev_b32 v6, 4, v6
v_mov_b32 v7, {BF_ONE:#x}
v_lshlrev_b32 v7, v6, v7
v_cmp_eq_u32 vcc, v4, v5
v_lshlrev_b32 v8, 2, v{vTID}
v_cndmask_b32 v7, 0, v7, vcc
v_add_u32 v8, {L_OHT}, v8
ds_write_b32 v8, v7
s_mov_b64 exec, s[{sEx}:{sEx+1}]
v_cmp_gt_u32 vcc, 16, v{vTID}
s_and_saveexec_b64 s[{sEx}:{sEx+1}], vcc
ds_write_b128 v2, v[40:43] offset:{L_FLAG}
s_mov_b64 exec, s[{sEx}:{sEx+1}]
s_waitcnt lgkmcnt(0)
s_barrier
STAMP 1
""")
    A(f"""
s_cmp_lg_u32 s2, 0
s_cbranch_scc1 A_NONONCE
s_cmp_lg_u32 s{sWave}, 0
s_cbranch_scc1 A_NONONCE
s_and_b32 s{sEx2+1}, s{sEx2+1}, 0xff
s_or_b32 s{sEx2+1}, s{sEx2+1}, 0x80000000
v_mov_b32 v4, s{sEx2}
v_mov_b32 v5, s{sEx2+1}
v_mov_b32 v3, 0
s_mov_b64 exec, 1
global_store_dwordx2 v3, v[4:5], s[{pDbg}:{pDbg+1}] sc1
s_mov_b64 exec, -1
""")
    A.label("A_NONONCE")
    srd(A, SO, pDst, N_EDGES * 4)
    srd(A, SP, pSrc, N_EDGES * 4)
    A(f"""
s_mul_i32 s{sT}, s2, {CH * 4}
v_add_u32 v3, 0x2000, v2
v_mov_b32 v4, 0x7ffffff0
v_cmp_gt_u32 vcc, {CH // 4 - 512}, v{vTID}
s_mov_b64 s[{sEx2}:{sEx2+1}], vcc
v_cndmask_b32 v3, v4, v3, vcc
buffer_load_dwordx4 v[40:43], v2, s[{SO}:{SO+3}], s{sT} offen
buffer_load_dwordx4 v[44:47], v2, s[{SP}:{SP+3}], s{sT} offen
buffer_load_dwordx4 v[48:51], v3, s[{SO}:{SO+3}], s{sT} offen
buffer_load_dwordx4 v[52:55], v3, s[{SP}:{SP+3}], s{sT} offen
""")
    A(f"""
v_lshlrev_b32 v11, 16, v{vTID}
v_add_u32 v12, {2048 << 14:#x}, v11
s_mov_b32 s{sT2}, 429497
STAMP 2
s_waitcnt vmcnt(0)
STAMP 3
""")
    def hist(base, dst, src, eid):
        for i in range(4): A(f"v_mul_u32_u24 v{base+i}, s{sT2}, v{dst+i}")
        for i in range(4): A(f"v_lshrrev_b32 v{base+i}, 22, v{base+i}")
        for i in range(4):
            A(f"v_and_b32 v{base+i}, 0x3fc, v{base+i}")
            A(f"ds_add_rtn_u32 v{base+8+i}, v{base+i}, v13 offset:{L_HIST}")
        for i in range(4):
            A(f"v_lshl_or_b32 v{dst+i}, v{dst+i}, 26, v{src+i}")
            A(f"v_add_u32 v{dst+i}, v{dst+i}, v{eid}")
            if i: A(f"v_add_u32 v{dst+i}, {i << 14:#x}, v{dst+i}")
    A("v_mov_b32 v13, 1")
    hist(56, 40, 44, 11)
    A(f"s_cmp_ge_u32 s{sWave}, 2")
    A("s_cbranch_scc1 A_H1")
    A(f"s_mov_b64 exec, s[{sEx2}:{sEx2+1}]")
    hist(60, 48, 52, 12)
    A("s_mov_b64 exec, -1")
    A.label("A_H1")
    srd(A, SO, pW1, 144 * 128 * 2)
    srd(A, SP, pX, N_NODES * 128)
    A(f"v_lshlrev_b32 v1, 4, v{vLane}")
    A(f"s_lshl_b32 s{sT2}, s{sWave}, 10")
    for j in range(5):
        A(f"s_add_u32 m0, s{sT2}, {L_WRAW + 8192*j}")
        A(f"s_add_u32 s{sT3}, s{sT2}, {8192*j}")
        A(f"buffer_load_dwordx4 v1, s[{SO}:{SO+3}], s{sT3} offen lds")
    A(f"""
s_lshr_b32 s{sT2}, s{sWave}, 2
s_lshl_b32 s{sT2}, s{sT2}, 5
s_add_u32 s{sT2}, s{sT2}, s{sStart}
v_and_b32 v5, 31, v{vLane}
v_lshrrev_b32 v6, 5, v{vLane}
v_add_u32 v7, s{sT2}, v5
v_lshlrev_b32 v7, 7, v7
v_lshl_add_u32 v7, v6, 4, v7
""")
    for s in range(4):
        A(f"buffer_load_dwordx4 v[{X+4*s}:{X+4*s+3}], v7, s[{SP}:{SP+3}], 0 offen offset:{32*s}")
    A(f"""
s_and_b32 s{sT3}, s{sWave}, 3
s_lshl_b32 s{sT3}, s{sT3}, 5
v_add_u32 v8, s{sT3}, v5
v_lshlrev_b32 v9, 1, v8
global_load_ushort v10, v9, s[{pB1}:{pB1+1}]
""")
    NST = 20 if OPT["estream"] == 2 else 0
    if NST:
        A(f"s_cmp_lt_u32 s{sWave}, 4")
        A("s_cbranch_scc1 A_NOSTREAM")
        srd(A, SP, pE, N_EDGES * 32)
        A(f"s_mul_i32 s{sT}, s2, {CH * 32}")
        A(f"s_sub_u32 s{sT2}, s{sWave}, 4")
        A(f"s_mul_i32 s{sT2}, s{sT2}, 20480")
        A(f"s_add_u32 s{sT}, s{sT}, s{sT2}")
        for j in range(NST):
            A(f"buffer_load_dwordx4 v[{F64}:{F64+3}], v1, s[{SP}:{SP+3}], s{sT} offen offset:{1024*(j % 4)}")
            if j % 4 == 3: A(f"s_add_u32 s{sT}, s{sT}, 4096")
        A.label("A_NOSTREAM")
    if OPT["estream"] == 3: estream(A, 0, OPT["es"][0], 247)
    A(f"""
s_waitcnt lgkmcnt(0)
s_barrier
v_lshlrev_b32 v14, 4, v{vLane}
ds_read_b128 v[72:75], v14 offset:{L_HIST}
v_mov_b32 v15, 0
s_cmp_lg_u32 s{sWave}, 0
s_cbranch_scc1 A_NOTAG0
global_load_dwordx2 v[16:17], v15, s[{pDbg}:{pDbg+1}] sc1
A_NOTAG0:
s_waitcnt lgkmcnt(0)
v_add_u32 v76, v72, v73
v_add_u32 v77, v76, v74
v_add_u32 v78, v77, v75
v_mov_b32 v79, v78
""")
    wave_scan(A, 79)
    A(f"""
v_sub_u32 v80, v79, v78
v_add_u32 v81, v80, v72
v_add_u32 v82, v80, v76
v_add_u32 v83, v80, v77
ds_write_b128 v14, v[80:83] offset:{L_BASE}
s_waitcnt lgkmcnt(0)
""")
    def place(addr, rank, rec):
        for i in range(4): A(f"ds_read_b32 v{addr+i}, v{addr+i} offset:{L_BASE}")
        for i in range(4):
            A(f"s_waitcnt lgkmcnt({3-i})")
            A(f"v_add_lshl_u32 v{addr+i}, v{addr+i}, v{rank+i}, 2")
            A(f"ds_write_b32 v{addr+i}, v{rec+i} offset:{L_SORT}")
    place(56, 64, 40)
    A(f"s_cmp_ge_u32 s{sWave}, 2")
    A("s_cbranch_scc1 A_H2")
    A(f"s_mov_b64 exec, s[{sEx2}:{sEx2+1}]")
    place(60, 68, 48)
    A("s_mov_b64 exec, -1")
    A.label("A_H2")
    srd(A, SW, pWs, WS_END)
    A(f"""
s_waitcnt lgkmcnt(0)
s_barrier
STAMP 4
s_cmp_ge_u32 s{sWave}, 4
s_cbranch_scc1 A_HELPER
ds_read_b128 v[40:43], v2 offset:{L_SORT}
ds_read_b128 v[44:47], v2 offset:{L_SORT + 4096}
ds_read_b128 v[48:51], v2 offset:{L_SORT + 8192}
s_mul_i32 s{sT}, s2, {CH * 4}
s_add_u32 s{sT}, s{sT}, {WS_REC}
s_add_u32 s{sT2}, s{sT}, 4096
s_waitcnt lgkmcnt(2)
buffer_store_dwordx4 v[40:43], v2, s[{SW}:{SW+3}], s{sT} offen sc1
s_waitcnt lgkmcnt(1)
buffer_store_dwordx4 v[44:47], v2, s[{SW}:{SW+3}], s{sT2} offen sc1
s_waitcnt lgkmcnt(0)
buffer_store_dwordx4 v[48:51], v3, s[{SW}:{SW+3}], s{sT} offen sc1
s_cmp_lg_u32 s{sWave}, 0
s_cbranch_scc1 A_DRAIN
""")
    A.label("A_NONCE")
    A(f"""
s_waitcnt vmcnt(0)
v_readfirstlane_b32 s{sTagLo}, v16
v_readfirstlane_b32 s{sTagB}, v17
s_cmp_lt_i32 s{sTagB}, 0
s_cbranch_scc1 A_HAVETAG
s_sub_u32 s{sCnt}, s{sCnt}, 1
s_cmp_eq_u32 s{sCnt}, 0
s_cbranch_scc1 B_END
s_sleep 1
global_load_dwordx2 v[16:17], v15, s[{pDbg}:{pDbg+1}] sc1
s_branch A_NONCE
""")
    A.label("A_HAVETAG")
    A(f"""
v_and_b32 v17, 0xff, v17
v_mov_b32 v15, {L_FLAG}
ds_write_b64 v15, v[16:17] offset:16
s_and_b32 s{sTagB}, s{sTagB}, 0xff
""")
    A.label("A_DRAIN")
    A("s_waitcnt vmcnt(0)")
    A("s_branch A_JOIN")
    A.label("A_HELPER")
    A(f"s_waitcnt vmcnt({NST})")
    A.label("A_JOIN")
    A(f"""
s_waitcnt lgkmcnt(0)
s_barrier
s_cmp_lg_u32 s{sWave}, 0
s_cbranch_scc1 A_PUBLISHED
s_lshl_b32 s{sT}, s{sTagB}, 24
v_mov_b32 v41, s{sTagLo}
v_mov_b32 v43, s{sTagLo}
v_mov_b32 v45, s{sTagLo}
v_mov_b32 v47, s{sTagLo}
v_lshl_or_b32 v40, v72, 12, v80
v_lshl_or_b32 v42, v73, 12, v81
v_lshl_or_b32 v44, v74, 12, v82
v_lshl_or_b32 v46, v75, 12, v83
v_or_b32 v40, s{sT}, v40
v_or_b32 v42, s{sT}, v42
v_or_b32 v44, s{sT}, v44
v_or_b32 v46, s{sT}, v46
v_lshlrev_b32 v14, 5, v{vLane}
s_lshl_b32 s{sT}, s2, 11
s_add_u32 s{sT}, s{sT}, {WS_TBL}
buffer_store_dwordx4 v[40:43], v14, s[{SW}:{SW+3}], s{sT} offen sc1
buffer_store_dwordx4 v[44:47], v14, s[{SW}:{SW+3}], s{sT} offen offset:16 sc1
""")
    A.label("A_PUBLISHED")
    A("STAMP 5")
    if OPT["estream"] == 3: estream(A, OPT["es"][0], OPT["es"][1], 247)
    A(f"v_mov_b32 v15, {L_FLAG}")
    A("ds_read_b64 v[16:17], v15 offset:16")
    A("s_waitcnt lgkmcnt(0)")
    A(f"v_readfirstlane_b32 s{sTagLo}, v16")
    A(f"v_readfirstlane_b32 s{sTagB}, v17")
    tr_addr(A, 14, L_WRAW, 256)
    A(f"""
s_lshr_b32 s{sT}, s{sWave}, 2
s_lshl_b32 s{sT}, s{sT}, 12
s_and_b32 s{sT2}, s{sWave}, 3
s_lshl_b32 s{sT2}, s{sT2}, 6
s_add_u32 s{sT}, s{sT}, s{sT2}
v_add_u32 v15, s{sT}, v14
v_add_u32 v16, s{sT2}, v14
""")
    for j, (reg, off) in enumerate(((15, 0), (15, 32 * 256), (16, 128 * 256))):
        A(f"ds_read_b64_tr_b16 v[{40+4*j}:{41+4*j}], v{reg} offset:{off}")
        A(f"ds_read_b64_tr_b16 v[{42+4*j}:{43+4*j}], v{reg} offset:{off + 1024}")
    for s in range(4):
        A(f"ds_read_b64_tr_b16 v[{D[0]+4*s}:{D[0]+4*s+1}], v16 offset:{(64 + 16*s) * 256}")
        A(f"ds_read_b64_tr_b16 v[{D[0]+4*s+2}:{D[0]+4*s+3}], v16 offset:{(64 + 16*s) * 256 + 1024}")
    A(f"s_mov_b32 s{sT3}, {f2u(SCALE):#x}")
    A("s_waitcnt lgkmcnt(8)")
    for j in range(12):
        A(f"v_lshlrev_b32 v17, 16, v{40+j}")
        A(f"v_and_b32 v18, 0xffff0000, v{40+j}")
        A(f"v_mul_f32 v17, s{sT3}, v17")
        A(f"v_mul_f32 v18, s{sT3}, v18")
        A(f"v_cvt_pk_bf16_f32 v{40+j}, v17, v18")
    A(f"""
v_lshlrev_b32 v17, 4, v{vLane}
s_lshl_b32 s{sT}, s{sWave}, 10
s_add_u32 s{sT}, s{sT}, {L_WST}
v_add_u32 v17, s{sT}, v17
""")
    for j in range(3):
        A(f"ds_write_b128 v17, v[{40+4*j}:{43+4*j}] offset:{8192*j}")
    A("s_waitcnt lgkmcnt(3)")
    for s in range(4):
        A(f"v_mfma_f32_32x32x16_bf16 v[{D[1]}:{D[1]+15}], v[{X+4*s}:{X+4*s+3}], v[{D[0]+4*s}:{D[0]+4*s+3}], {'0' if s == 0 else f'v[{D[1]}:{D[1]+15}]'}")
    A(f"""
v_lshlrev_b32 v10, 16, v10
v_mul_f32 v10, s{sT3}, v10
v_mul_u32_u24 v9, {QSTR}, v8
s_lshr_b32 s{sT}, s{sWave}, 2
s_lshl_b32 s{sT}, s{sT}, 6
v_lshl_add_u32 v9, v6, 3, v9
v_add_u32 v9, s{sT}, v9
""")
    for j in range(16): A(f"v_fma_f32 v{D[1]+j}, v{D[1]+j}, s{sT3}, v10")
    for g in range(4):
        A(f"v_cvt_pk_bf16_f32 v{X+2*g}, v{D[1]+4*g}, v{D[1]+4*g+1}")
        A(f"v_cvt_pk_bf16_f32 v{X+2*g+1}, v{D[1]+4*g+2}, v{D[1]+4*g+3}")
    for g in range(2):
        A(f"ds_write_b64 v9, v[{X+2*g}:{X+2*g+1}] offset:{L_QT + 16*g}")
    A(f"s_cmp_ge_u32 s{sWave}, 4")
    A(f"s_cbranch_scc1 B_QDONE")
    for g in range(2, 4):
        A(f"ds_write_b64 v9, v[{X+2*g}:{X+2*g+1}] offset:{L_QT + 16*g}")
    A.label("B_QDONE")
    A(f"""
s_waitcnt lgkmcnt(0)
s_barrier
v_lshlrev_b32 v1, 4, v{vLane}
v_add_u32 v1, {L_WST}, v1
""")
    for u in range(16): A(f"ds_read_b128 v[{W+4*u}:{W+4*u+3}], v1 offset:{1024*u}")
    for c in range(4): A(f"ds_read_b128 v[{We+4*c}:{We+4*c+3}], v1 offset:{1024*(16+c)}")
    if OPT["xwarm"]:
        srd(A, SP, pX, N_NODES * 128)
        A(f"""
s_lshr_b32 s{sT}, s2, 3
s_mul_i32 s{sT}, s{sT}, 40000
s_mul_i32 s{sT2}, s{sWave}, 5000
s_add_u32 s{sT}, s{sT}, s{sT2}
v_lshlrev_b32 v2, 4, v{vLane}
""")
        for j in range(5):
            A(f"buffer_load_dwordx4 v[{F64}:{F64+3}], v2, s[{SP}:{SP+3}], s{sT} offen offset:{min(1024*j, 4095) if j < 4 else 0}")
            if j == 3: A(f"s_add_u32 s{sT}, s{sT}, 4096")
    if OPT["ewarm"]:
        srd(A, SP, pE, N_EDGES * 32)
        A(f"v_mul_u32_u24 v2, 40000, v{vTID}")
        A(f"buffer_load_dword v{F64+4}, v2, s[{SP}:{SP+3}], 0 offen")
    fill_lists(A)
    zero_s(A)
    srd(A, SX, pX, N_NODES, stride=128)
    srd(A, SE, pE, N_EDGES, stride=32)
    lane_consts(A)
    A(f"""
v_lshrrev_b32 v4, 1, v{vTID}
v_lshlrev_b32 v4, 11, v4
s_lshl_b32 s{sT}, s2, 3
s_add_u32 s{sT}, s{sT}, {WS_TBL}
s_mov_b32 s{sCnt}, 0x400000
STAMP 6
""")
    A.label("B_POLL")
    A(f"""
buffer_load_dwordx2 v[{vTbl}:{vTbl+1}], v4, s[{SW}:{SW+3}], s{sT} offen sc1
s_waitcnt vmcnt(0)
v_lshrrev_b32 v5, 24, v{vTbl}
v_cmp_ne_u32 vcc, s{sTagLo}, v{vTbl+1}
v_cmp_ne_u32 s[{sEx}:{sEx+1}], s{sTagB}, v5
s_or_b64 vcc, vcc, s[{sEx}:{sEx+1}]
s_and_b64 exec, exec, vcc
s_cbranch_execz B_POLLED
s_sub_u32 s{sCnt}, s{sCnt}, 1
s_cmp_eq_u32 s{sCnt}, 0
s_cbranch_scc1 B_END
s_sleep 2
s_branch B_POLL
""")
    A.label("B_POLLED")
    A("s_mov_b64 exec, -1")
    A("STAMP 7")
    A.label("B_ROUND")
    A(f"""
v_bfe_u32 v{vLim}, v{vTbl}, 12, 12
v_mov_b32 v245, v{vLim}
v_subrev_u32 v{vLim}, s{sLo}, v{vLim}
v_min_i32 v{vLim}, s{sR}, v{vLim}
v_and_b32 v{vT}, 1, v{vTID}
v_lshlrev_b32 v{vT}, 2, v{vT}
v_sub_u32 v{vLim}, v{vLim}, v{vT}
v_and_b32 v{tmp}, 0xfff, v{vTbl}
v_add3_u32 v{tmp}, v{tmp}, v{vC25}, v{vT}
v_add_u32 v{tmp}, s{sLo}, v{tmp}
v_lshlrev_b32 v{tmp}, 2, v{tmp}
v_mov_b32 v{tmp2+1}, 0x7ffffff0
s_mov_b32 s{sT}, {WS_REC}
""")
    for g in range(4):
        A(f"v_cmp_lt_i32 vcc, {8*g}, v{vLim}")
        A(f"v_cndmask_b32 v{tmp2}, v{tmp2+1}, v{tmp}, vcc")
        A(f"buffer_load_dwordx4 v[{R+4*g}:{R+4*g+3}], v{tmp2}, s[{SW}:{SW+3}], s{sT} offen offset:{32*g} sc1")
    if OPT["estream"] == 1:
        A(f"s_cmp_lg_u32 s{sLo}, 0")
        A("s_cbranch_scc1 B_NOSTREAM")
        srd(A, SP, pE, N_EDGES * 32)
        A(f"s_mul_i32 s{sT}, s2, {CH * 32}")
        A(f"s_mul_i32 s{sT2}, s{sWave}, 10240")
        A(f"s_add_u32 s{sT}, s{sT}, s{sT2}")
        A(f"v_lshlrev_b32 v247, 4, v{vLane}")
        for j in range(10):
            A(f"buffer_load_dwordx4 v[{F64}:{F64+3}], v247, s[{SP}:{SP+3}], s{sT} offen offset:{1024*(j % 4)}")
            if j % 4 == 3: A(f"s_add_u32 s{sT}, s{sT}, 4096")
        A("s_waitcnt lgkmcnt(0)")
        A("s_barrier")
        A(f"v_mov_b32 v246, {L_FLAG}")
        A("ds_max_u32 v246, v245")
        A(f"v_mov_b32 v{vT}, 1")
        for j in range(16): A(f"v_mov_b32 v{A4+j}, 0")
        A("s_waitcnt vmcnt(10)")
        A("s_branch B_RECIN")
        A.label("B_NOSTREAM")
    A(f"""
s_waitcnt lgkmcnt(0)
s_barrier
v_mov_b32 v246, {L_FLAG}
ds_max_u32 v246, v245
v_mov_b32 v{vT}, 1
""")
    for j in range(16): A(f"v_mov_b32 v{A4+j}, 0")
    A("s_waitcnt vmcnt(0)")
    A.label("B_RECIN")
    if OPT["estream"] == 3 and OPT["es"][2]:
        A(f"s_cmp_lg_u32 s{sLo}, 0")
        A("s_cbranch_scc1 B_NOSTREAM3")
        estream(A, OPT["es"][0] + OPT["es"][1], OPT["es"][2], 247)
        A.label("B_NOSTREAM3")
    def count_body(g, i):
        j = 4 * g + i
        A(f"v_lshrrev_b32 v{A4+j}, 24, v{R+j}")
        A(f"v_and_b32 v{A4+j}, 0xfc, v{A4+j}")
        A(f"ds_add_rtn_u32 v{RK+j}, v{A4+j}, v{vT} offset:{L_CNT}")
    sort_slots(A, count_body, range(4), "B_COUNTED")
    A.label("B_COUNTED")
    A(f"""
s_mov_b64 exec, -1
s_waitcnt lgkmcnt(0)
s_barrier
STAMP 8
v_mov_b32 v{tmp2}, 0
ds_read_b32 v{tmp}, v{vN6} offset:{L_CNT}
ds_read_b32 v{tmp2}, v{tmp2} offset:{L_FLAG}
v_cmp_gt_u32 vcc, s{sNn}, v{vLane}
s_waitcnt lgkmcnt(0)
v_readfirstlane_b32 s{sMax}, v{tmp2}
v_add_u32 v{NT}, 3, v{tmp}
v_lshrrev_b32 v{NT}, 2, v{NT}
v_max_u32 v{NT}, 1, v{NT}
v_cndmask_b32 v{NT}, 0, v{NT}, vcc
v_mov_b32 v{NT+1}, v{NT}
""")
    wave_scan(A, NT + 1)
    A(f"""
v_readlane_b32 s{sTot}, v{NT+1}, 63
v_sub_u32 v{NT+4}, v{NT+1}, v{NT}
v_lshlrev_b32 v{NT+4}, 2, v{NT+4}
v_mov_b32 v{NT+5}, v{vOhp}
v_lshlrev_b32 v{NT+6}, 10, v{vLane}
s_cmp_gt_u32 s{sTot}, {CAPQ}
s_cbranch_scc1 B_OVERFLOW
s_and_saveexec_b64 s[{sEx}:{sEx+1}], vcc
v_add_u32 v{vdeg}, v{vdeg}, v{tmp}
v_lshlrev_b32 v{tmp}, 2, v{vN6}
ds_write_b96 v{tmp}, v[{NT+4}:{NT+6}] offset:{L_NTAB}
ds_write_b32 v{NT+4}, v{NT+6} offset:{L_QADDR}
s_mov_b64 exec, s[{sEx}:{sEx+1}]
v_mov_b32 v{vT}, {L_LIST}
s_mov_b32 s{sT4}, 0x3fff
s_waitcnt lgkmcnt(0)
""")
    def scatter_batch(groups, tag):
        for n, g in enumerate(groups):
            for i in range(4):
                j = 4 * g + i; t = NT + 4 * (4 * n + i)
                A(f"v_lshlrev_b32 v{tmp}, 2, v{A4+j}")
                A(f"ds_read_b96 v[{t}:{t+2}], v{tmp} offset:{L_NTAB}")
        A("s_waitcnt lgkmcnt(0)")
        def body(g, i):
            j = 4 * g + i; t = NT + 4 * (4 * groups.index(g) + i)
            A(f"v_add_u32 v{t}, v{t}, v{RK+j}")
            A(f"v_and_or_b32 v{tmp2}, v{R+j}, s{sT4}, v{t+1}")
            A(f"v_bfe_u32 v{tmp2+1}, v{R+j}, 14, 12")
            A(f"v_lshl_add_u32 v{t+3}, v{t}, 3, v{vT}")
            A(f"v_add_u32 v{tmp2+1}, v{vC25}, v{tmp2+1}")
            A(f"v_and_b32 v{t}, -4, v{t}")
            A(f"ds_write_b64 v{t+3}, v[{tmp2}:{tmp2+1}]")
            A(f"ds_write_b32 v{t}, v{t+2} offset:{L_QADDR}")
        sort_slots(A, body, groups, tag)
    scatter_batch([0, 1], "B_SC1")
    A.label("B_SC1")
    A(f"""
s_mov_b64 exec, -1
v_cmp_lt_i32 vcc, 16, v{vLim}
s_cbranch_vccz B_SC3
""")
    scatter_batch([2], "B_SC2")
    A.label("B_SC2")
    A(f"""
s_mov_b64 exec, -1
v_cmp_lt_i32 vcc, 24, v{vLim}
s_cbranch_vccz B_SC3
""")
    scatter_batch([3], "B_SC3")
    A.label("B_SC3")
    A("s_mov_b64 exec, -1")
    A(f"""
s_add_u32 s{sT}, s{sTot}, 7
s_lshr_b32 s{sT}, s{sT}, 3
s_lshr_b32 s{sT2}, s{sT}, 3
s_and_b32 s{sT3}, s{sT}, 7
s_mul_i32 s{sT0}, s{sT2}, s{sWave}
s_min_u32 s{sN}, s{sWave}, s{sT3}
s_add_u32 s{sT0}, s{sT0}, s{sN}
s_cmp_lt_u32 s{sWave}, s{sT3}
s_cselect_b32 s{sN}, 1, 0
s_add_u32 s{sN}, s{sN}, s{sT2}
s_mul_i32 s{sT}, s{sT0}, {TB}
s_add_u32 s{sT}, s{sT}, {L_LIST}
v_add_u32 v{aX}, s{sT}, v{cX}
v_add_u32 v{aG}, s{sT}, v{cG}
v_add_u32 v{aO}, s{sT}, v{cO}
s_lshl_b32 s{sT}, s{sT0}, 5
s_add_u32 s{sT}, s{sT}, {L_QADDR}
v_mov_b32 v{aN}, s{sT}
v_add_u32 v{aQ}, s{sT}, v{v16h}
s_waitcnt lgkmcnt(0)
s_barrier
STAMP 12
s_cmp_eq_u32 s{sN}, 0
s_cbranch_scc1 B_LOOPEND
s_cmp_lg_u32 s{sMode}, 0
s_cbranch_scc1 B_SAFE
""")
    main_loop(A, True)
    A.label("B_SAFE")
    main_loop(A, False)
    A.label("B_LOOPEND")
    A(f"""
s_setprio 0
STAMP 10
CSTAMP 14
s_waitcnt vmcnt(0)
""")
    srd(A, SO, pW2, 128 * 64 * 2)
    A(f"v_lshlrev_b32 v{tmp}, 4, v{vLane}")
    A(f"s_lshl_b32 s{sT}, s{sWave}, 11")
    for j in range(2):
        A(f"s_add_u32 m0, s{sXB}, {1024*j}")
        A(f"s_add_u32 s{sT2}, s{sT}, {1024*j}")
        A(f"buffer_load_dwordx4 v{tmp}, s[{SO}:{SO+3}], s{sT2} offen lds")
    A(f"""
v_lshrrev_b32 v3, 5, v{vLane}
s_and_b32 s{sT}, s{sWave}, 1
s_lshl_b32 s{sT}, s{sT}, 6
v_lshlrev_b32 v4, 3, v3
v_add_u32 v4, s{sT}, v4
""")
    for g in range(4):
        A(f"global_load_dwordx2 v[{Qx+8+2*g}:{Qx+8+2*g+1}], v4, s[{pB2}:{pB2+1}] offset:{16*g}")
    A(f"""
s_waitcnt vmcnt(0) lgkmcnt(0)
s_barrier
s_add_u32 s{sLo}, s{sLo}, s{sR}
s_cmp_ge_u32 s{sLo}, s{sMax}
s_cbranch_scc1 B_FINISH
""")
    fill_lists(A)
    A("s_branch B_ROUND")
    A.label("B_OVERFLOW")
    A(f"s_mov_b32 s{sR}, 8")
    A.label("B_RESTART")
    A(f"""
s_barrier
s_mov_b32 s{sLo}, 0
v_mov_b32 v{vdeg}, 0
v_mov_b32 v{chk}, 0
v_mov_b32 v{chk+1}, 0
""")
    fill_lists(A)
    zero_s(A)
    A("s_branch B_ROUND")
    A.label("B_FINISH")
    SB = L_LIST
    A(f"""
v_mov_b32 v5, 0x71800000
v_cmp_nlt_f32 vcc, v{chk}, v5
v_cmp_nlt_f32 s[{sEx}:{sEx+1}], v{chk+1}, v5
s_or_b64 vcc, vcc, s[{sEx}:{sEx+1}]
v_lshlrev_b32 v6, 2, v{vLane}
ds_write_b32 v6, v{vdeg} offset:{L_DEG}
v_lshlrev_b32 v{tmp}, 4, v{vTID}
""")
    for j in range(5):
        A(f"ds_read_b128 v[{E+4*j}:{E+4*j+3}], v{tmp} offset:{L_S + 8192*j}")
    A(f"""
v_lshrrev_b32 v7, 6, v{vTID}
v_mul_u32_u24 v7, {SBSTR}, v7
v_and_b32 v8, 63, v{vTID}
v_lshl_add_u32 v7, v8, 2, v7
v_add_u32 v7, {SB}, v7
v_mov_b32 v9, {f2u(1.0 / SCALE):#x}
v_mov_b32 v10, 0
s_waitcnt lgkmcnt(0)
""")
    for j in range(10): A(f"v_cvt_f32_f64 v{D[1]+j}, v[{E+2*j}:{E+2*j+1}]")
    for j in range(10): A(f"v_mul_f32 v{D[1]+j}, v9, v{D[1]+j}")
    for j in range(10): A(f"v_fmac_f32 v10, 0, v{D[1]+j}")
    A(f"v_cmp_u_f32 s[{sEx}:{sEx+1}], v10, v10")
    A(f"s_or_b64 vcc, vcc, s[{sEx}:{sEx+1}]")
    for j in range(5):
        A(f"v_cvt_pk_bf16_f32 v{E+j}, v{D[1]+2*j}, v{D[1]+2*j+1}")
        A(f"ds_write_b32 v7, v{E+j} offset:{8*SBSTR*j}")
    A(f"""
s_cmp_eq_u64 vcc, 0
s_cbranch_scc1 B_NOFLAG
v_mov_b32 v5, {L_FLAG}
v_mov_b32 v6, 1
ds_write_b32 v5, v6 offset:4
""")
    A.label("B_NOFLAG")
    A(f"""
s_waitcnt lgkmcnt(0)
s_barrier
v_mov_b32 v5, {L_FLAG}
ds_read_b32 v6, v5 offset:4
s_waitcnt lgkmcnt(0)
v_readfirstlane_b32 s{sT}, v6
s_cmp_lg_u32 s{sMode}, 0
s_cbranch_scc1 B_OUT
s_cmp_eq_u32 s{sT}, 0
s_cbranch_scc1 B_OUT
s_mov_b32 s{sMode}, 1
""")
    lane_consts(A)
    A("s_branch B_RESTART")
    A.label("B_OUT")
    A(f"""
s_cmp_ge_u32 s{sWave}, 4
s_cbranch_scc1 {"B_FLUSH" if OPT["stamps"] else "B_END"}
s_lshr_b32 s{sT}, s{sWave}, 1
s_lshl_b32 s{sT}, s{sT}, 5
v_and_b32 v2, 31, v{vLane}
v_add_u32 v2, s{sT}, v2
v_mul_u32_u24 v5, {SBSTR}, v2
v_lshl_add_u32 v5, v3, 4, v5
v_add_u32 v5, {SB}, v5
v_lshlrev_b32 v6, 2, v2
ds_read_b32 v7, v6 offset:{L_DEG}
""")
    for s in range(8):
        A(f"ds_read_b128 v[{X+4*s}:{X+4*s+3}], v5 offset:{32*s}")
    tr_addr(A, 11, L_XB0, 128)
    A(f"s_and_b32 s{sT}, s{sWave}, 1")
    A(f"s_lshl_b32 s{sT}, s{sT}, 6")
    A(f"v_add_u32 v11, s{sT}, v11")
    wf = lambda s: (E + 4 * s) if s < 4 else (D[1] + 4 * (s - 4))
    for s in range(8):
        A(f"ds_read_b64_tr_b16 v[{wf(s)}:{wf(s)+1}], v11 offset:{XBS*s}")
        A(f"ds_read_b64_tr_b16 v[{wf(s)+2}:{wf(s)+3}], v11 offset:{XBS*s + 512}")
    srd(A, SO, pOut, N_NODES * 128)
    A("s_waitcnt lgkmcnt(0)")
    d = D[0]
    for s in range(8):
        A(f"v_mfma_f32_32x32x16_bf16 v[{d}:{d+15}], v[{wf(s)}:{wf(s)+3}], v[{X+4*s}:{X+4*s+3}], {'0' if s == 0 else f'v[{d}:{d+15}]'}")
    B2 = Qx + 8
    A(f"""
v_cvt_f32_u32 v7, v7
v_add_u32 v8, s{sStart}, v2
v_lshlrev_b32 v8, 7, v8
v_add_u32 v8, v8, v4
v_cmp_gt_u32 vcc, s{sNn}, v2
""")
    for g in range(4):
        A(f"v_lshlrev_b32 v{TU[0]+4*g}, 16, v{B2+2*g}")
        A(f"v_and_b32 v{TU[0]+4*g+1}, 0xffff0000, v{B2+2*g}")
        A(f"v_lshlrev_b32 v{TU[0]+4*g+2}, 16, v{B2+2*g+1}")
        A(f"v_and_b32 v{TU[0]+4*g+3}, 0xffff0000, v{B2+2*g+1}")
    for j in range(16):
        A(f"v_fma_f32 v{d+j}, v7, v{TU[0]+j}, v{d+j}")
    A(f"s_and_saveexec_b64 s[{sEx}:{sEx+1}], vcc")
    for g in range(4):
        A(f"v_cvt_pk_bf16_f32 v{E+2*g}, v{d+4*g}, v{d+4*g+1}")
        A(f"v_cvt_pk_bf16_f32 v{E+2*g+1}, v{d+4*g+2}, v{d+4*g+3}")
        A(f"buffer_store_dwordx2 v[{E+2*g}:{E+2*g+1}], v8, s[{SO}:{SO+3}], 0 offen offset:{16*g}")
    if OPT["stamps"]:
        A.label("B_FLUSH")
        A("s_waitcnt vmcnt(0)")
        A("STAMP 12" if False else "STAMP 15")
        stamp_flush(A, 16)
    A.label("B_END")
    A("s_endpgm")
    A.pad()
    for tag in "FS":
        bad = A.check_loop(f"B_LOOP{tag}", f"s_cbranch_scc0 B_LOOP{tag}")
        assert not bad, bad
    return A

def main(path):
    k = kernel()
    hdr = open("cdna_kernels/" + NAME + ".s.ref").read().split("; Override launch geometry")[0]
    s = hdr
    s += "; One workgroup per CU: workgroup c sorts edge chunk c by destination bucket, then processes bucket c.\n"
    s += f"; @launch grid=({NB},1,1) block=(512,1,1) lds={LDS_B}\n"
    s += '.amdgcn_target "amdgcn-amd-amdhsa--gfx950"\n.text\n'
    s += f".globl {KB}\n.p2align 8\n.type {KB},@function\n" + k.text()
    acc = (NVGPR + 3) // 4 * 4
    s += f""".section .rodata,"a"
.p2align 6
.amdhsa_kernel {KB}
  .amdhsa_next_free_vgpr {NVGPR}
  .amdhsa_next_free_sgpr 102
  .amdhsa_accum_offset {acc}
  .amdhsa_group_segment_fixed_size 0
  .amdhsa_kernarg_size 88
  .amdhsa_user_sgpr_count 2
  .amdhsa_user_sgpr_kernarg_segment_ptr 1
  .amdhsa_system_sgpr_workgroup_id_x 1
.end_amdhsa_kernel
"""
    open(path, "w").write(s)

if __name__ == "__main__":
    main(OPT["out"] or "cdna_kernels/" + NAME + ".s")
```

```python
import sys, struct
from asmlib import Asm

NAME = "gather_scatter__edge_featured_mpnn_mpnn__graph"
KB = NAME + "_kernel"
N_NODES = 10000; N_EDGES = 640000; NB = 256; CH = 2500
WS_TBL = 0; WS_REC = NB * NB * 8; WS_END = WS_REC + N_EDGES * 4 + 4096
BF_ONE = 0x3F80
SCALE = -1.4426950408889634
def f2u(x): return struct.unpack("<I", struct.pack("<f", x))[0]

OPT = dict(prio=True, stamps=False, noadd=False, nodma=False, nomfma=False, novalu=False, xwarm=False, ewarm=False, psched=((2, 1), (1, 0)), estream=0, es=(4, 3, 3), touch=False, es2='', stagger=True, seqform=True, dmaspread=True, late=False, prime2=True, out=None)
for a in sys.argv[1:]:
    if "=" in a:
        k, v = a.split("=", 1); OPT[k] = eval(v)

L_S = 0; L_CNT = 40960; L_NTAB = 41216; L_DEG = 42240; L_FLAG = 42496; L_QT = 42752
L_QADDR = 57088; L_QEND = 60416; L_OHT = 65024; L_OHZ = 65536; L_XB0 = 65792; XBS = 6144
L_LIST = L_XB0 + 8 * XBS; LIST_BYTES = 25600; L_Z = L_LIST + LIST_BYTES; LDS_B = L_Z + 20480
L_HIST = 0; L_BASE = 1024; L_SORT = 2048; L_WRAW = L_XB0; L_XROW = L_XB0 + 40960; L_WST = L_Z
L_W2 = L_Z
QSTR = 112; CAPQ = 768; SBSTR = 272
TB = 256

vTID = 0
aX, aG, aO, aQ, aN = 1, 2, 3, 4, 5
xr = [6, 7, 8, 9]; eAddr = 10; vQ = 11; qbase = 12; c1 = 13; lanecol = 14; ohaddr = 15
xi = [16, 18, 20, 22]; ei = 24; node0 = 26; tmp = 27; chk = 28; tmp2 = 30
qa = [32, 36]
E = 40; D = [56, 72]; X = 88; Ea = 104; OH = 108; Qx = 112; We = 128; W = 144
vTbl = 208; vdeg = 210; vLane = 211; vN6 = 212; vOhp = 213; vC25 = 214; vLim = 215
TU = [216, 224]; F64 = 232; vT = 240; v16h = 241
cX, cG, cO = 242, 243, 244
vB2 = 248
NVGPR = 256
R = 40; RK = 56; A4 = 72; NT = 88

SX = 4; SE = 8; SW = 12; SO = 16; SP = 20
sEx = 24; sEx2 = 26; sT = 28; sT2 = 29; sT3 = 30; sT4 = 31
sWave = 32; sStart = 33; sNn = 34; sS6 = 35; sXB = 36; sN = 37; sT0 = 38; sMode = 39
sR = 40; sLo = 41; sMax = 42; sTagLo = 43; sTot = 44; sTagB = 45; sCnt = 46
pX, pE, pSrc, pDst, pW1, pB1, pW2, pB2 = 48, 50, 52, 54, 56, 58, 60, 62
pOut, pDbg, pWs = 96, 98, 100
WS_STAMP = 8 << 20

def srd(A, d, base, size, stride=0):
    A(f"s_mov_b32 s{d}, s{base}")
    A(f"s_and_b32 s{d+1}, s{base+1}, 0xffff")
    if stride: A(f"s_or_b32 s{d+1}, s{d+1}, {stride << 16:#x}")
    A(f"s_mov_b32 s{d+2}, {size}")
    A(f"s_mov_b32 s{d+3}, 0x20000")

def stamp_flush(A, n):
    if not OPT["stamps"]: return
    A("s_waitcnt vmcnt(0) lgkmcnt(0)")
    A("s_mov_b64 exec, -1")
    A(f"s_lshl_b32 s{sT}, s2, 4")
    A(f"s_add_u32 s{sT}, s{sT}, s{sWave}")
    A(f"s_lshl_b32 s{sT}, s{sT}, 6")
    A(f"s_add_u32 s{sT}, s{sT}, {WS_STAMP}")
    A(f"s_add_u32 s{sEx}, s{pWs}, s{sT}")
    A(f"s_addc_u32 s{sEx+1}, s{pWs+1}, 0")
    A("v_mov_b32 v1, 0")
    for i in range(n):
        A(f"v_mov_b32 v2, s{64+2*i}")
        A(f"global_store_dword v1, v2, s[{sEx}:{sEx+1}] offset:{4*i}")
    A("s_waitcnt vmcnt(0)")

def wave_scan(A, v):
    for sh in (1, 2, 4, 8):
        A(f"v_add_u32_dpp v{v}, v{v}, v{v} row_shr:{sh} row_mask:0xf bank_mask:0xf")
    A(f"v_add_u32_dpp v{v}, v{v}, v{v} row_bcast:15 row_mask:0xa bank_mask:0xf")
    A(f"v_add_u32_dpp v{v}, v{v}, v{v} row_bcast:31 row_mask:0xc bank_mask:0xf")

def fill_lists(A):
    A(f"v_lshlrev_b32 v{tmp}, 4, v{vTID}")
    A(f"v_add_u32 v{tmp2}, {L_LIST}, v{tmp}")
    for i in range(4): A(f"v_mov_b32 v{E+i}, -1")
    for i in range(4): A(f"v_mov_b32 v{E+4+i}, 0")
    for j in range(3):
        A(f"ds_write_b128 v{tmp2}, v[{E}:{E+3}] offset:{8192*j}")
    A(f"v_cmp_gt_u32 vcc, {(L_QEND - L_QADDR) // 16}, v{vTID}")
    A(f"s_and_saveexec_b64 s[{sEx}:{sEx+1}], vcc")
    A(f"ds_write_b128 v{tmp}, v[{E+4}:{E+7}] offset:{L_QADDR}")
    A(f"v_cmp_gt_u32 vcc, {(LIST_BYTES - 3 * 8192) // 16}, v{vTID}")
    A(f"s_and_b64 exec, exec, vcc")
    A(f"ds_write_b128 v{tmp2}, v[{E}:{E+3}] offset:{8192*3}")
    A(f"v_cmp_gt_u32 vcc, 16, v{vTID}")
    A(f"s_and_b64 exec, exec, vcc")
    A(f"ds_write_b128 v{tmp}, v[{E+4}:{E+7}] offset:{L_CNT}")
    A(f"s_mov_b64 exec, s[{sEx}:{sEx+1}]")

def zero_s(A):
    for j in range(5):
        A(f"ds_write_b128 v{tmp}, v[{E+4}:{E+7}] offset:{L_S + 8192*j}")

def chain(c, d):
    q = lambda r: f"v[{r}:{r+3}]"
    dd = f"v[{d}:{d+15}]"
    M = []
    for s in range(4):
        M.append(f"v_mfma_f32_32x32x16_bf16 {dd}, {q(X+4*s)}, {q(W+16*s+4*c)}, {'0' if s == 0 else dd}")
    M.append(f"v_mfma_f32_32x32x16_bf16 {dd}, {q(Ea)}, {q(We+4*c)}, {dd}")
    M.append(f"v_mfma_f32_32x32x16_bf16 {dd}, {q(OH)}, {q(Qx+4*c)}, {dd}")
    return M

def dma_x(A):
    for i in range(4):
        A(f"s_add_u32 m0, s{sXB}, {1024*i}")
        A(f"s_nop 0")
        A(f"buffer_load_dwordx4 v[{xi[i]}:{xi[i]+1}], s[{SX}:{SX+3}], 0 idxen offen lds")
def dma_e(A, slot):
    A(f"s_add_u32 m0, s{sXB}, {4096 + 1024*slot}")
    A(f"s_nop 0")
    A(f"buffer_load_dwordx4 v[{ei}:{ei+1}], s[{SE}:{SE+3}], 0 idxen offen lds")
def read_xidx(k): return [f"ds_read_u16 v{xi[i]}, v{aX} offset:{TB*k + 8*[0,2,8,10][i]}" for i in range(4)]
def read_eidx(k): return [f"ds_read_b32 v{ei}, v{aG} offset:{TB*k}"]
def read_a(eslot):
    L = [f"ds_read_b128 v[{X+4*s}:{X+4*s+3}], v{xr[s]}" for s in range(4)]
    L.append(f"ds_read_b128 v[{Ea}:{Ea+3}], v{eAddr} offset:{1024*eslot}")
    L.append(f"ds_read_b128 v[{OH}:{OH+3}], v{ohaddr} offset:1")
    return L
def read_q(c): return f"ds_read_b128 v[{Qx+4*c}:{Qx+4*c+3}], v{vQ} offset:{32*QSTR*c}"
def calc_vq():
    return [f"v_add_u32 v{tmp}, v{node0}, v{c1}", f"v_lshrrev_b32 v{tmp}, 14, v{tmp}",
            f"v_lshl_add_u32 v{vQ}, v{tmp}, 5, v{qbase}", f"v_add_u32 v{ohaddr}, v{ohaddr}, v{v16h}"]
def read_meta(k, par):
    return [f"ds_read_b128 v[{qa[par]}:{qa[par]+3}], v{aQ} offset:{32*k}",
            f"ds_read_b32 v{node0}, v{aN} offset:{32*k}",
            f"ds_read_u16 v{ohaddr}, v{aO} offset:{TB*k}"]

def pk_list(d, c):
    e = E; p = lambda r: f"v[{r}:{r+1}]"
    T = TU[c & 1]; U = T + 4; Tp = TU[(c + 1) & 1]; Up = Tp + 4
    L = []
    if OPT["seqform"]:
        oct_ = ((0, 0), (8, 2))
        for o, j in oct_: L.append(f"v_pk_mul_f32 {p(Up+j)}, {p(Up+j)}, {p(Tp+j)}")
        for o, j in oct_: L.append(f"v_pk_fma_f32 {p(d+o)}, {p(d+o)}, {p(e+o+2)}, {p(d+o)}")
        for o, j in oct_: L.append(f"v_pk_add_f32 {p(e+o)}, {p(e+o)}, 1.0 op_sel_hi:[1,0]")
        for k in (1, 2, 3):
            last = k == 3
            if k > 1:
                for o, j in oct_: L.append(f"v_pk_fma_f32 {p(d+o)}, {p(d+o)}, {p(e+o+2*k)}, {p(d+o)}")
            for o, j in oct_: L.append(f"v_pk_fma_f32 {p(U+j) if last else p(d+o)}, {p(d+o+2*k)}, {p(e+o)}, {p(d+o)}")
            for o, j in oct_: L.append(f"v_pk_fma_f32 {p(T+j) if last else p(e+o)}, {p(e+o)}, {p(e+o+2*k)}, {p(e+o)}")
        L.append(f"v_pk_fma_f32 {p(chk)}, {p(T)}, {p(T+2)}, {p(chk)}")
        return L
    for o, j in ((0, 0), (8, 2)):
        L.append(f"v_pk_mul_f32 {p(Up+j)}, {p(Up+j)}, {p(Tp+j)}")
    for o in (0, 8):
        L.append(f"v_pk_add_f32 {p(e+o+2)}, {p(e+o+2)}, 1.0 op_sel_hi:[1,0]")
        L.append(f"v_pk_add_f32 {p(e+o+6)}, {p(e+o+6)}, 1.0 op_sel_hi:[1,0]")
    for o in (0, 8):
        L.append(f"v_pk_fma_f32 {p(d+o)}, {p(d+o)}, {p(e+o+2)}, {p(d+o+2)}")
        L.append(f"v_pk_fma_f32 {p(d+o+4)}, {p(d+o+4)}, {p(e+o+6)}, {p(d+o+6)}")
    for o in (0, 8):
        L.append(f"v_pk_fma_f32 {p(d+o)}, {p(d+o+2)}, {p(e+o)}, {p(d+o)}")
        L.append(f"v_pk_fma_f32 {p(d+o+4)}, {p(d+o+6)}, {p(e+o+4)}, {p(d+o+4)}")
    for o in (0, 8):
        L.append(f"v_pk_fma_f32 {p(e+o)}, {p(e+o)}, {p(e+o+2)}, {p(e+o+2)}")
        L.append(f"v_pk_fma_f32 {p(e+o+4)}, {p(e+o+4)}, {p(e+o+6)}, {p(e+o+6)}")
    for o, j in ((0, 0), (8, 2)):
        L.append(f"v_pk_mul_f32 {p(T+j)}, {p(e+o)}, {p(e+o+4)}")
    for o in (0, 8):
        L.append(f"v_pk_mul_f32 {p(d+o)}, {p(d+o)}, {p(e+o+4)}")
    for o, j in ((0, 0), (8, 2)):
        L.append(f"v_pk_fma_f32 {p(U+j)}, {p(d+o+4)}, {p(e+o)}, {p(d+o)}")
    for j in (0, 2):
        L.append(f"v_pk_add_f32 {p(chk)}, {p(chk)}, {p(T+j)}")
    return L

def flush_q(c, q):
    U = TU[c & 1] + 4
    cv = [f"v_cvt_f64_f32 v[{F64+2*j}:{F64+2*j+1}], v{U+j}" for j in range(4)]
    ad = [f"ds_add_f64 v{q+j}, v[{F64+2*j}:{F64+2*j+1}] offset:{256*(c & 3)}" for j in range(4)]
    return cv, ad

def tile_iter_fast(A, par):
    k = par
    for ph in range(4):
        d = D[ph & 1]; dn = D[(ph + 1) & 1]
        M = chain((ph + 1) & 3, dn)
        Tp = TU[(ph + 1) & 1]
        tr = [f"v_rcp_f32 v{Tp+j}, v{Tp+j}" for j in range(4)] + [f"v_exp_f32 v{E+j}, v{d+j}" for j in range(16)]
        cv, ad = flush_q(ph + 2, qa[par] if ph >= 2 else qa[1 - par])
        extra = {i: [] for i in range(7)}
        pre = []
        if ph == 0:
            extra[0] += read_meta(k + 1, 1 - par)[1:]
        if ph == 1:
            pre += ["s_waitcnt lgkmcnt(4)"]
            extra[0] += calc_vq()
            extra[1] += [read_q(0), read_q(1)]
            extra[2] += read_xidx(k + 2) + read_eidx(k + 3)
        if ph == 2:
            extra[0] += [read_q(2), read_meta(k + 1, 1 - par)[0]]
            extra[5] += ["s_waitcnt vmcnt(1)"] + read_a(1 - par)
        if ph == 3:
            pre += ["s_waitcnt lgkmcnt(4)"] + ([] if OPT["dmaspread"] else ["DMA"])
            extra[1] += [read_q(3)]
            extra[2] += [f"v_add_u32 v{qa[1-par]+j}, v{qa[1-par]+j}, v{lanecol}" for j in range(4)]
        for x in pre:
            if x == "DMA":
                if not OPT["nodma"]:
                    dma_x(A); dma_e(A, 1 - par)
            else: A(x)
        ti = 0
        for m in range(6):
            if not OPT["nomfma"]: A(M[m])
            if OPT["dmaspread"] and ph == 3 and not OPT["nodma"]:
                if m < 4:
                    A(f"s_add_u32 m0, s{sXB}, {1024*m}")
                    A("s_nop 0")
                    A(f"buffer_load_dwordx4 v[{xi[m]}:{xi[m]+1}], s[{SX}:{SX+3}], 0 idxen offen lds")
                if m == 4: dma_e(A, 1 - par)
            if m == 5 and ph == 2:
                for x in extra[5]: A(x)
            n = 3 if m < 5 else 5
            for x in tr[ti:ti + n]:
                if not OPT["novalu"]: A(x)
            ti += n
            if not (m == 5 and ph == 2):
                for x in extra[m]: A(x)
        for x in cv: A(x)
        for x in ad:
            if not OPT["noadd"]: A(x)
            else: A(f"ds_read_b32 v{tmp2}, v{tmp2+1}")
        if not OPT["novalu"]:
            for x in pk_list(d, ph): A(x)

def drain_fast(A, par):
    p = lambda r: f"v[{r}:{r+1}]"
    cv, ad = flush_q(2, qa[par])
    T = TU[1]; U = T + 4
    for j in range(4): A(f"v_rcp_f32 v{T+j}, v{T+j}")
    for x in cv + ad: A(x)
    for j in (0, 2): A(f"v_pk_mul_f32 {p(U+j)}, {p(U+j)}, {p(T+j)}")
    cv, ad = flush_q(3, qa[par])
    for x in cv + ad: A(x)

def tile_iter_safe(A, par):
    k = par; e = E; p = lambda r: f"v[{r}:{r+1}]"
    for ph in range(4):
        d = D[ph & 1]; dn = D[(ph + 1) & 1]
        if ph == 0:
            for x in read_meta(k + 1, 1 - par): A(x)
        if ph == 1:
            A("s_waitcnt lgkmcnt(4)")
            for x in calc_vq(): A(x)
            for j in range(4): A(f"v_add_u32 v{qa[1-par]+j}, v{qa[1-par]+j}, v{lanecol}")
            for x in [read_q(0), read_q(1)] + read_xidx(k + 2) + read_eidx(k + 3): A(x)
        if ph == 2: A(read_q(2))
        if ph == 3:
            A("s_waitcnt lgkmcnt(4)")
            dma_x(A); dma_e(A, 1 - par)
            A(read_q(3))
        for m in chain((ph + 1) & 3, dn): A(m)
        if ph == 2:
            A("s_waitcnt vmcnt(1)")
            for x in read_a(1 - par): A(x)
        for j in range(16): A(f"v_exp_f32 v{e+j}, v{d+j}")
        for j in range(0, 16, 2): A(f"v_pk_add_f32 {p(e+j)}, {p(e+j)}, 1.0 op_sel_hi:[1,0]")
        for j in range(16): A(f"v_rcp_f32 v{e+j}, v{e+j}")
        for j in range(0, 16, 2): A(f"v_pk_mul_f32 {p(d+j)}, {p(d+j)}, {p(e+j)}")
        for o in (0, 8):
            A(f"v_pk_add_f32 {p(d+o)}, {p(d+o)}, {p(d+o+2)}")
            A(f"v_pk_add_f32 {p(d+o+4)}, {p(d+o+4)}, {p(d+o+6)}")
        for o in (0, 8): A(f"v_pk_add_f32 {p(d+o)}, {p(d+o)}, {p(d+o+4)}")
        cvt = ((d, F64), (d + 1, F64 + 2), (d + 8, F64 + 4), (d + 9, F64 + 6))
        for r, t in cvt: A(f"v_cvt_f64_f32 v[{t}:{t+1}], v{r}")
        for j, (r, t) in enumerate(cvt): A(f"ds_add_f64 v{qa[par]+j}, v[{t}:{t+1}] offset:{256*ph}")

def main_loop(A, fast):
    tag = "F" if fast else "S"
    if OPT["prio"]: A("s_setprio 3")
    if OPT["stagger"]:
        A(f"s_cmp_lt_u32 s{sWave}, 4")
        A(f"s_cbranch_scc1 B_STG0{tag}")
        A("s_barrier")
        A.label(f"B_STG0{tag}")
    for x in read_xidx(0) + read_eidx(0): A(x)
    for x in read_meta(0, 0): A(x)
    A("s_waitcnt lgkmcnt(0)")
    dma_x(A); dma_e(A, 0)
    if not OPT["prime2"]:
        for x in read_eidx(1): A(x)
        A("s_waitcnt lgkmcnt(0)")
        dma_e(A, 1)
    else:
        for x in read_eidx(1): A(x)
    for x in calc_vq(): A(x)
    for j in range(4): A(f"v_add_u32 v{qa[0]+j}, v{qa[0]+j}, v{lanecol}")
    for c in range(4): A(read_q(c))
    for x in read_xidx(1): A(x)
    if fast:
        for t in TU:
            for j in range(4):
                A(f"v_mov_b32 v{t+j}, 1.0")
                A(f"v_mov_b32 v{t+4+j}, 0")
        for j in range(4): A(f"v_mov_b32 v{qa[1]+j}, v{lanecol}")
    A("s_waitcnt vmcnt(0)")
    if OPT["stagger"]:
        A(f"s_cmp_ge_u32 s{sWave}, 4")
        A(f"s_cbranch_scc1 B_STG1{tag}")
        A("s_barrier")
        A.label(f"B_STG1{tag}")
    for x in read_a(0): A(x)
    A("s_waitcnt lgkmcnt(0)")
    if OPT["prime2"]: dma_e(A, 1)
    for x in read_eidx(2): A(x)
    dma_x(A)
    A("s_waitcnt lgkmcnt(0)")
    dma_e(A, 0)
    for m in chain(0, D[0]): A(m)
    if OPT["prio"]: A("s_setprio 2")
    A("s_nop 7")
    A("s_nop 3")
    if fast: A("STAMP 9"); A("CSTAMP 13")
    A.label(f"B_LOOP{tag}")
    for par in (0, 1):
        if fast: tile_iter_fast(A, par)
        else: tile_iter_safe(A, par)
        if par == 1:
            for r in (aX, aG, aO): A(f"v_add_u32 v{r}, {2*TB}, v{r}")
            for r in (aQ, aN): A(f"v_add_u32 v{r}, 64, v{r}")
        A(f"s_sub_u32 s{sN}, s{sN}, 1")
        if OPT["prio"]:
            for rem, pr in OPT["psched"]:
                A(f"s_cmp_eq_u32 s{sN}, {rem}")
                A(f"s_cbranch_scc0 B_P{tag}{par}{rem}")
                A(f"s_setprio {pr}")
                A.label(f"B_P{tag}{par}{rem}")
        A(f"s_cmp_eq_u32 s{sN}, 0")
        if par == 0: A(f"s_cbranch_scc1 {'B_DRAIN0' if fast else 'B_LOOPEND'}")
        else: A(f"s_cbranch_scc0 B_LOOP{tag}")
    if fast:
        drain_fast(A, 1)
        A("s_branch B_LOOPEND")
        A.label("B_DRAIN0")
        drain_fast(A, 0)
    A("s_branch B_LOOPEND")

def sort_slots(A, body, groups, tag):
    for g in groups:
        for i in range(4):
            A(f"v_cmpx_lt_i32 vcc, {8*g+i}, v{vLim}")
            if i % 2 == 0: A(f"s_cbranch_execz {tag}")
            body(g, i)

def estream(A, first, n, vaddr):
    srd(A, SP, pE, N_EDGES * 32)
    A(f"s_mul_i32 s{sT}, s2, {CH * 32}")
    A(f"s_mul_i32 s{sT2}, s{sWave}, 10240")
    A(f"s_add_u32 s{sT}, s{sT}, s{sT2}")
    A(f"s_add_u32 s{sT}, s{sT}, {1024 * first}")
    A(f"v_lshlrev_b32 v{vaddr}, 4, v{vLane}")
    for j in range(n):
        A(f"buffer_load_dwordx4 v[{F64}:{F64+3}], v{vaddr}, s[{SP}:{SP+3}], s{sT} offen offset:{1024*j}")

sES = 47; SES = 4
def es_init(A):
    if not OPT["es2"]: return
    srd(A, SE, pE, N_EDGES * 32)
    A(f"s_mul_i32 s{sES}, s2, {CH * 32}")
    A(f"s_mul_i32 s{sT4}, s{sWave}, 10240")
    A(f"s_add_u32 s{sES}, s{sES}, s{sT4}")
    A(f"v_lshlrev_b32 v247, 4, v{vLane}")
def es(A, tag):
    if tag not in OPT["es2"]: return
    A(f"buffer_load_dwordx4 v[{F64}:{F64+3}], v247, s[{SRDE[0]}:{SRDE[0]+3}], s{sES} offen")
    A(f"s_add_u32 s{sES}, s{sES}, 1024")
SRDE = [SE]

def tr_addr(A, dst, base, rowbytes):
    A(f"v_lshrrev_b32 v{tmp}, 5, v{vLane}")
    A(f"v_bfe_u32 v{tmp2}, v{vLane}, 2, 2")
    A(f"v_lshl_add_u32 v{tmp}, v{tmp}, 3, v{tmp2}")
    A(f"v_mul_u32_u24 v{dst}, {rowbytes}, v{tmp}")
    A(f"v_bfe_u32 v{tmp}, v{vLane}, 4, 1")
    A(f"v_lshl_add_u32 v{dst}, v{tmp}, 5, v{dst}")
    A(f"v_and_b32 v{tmp}, 3, v{vLane}")
    A(f"v_lshl_add_u32 v{dst}, v{tmp}, 3, v{dst}")
    A(f"v_add_u32 v{dst}, {base}, v{dst}")

def lane_consts(A):
    A(f"""
v_add_u32 v{vN6}, s{sS6}, v{vLane}
v_and_b32 v{vN6}, 63, v{vN6}
v_lshlrev_b32 v{vN6}, 2, v{vN6}
v_and_b32 v1, 15, v{vLane}
v_lshlrev_b32 v1, 5, v1
v_add_u32 v1, {L_OHT - 1}, v1
v_lshlrev_b32 v{vOhp}, 16, v1
v_lshrrev_b32 v4, 1, v{vTID}
v_mul_u32_u24 v{vC25}, {CH}, v4
v_and_b32 v40, 31, v{vLane}
v_lshrrev_b32 v41, 5, v{vLane}
v_bfe_u32 v42, v{vLane}, 1, 3
v_lshlrev_b32 v43, 7, v40
v_add_u32 v43, s{sXB}, v43
""")
    for s in range(4):
        A(f"v_or_b32 v44, {2*s}, v41")
        A(f"v_xor_b32 v44, v44, v42")
        A(f"v_lshl_add_u32 v{xr[s]}, v44, 4, v43")
    A(f"""
v_lshlrev_b32 v{eAddr}, 4, v{vLane}
v_add_u32 v{eAddr}, s{sXB}, v{eAddr}
v_add_u32 v{eAddr}, 0x1000, v{eAddr}
v_mul_u32_u24 v{qbase}, {QSTR}, v40
v_lshl_add_u32 v{qbase}, v41, 4, v{qbase}
v_add_u32 v{qbase}, {L_QT}, v{qbase}
v_xor_b32 v{c1}, 1, v41
v_lshlrev_b32 v{c1}, 13, v{c1}
v_lshlrev_b32 v{lanecol}, 3, v40
v_lshlrev_b32 v{v16h}, 4, v41
v_and_b32 v44, 7, v{vLane}
v_lshrrev_b32 v45, 4, v{vLane}
v_xor_b32 v46, v44, v45
v_lshlrev_b32 v{xi[0]+1}, 4, v46
v_mov_b32 v{xi[2]+1}, v{xi[0]+1}
v_xor_b32 v46, 4, v46
v_lshlrev_b32 v{xi[1]+1}, 4, v46
v_mov_b32 v{xi[3]+1}, v{xi[1]+1}
v_lshlrev_b32 v{ei+1}, 4, v41
v_bfe_u32 v44, v{vLane}, 3, 1
v_bfe_u32 v45, v{vLane}, 4, 1
v_lshlrev_b32 v46, 4, v41
v_lshl_add_u32 v46, v44, 2, v46
v_add_u32 v46, v46, v45
v_lshlrev_b32 v{cX}, 3, v46
v_bfe_u32 v44, v{vLane}, 2, 1
v_lshlrev_b32 v46, 4, v44
v_bfe_u32 v44, v{vLane}, 4, 1
v_lshl_add_u32 v46, v44, 3, v46
v_and_b32 v44, 1, v{vLane}
v_lshl_add_u32 v46, v44, 2, v46
v_bfe_u32 v44, v{vLane}, 3, 1
v_lshl_add_u32 v46, v44, 1, v46
v_bfe_u32 v44, v{vLane}, 1, 1
v_add_u32 v46, v46, v44
v_lshlrev_b32 v{cO}, 3, v46
v_add_u32 v{cG}, 4, v{cO}
v_add_u32 v{cO}, 2, v{cO}
""")

def kernel():
    A = Asm(OPT["stamps"])
    A.label(KB)
    A(f"""
s_cmp_ge_u32 s2, {NB}
s_cbranch_scc1 B_END
STAMP 0
CSTAMP 11
s_load_dwordx16 s[48:63], s[0:1], 0
s_load_dwordx4 s[96:99], s[0:1], 64
s_load_dwordx2 s[100:101], s[0:1], 80
s_memrealtime s[{sEx2}:{sEx2+1}]
v_lshrrev_b32 v1, 6, v0
v_and_b32 v{vLane}, 63, v0
v_readfirstlane_b32 s{sWave}, v1
s_mul_i32 s{sStart}, s2, 625
s_add_u32 s{sT}, s{sStart}, {625 + 15}
s_add_u32 s{sStart}, s{sStart}, 15
s_lshr_b32 s{sStart}, s{sStart}, 4
s_lshr_b32 s{sT}, s{sT}, 4
s_sub_u32 s{sNn}, s{sT}, s{sStart}
s_and_b32 s{sS6}, s{sStart}, 63
s_mul_i32 s{sXB}, s{sWave}, {XBS}
s_add_u32 s{sXB}, s{sXB}, {L_XB0}
s_mov_b32 s{sMode}, 0
s_mov_b32 s{sR}, 32
s_mov_b32 s{sLo}, 0
s_mov_b32 s{sCnt}, 0x400000
v_mov_b32 v{vdeg}, 0
v_mov_b32 v{chk}, 0
v_mov_b32 v{chk+1}, 0
v_mov_b32 v40, 0
v_mov_b32 v41, 0
v_mov_b32 v42, 0
v_mov_b32 v43, 0
v_lshlrev_b32 v2, 4, v{vTID}
v_cmp_gt_u32 vcc, 64, v{vTID}
s_and_saveexec_b64 s[{sEx}:{sEx+1}], vcc
ds_write_b128 v2, v[40:43] offset:{L_HIST}
s_mov_b64 exec, s[{sEx}:{sEx+1}]
v_cmp_gt_u32 vcc, 0x88, v{vTID}
s_and_saveexec_b64 s[{sEx}:{sEx+1}], vcc
v_lshrrev_b32 v3, 3, v{vTID}
v_and_b32 v4, 7, v{vTID}
v_lshrrev_b32 v5, 1, v3
v_and_b32 v6, 1, v3
v_lshlrev_b32 v6, 4, v6
v_mov_b32 v7, {BF_ONE:#x}
v_lshlrev_b32 v7, v6, v7
v_cmp_eq_u32 vcc, v4, v5
v_lshlrev_b32 v8, 2, v{vTID}
v_cndmask_b32 v7, 0, v7, vcc
v_add_u32 v8, {L_OHT}, v8
ds_write_b32 v8, v7
s_mov_b64 exec, s[{sEx}:{sEx+1}]
v_cmp_gt_u32 vcc, 16, v{vTID}
s_and_saveexec_b64 s[{sEx}:{sEx+1}], vcc
ds_write_b128 v2, v[40:43] offset:{L_FLAG}
s_mov_b64 exec, s[{sEx}:{sEx+1}]
s_waitcnt lgkmcnt(0)
s_barrier
STAMP 1
""")
    A(f"""
s_cmp_lg_u32 s2, 0
s_cbranch_scc1 A_NONONCE
s_cmp_lg_u32 s{sWave}, 0
s_cbranch_scc1 A_NONONCE
s_and_b32 s{sEx2+1}, s{sEx2+1}, 0xff
s_or_b32 s{sEx2+1}, s{sEx2+1}, 0x80000000
v_mov_b32 v4, s{sEx2}
v_mov_b32 v5, s{sEx2+1}
v_mov_b32 v3, 0
s_mov_b64 exec, 1
global_store_dwordx2 v3, v[4:5], s[{pDbg}:{pDbg+1}] sc1
s_mov_b64 exec, -1
""")
    A.label("A_NONONCE")
    if OPT["touch"]:
        ptrs = [pW1, pX, pB1, pWs, pE, pW2, pOut, pB2]
        A("v_mov_b32 v3, 0")
        for w, p in enumerate(ptrs):
            A(f"s_cmp_lg_u32 s{sWave}, {w}")
            A(f"s_cbranch_scc1 A_T{w}")
            A(f"global_load_dword v{F64+5}, v3, s[{p}:{p+1}]")
            A.label(f"A_T{w}")
    srd(A, SO, pDst, N_EDGES * 4)
    srd(A, SP, pSrc, N_EDGES * 4)
    A(f"""
s_mul_i32 s{sT}, s2, {CH * 4}
v_add_u32 v3, 0x2000, v2
v_mov_b32 v4, 0x7ffffff0
v_cmp_gt_u32 vcc, {CH // 4 - 512}, v{vTID}
s_mov_b64 s[{sEx2}:{sEx2+1}], vcc
v_cndmask_b32 v3, v4, v3, vcc
buffer_load_dwordx4 v[40:43], v2, s[{SO}:{SO+3}], s{sT} offen
buffer_load_dwordx4 v[44:47], v2, s[{SP}:{SP+3}], s{sT} offen
buffer_load_dwordx4 v[48:51], v3, s[{SO}:{SO+3}], s{sT} offen
buffer_load_dwordx4 v[52:55], v3, s[{SP}:{SP+3}], s{sT} offen
""")
    srd(A, SO, pW1, 144 * 128 * 2)
    srd(A, SP, pX, N_NODES * 128)
    A(f"v_lshlrev_b32 v1, 4, v{vLane}")
    A(f"s_lshl_b32 s{sT2}, s{sWave}, 10")
    for j in range(5):
        A(f"s_add_u32 m0, s{sT2}, {L_WRAW + 8192*j}")
        A(f"s_add_u32 s{sT3}, s{sT2}, {8192*j}")
        A(f"buffer_load_dwordx4 v1, s[{SO}:{SO+3}], s{sT3} offen lds")
    A(f"""
s_lshl_b32 s{sT3}, s{sWave}, 3
v_lshrrev_b32 v5, 3, v{vLane}
v_add_u32 v5, s{sT3}, v5
v_bfe_u32 v6, v5, 1, 3
v_and_b32 v7, 7, v{vLane}
v_xor_b32 v6, v6, v7
v_add_u32 v5, s{sStart}, v5
v_lshlrev_b32 v5, 7, v5
v_lshl_add_u32 v5, v6, 4, v5
s_add_u32 m0, s{sT2}, {L_XROW}
s_and_b32 s{sT3}, s{sWave}, 3
buffer_load_dwordx4 v5, s[{SP}:{SP+3}], 0 offen lds
s_lshl_b32 s{sT3}, s{sT3}, 5
v_and_b32 v5, 31, v{vLane}
v_lshrrev_b32 v222, 5, v{vLane}
v_add_u32 v221, s{sT3}, v5
v_lshlrev_b32 v9, 1, v221
global_load_ushort v223, v9, s[{pB1}:{pB1+1}]
""")
    A(f"""
v_lshlrev_b32 v11, 16, v{vTID}
v_add_u32 v12, {2048 << 14:#x}, v11
s_mov_b32 s{sT2}, 429497
STAMP 2
s_waitcnt vmcnt(7)
STAMP 3
""")
    es_init(A)
    es(A, "a")
    def hist(base, dst, src, eid):
        for i in range(4): A(f"v_mul_u32_u24 v{base+i}, s{sT2}, v{dst+i}")
        for i in range(4): A(f"v_lshrrev_b32 v{base+i}, 22, v{base+i}")
        for i in range(4):
            A(f"v_and_b32 v{base+i}, 0x3fc, v{base+i}")
            A(f"ds_add_rtn_u32 v{base+8+i}, v{base+i}, v13 offset:{L_HIST}")
        for i in range(4):
            A(f"v_lshl_or_b32 v{dst+i}, v{dst+i}, 26, v{src+i}")
            A(f"v_add_u32 v{dst+i}, v{dst+i}, v{eid}")
            if i: A(f"v_add_u32 v{dst+i}, {i << 14:#x}, v{dst+i}")
    A("v_mov_b32 v13, 1")
    hist(56, 40, 44, 11)
    es(A, "b")
    A(f"s_cmp_ge_u32 s{sWave}, 2")
    A("s_cbranch_scc1 A_H1")
    A(f"s_mov_b64 exec, s[{sEx2}:{sEx2+1}]")
    hist(60, 48, 52, 12)
    A("s_mov_b64 exec, -1")
    A.label("A_H1")
    A(f"""
s_waitcnt lgkmcnt(0)
s_barrier
v_lshlrev_b32 v14, 4, v{vLane}
ds_read_b128 v[72:75], v14 offset:{L_HIST}
v_mov_b32 v15, 0
s_cmp_lg_u32 s{sWave}, 0
s_cbranch_scc1 A_NOTAG0
global_load_dwordx2 v[16:17], v15, s[{pDbg}:{pDbg+1}] sc1
A_NOTAG0:
s_waitcnt lgkmcnt(0)
v_add_u32 v76, v72, v73
v_add_u32 v77, v76, v74
v_add_u32 v78, v77, v75
v_mov_b32 v79, v78
""")
    es(A, "c")
    wave_scan(A, 79)
    A(f"""
v_sub_u32 v80, v79, v78
v_add_u32 v81, v80, v72
v_add_u32 v82, v80, v76
v_add_u32 v83, v80, v77
ds_write_b128 v14, v[80:83] offset:{L_BASE}
s_waitcnt lgkmcnt(0)
""")
    def place(addr, rank, rec):
        for i in range(4): A(f"ds_read_b32 v{addr+i}, v{addr+i} offset:{L_BASE}")
        for i in range(4):
            A(f"s_waitcnt lgkmcnt({3-i})")
            A(f"v_add_lshl_u32 v{addr+i}, v{addr+i}, v{rank+i}, 2")
            A(f"ds_write_b32 v{addr+i}, v{rec+i} offset:{L_SORT}")
    place(56, 64, 40)
    A(f"s_cmp_ge_u32 s{sWave}, 2")
    A("s_cbranch_scc1 A_H2")
    A(f"s_mov_b64 exec, s[{sEx2}:{sEx2+1}]")
    place(60, 68, 48)
    A("s_mov_b64 exec, -1")
    A.label("A_H2")
    srd(A, SW, pWs, WS_END)
    A(f"""
s_waitcnt lgkmcnt(0)
s_barrier
STAMP 4
ds_read_b128 v[40:43], v2 offset:{L_SORT}
ds_read_b128 v[44:47], v2 offset:{L_SORT + 8192}
s_mul_i32 s{sT}, s2, {CH * 4}
s_add_u32 s{sT}, s{sT}, {WS_REC}
s_waitcnt lgkmcnt(1)
buffer_store_dwordx4 v[40:43], v2, s[{SW}:{SW+3}], s{sT} offen sc1
s_waitcnt lgkmcnt(0)
buffer_store_dwordx4 v[44:47], v3, s[{SW}:{SW+3}], s{sT} offen sc1
""")
    A(f"""
s_cmp_lg_u32 s{sWave}, 0
s_cbranch_scc1 A_DRAIN
""")
    A.label("A_NONCE")
    A(f"""
s_waitcnt vmcnt(0)
v_readfirstlane_b32 s{sTagLo}, v16
v_readfirstlane_b32 s{sTagB}, v17
s_cmp_lt_i32 s{sTagB}, 0
s_cbranch_scc1 A_HAVETAG
A_NONCE2:
s_sub_u32 s{sCnt}, s{sCnt}, 1
s_cmp_eq_u32 s{sCnt}, 0
s_cbranch_scc1 B_END
s_sleep 1
global_load_dwordx2 v[16:17], v15, s[{pDbg}:{pDbg+1}] sc1
s_waitcnt vmcnt(0)
v_readfirstlane_b32 s{sTagLo}, v16
v_readfirstlane_b32 s{sTagB}, v17
s_cmp_lt_i32 s{sTagB}, 0
s_cbranch_scc0 A_NONCE2
""")
    A.label("A_HAVETAG")
    A(f"""
v_and_b32 v17, 0xff, v17
v_mov_b32 v15, {L_FLAG}
ds_write_b64 v15, v[16:17] offset:16
s_and_b32 s{sTagB}, s{sTagB}, 0xff
""")
    A.label("A_DRAIN")
    A(f"""
s_waitcnt vmcnt(0) lgkmcnt(0)
s_barrier
s_cmp_lg_u32 s{sWave}, 0
s_cbranch_scc1 A_PUBLISHED
s_lshl_b32 s{sT}, s{sTagB}, 24
v_mov_b32 v41, s{sTagLo}
v_mov_b32 v43, s{sTagLo}
v_mov_b32 v45, s{sTagLo}
v_mov_b32 v47, s{sTagLo}
v_lshl_or_b32 v40, v72, 12, v80
v_lshl_or_b32 v42, v73, 12, v81
v_lshl_or_b32 v44, v74, 12, v82
v_lshl_or_b32 v46, v75, 12, v83
v_or_b32 v40, s{sT}, v40
v_or_b32 v42, s{sT}, v42
v_or_b32 v44, s{sT}, v44
v_or_b32 v46, s{sT}, v46
v_lshlrev_b32 v14, 5, v{vLane}
s_lshl_b32 s{sT}, s2, 11
s_add_u32 s{sT}, s{sT}, {WS_TBL}
buffer_store_dwordx4 v[40:43], v14, s[{SW}:{SW+3}], s{sT} offen sc1
buffer_store_dwordx4 v[44:47], v14, s[{SW}:{SW+3}], s{sT} offen offset:16 sc1
""")
    A.label("A_PUBLISHED")
    A("STAMP 5")
    es(A, "d")
    if OPT["estream"] == 3: estream(A, OPT["es"][0], OPT["es"][1], 247)
    A(f"v_mov_b32 v15, {L_FLAG}")
    A("ds_read_b64 v[16:17], v15 offset:16")
    A("s_waitcnt lgkmcnt(0)")
    A(f"v_readfirstlane_b32 s{sTagLo}, v16")
    A(f"v_readfirstlane_b32 s{sTagB}, v17")
    fill_lists(A)
    zero_s(A)
    es(A, "e")
    srd(A, SX, pX, N_NODES, stride=128)
    lane_consts(A)
    es(A, "f")
    A(f"""
s_lshr_b32 s{sT}, s{sWave}, 2
s_lshl_b32 s{sT}, s{sT}, 12
s_add_u32 s{sT}, s{sT}, {L_XROW}
v_and_b32 v216, 31, v{vLane}
v_bfe_u32 v217, v{vLane}, 1, 3
v_lshlrev_b32 v216, 7, v216
v_add_u32 v216, s{sT}, v216
""")
    for s_ in range(4):
        A(f"v_or_b32 v218, {2*s_}, v222")
        A(f"v_xor_b32 v218, v218, v217")
        A(f"v_lshl_add_u32 v218, v218, 4, v216")
        A(f"ds_read_b128 v[{X+4*s_}:{X+4*s_+3}], v218")
    tr_addr(A, 216, L_WRAW, 256)
    A(f"""
s_lshr_b32 s{sT}, s{sWave}, 2
s_lshl_b32 s{sT}, s{sT}, 12
s_and_b32 s{sT2}, s{sWave}, 3
s_lshl_b32 s{sT2}, s{sT2}, 6
s_add_u32 s{sT}, s{sT}, s{sT2}
v_add_u32 v217, s{sT}, v216
v_add_u32 v218, s{sT2}, v216
""")
    for j, (reg, off) in enumerate(((217, 0), (217, 32 * 256), (218, 128 * 256))):
        A(f"ds_read_b64_tr_b16 v[{40+4*j}:{41+4*j}], v{reg} offset:{off}")
        A(f"ds_read_b64_tr_b16 v[{42+4*j}:{43+4*j}], v{reg} offset:{off + 1024}")
    for s in range(4):
        A(f"ds_read_b64_tr_b16 v[{D[0]+4*s}:{D[0]+4*s+1}], v218 offset:{(64 + 16*s) * 256}")
        A(f"ds_read_b64_tr_b16 v[{D[0]+4*s+2}:{D[0]+4*s+3}], v218 offset:{(64 + 16*s) * 256 + 1024}")
    A(f"s_mov_b32 s{sT3}, {f2u(SCALE):#x}")
    A("s_waitcnt lgkmcnt(8)")
    for j in range(12):
        A(f"v_lshlrev_b32 v219, 16, v{40+j}")
        A(f"v_and_b32 v220, 0xffff0000, v{40+j}")
        A(f"v_mul_f32 v219, s{sT3}, v219")
        A(f"v_mul_f32 v220, s{sT3}, v220")
        A(f"v_cvt_pk_bf16_f32 v{40+j}, v219, v220")
    A(f"""
v_lshlrev_b32 v219, 4, v{vLane}
s_lshl_b32 s{sT}, s{sWave}, 10
s_add_u32 s{sT}, s{sT}, {L_WST}
v_add_u32 v219, s{sT}, v219
""")
    A(f"ds_write_b128 v219, v[40:43]")
    A(f"ds_write_b128 v219, v[44:47] offset:8192")
    A("s_waitcnt lgkmcnt(2)")
    for s in range(4):
        A(f"v_mfma_f32_32x32x16_bf16 v[{D[1]}:{D[1]+15}], v[{X+4*s}:{X+4*s+3}], v[{D[0]+4*s}:{D[0]+4*s+3}], {'0' if s == 0 else f'v[{D[1]}:{D[1]+15}]'}")
    A(f"s_cmp_ge_u32 s{sWave}, 4")
    A("s_cbranch_scc1 B_NOWC")
    A(f"ds_write_b128 v219, v[48:51] offset:16384")
    A.label("B_NOWC")
    A(f"""
v_lshlrev_b32 v223, 16, v223
v_mul_f32 v223, s{sT3}, v223
v_mul_u32_u24 v224, {QSTR}, v221
s_lshr_b32 s{sT}, s{sWave}, 2
s_lshl_b32 s{sT}, s{sT}, 6
v_lshl_add_u32 v224, v222, 3, v224
v_add_u32 v224, s{sT}, v224
""")
    for j in range(16): A(f"v_fma_f32 v{D[1]+j}, v{D[1]+j}, s{sT3}, v223")
    for g in range(4):
        A(f"v_cvt_pk_bf16_f32 v{X+2*g}, v{D[1]+4*g}, v{D[1]+4*g+1}")
        A(f"v_cvt_pk_bf16_f32 v{X+2*g+1}, v{D[1]+4*g+2}, v{D[1]+4*g+3}")
    for g in range(2):
        A(f"ds_write_b64 v224, v[{X+2*g}:{X+2*g+1}] offset:{L_QT + 16*g}")
    A(f"s_cmp_ge_u32 s{sWave}, 4")
    A(f"s_cbranch_scc1 B_QDONE")
    for g in range(2, 4):
        A(f"ds_write_b64 v224, v[{X+2*g}:{X+2*g+1}] offset:{L_QT + 16*g}")
    A.label("B_QDONE")
    es(A, "g")
    if OPT["es2"]:
        srd(A, SP, pE, N_EDGES * 32)
        SRDE[0] = SP
    srd(A, SE, pE, N_EDGES, stride=32)
    A(f"""
s_waitcnt lgkmcnt(0)
s_barrier
v_lshlrev_b32 v1, 4, v{vLane}
v_add_u32 v1, {L_WST}, v1
""")
    for u in range(16): A(f"ds_read_b128 v[{W+4*u}:{W+4*u+3}], v1 offset:{1024*u}")
    for c in range(4): A(f"ds_read_b128 v[{We+4*c}:{We+4*c+3}], v1 offset:{1024*(16+c)}")
    A(f"""
v_lshrrev_b32 v4, 1, v{vTID}
v_lshlrev_b32 v4, 11, v4
s_lshl_b32 s{sT}, s2, 3
s_add_u32 s{sT}, s{sT}, {WS_TBL}
s_mov_b32 s{sCnt}, 0x400000
STAMP 6
""")
    A.label("B_POLL")
    A(f"""
buffer_load_dwordx2 v[{vTbl}:{vTbl+1}], v4, s[{SW}:{SW+3}], s{sT} offen sc1
s_waitcnt vmcnt(0)
v_lshrrev_b32 v5, 24, v{vTbl}
v_cmp_ne_u32 vcc, s{sTagLo}, v{vTbl+1}
v_cmp_ne_u32 s[{sEx}:{sEx+1}], s{sTagB}, v5
s_or_b64 vcc, vcc, s[{sEx}:{sEx+1}]
s_and_b64 exec, exec, vcc
s_cbranch_execz B_POLLED
s_sub_u32 s{sCnt}, s{sCnt}, 1
s_cmp_eq_u32 s{sCnt}, 0
s_cbranch_scc1 B_END
s_sleep 2
s_branch B_POLL
""")
    A.label("B_POLLED")
    A("s_mov_b64 exec, -1")
    A("STAMP 7")
    A.label("B_ROUND")
    A(f"""
v_bfe_u32 v{vLim}, v{vTbl}, 12, 12
v_mov_b32 v245, v{vLim}
v_subrev_u32 v{vLim}, s{sLo}, v{vLim}
v_min_i32 v{vLim}, s{sR}, v{vLim}
v_and_b32 v{vT}, 1, v{vTID}
v_lshlrev_b32 v{vT}, 2, v{vT}
v_sub_u32 v{vLim}, v{vLim}, v{vT}
v_and_b32 v{tmp}, 0xfff, v{vTbl}
v_add3_u32 v{tmp}, v{tmp}, v{vC25}, v{vT}
v_add_u32 v{tmp}, s{sLo}, v{tmp}
v_lshlrev_b32 v{tmp}, 2, v{tmp}
v_mov_b32 v{tmp2+1}, 0x7ffffff0
s_mov_b32 s{sT}, {WS_REC}
""")
    for g in range(4):
        A(f"v_cmp_lt_i32 vcc, {8*g}, v{vLim}")
        A(f"v_cndmask_b32 v{tmp2}, v{tmp2+1}, v{tmp}, vcc")
        A(f"buffer_load_dwordx4 v[{R+4*g}:{R+4*g+3}], v{tmp2}, s[{SW}:{SW+3}], s{sT} offen offset:{32*g} sc1")
    if OPT["estream"] == 1:
        A(f"s_cmp_lg_u32 s{sLo}, 0")
        A("s_cbranch_scc1 B_NOSTREAM")
        srd(A, SP, pE, N_EDGES * 32)
        A(f"s_mul_i32 s{sT}, s2, {CH * 32}")
        A(f"s_mul_i32 s{sT2}, s{sWave}, 10240")
        A(f"s_add_u32 s{sT}, s{sT}, s{sT2}")
        A(f"v_lshlrev_b32 v247, 4, v{vLane}")
        for j in range(10):
            A(f"buffer_load_dwordx4 v[{F64}:{F64+3}], v247, s[{SP}:{SP+3}], s{sT} offen offset:{1024*(j % 4)}")
            if j % 4 == 3: A(f"s_add_u32 s{sT}, s{sT}, 4096")
        A("s_waitcnt lgkmcnt(0)")
        A("s_barrier")
        A(f"v_mov_b32 v246, {L_FLAG}")
        A("ds_max_u32 v246, v245")
        A(f"v_mov_b32 v{vT}, 1")
        for j in range(16): A(f"v_mov_b32 v{A4+j}, 0")
        A("s_waitcnt vmcnt(10)")
        A("s_branch B_RECIN")
        A.label("B_NOSTREAM")
    A(f"""
s_waitcnt lgkmcnt(0)
s_barrier
v_mov_b32 v246, {L_FLAG}
ds_max_u32 v246, v245
v_mov_b32 v{vT}, 1
""")
    srd(A, SO, pW2, 128 * 64 * 2)
    A(f"v_lshlrev_b32 v247, 4, v{vLane}")
    A(f"s_lshl_b32 s{sT}, s{sWave}, 11")
    for j in range(2):
        A(f"s_add_u32 m0, s{sT}, {L_W2 + 1024*j}")
        A(f"s_add_u32 s{sT2}, s{sT}, {1024*j}")
        A(f"buffer_load_dwordx4 v247, s[{SO}:{SO+3}], s{sT2} offen lds")
    A(f"""
v_lshrrev_b32 v246, 5, v{vLane}
s_and_b32 s{sT}, s{sWave}, 1
s_lshl_b32 s{sT}, s{sT}, 6
v_lshlrev_b32 v246, 3, v246
v_add_u32 v246, s{sT}, v246
""")
    for g in range(4):
        A(f"global_load_dwordx2 v[{vB2+2*g}:{vB2+2*g+1}], v246, s[{pB2}:{pB2+1}] offset:{16*g}")
    for j in range(16): A(f"v_mov_b32 v{A4+j}, 0")
    A("s_waitcnt vmcnt(6)")
    es(A, "h")
    A.label("B_RECIN")
    if OPT["estream"] == 3 and OPT["es"][2]:
        A(f"s_cmp_lg_u32 s{sLo}, 0")
        A("s_cbranch_scc1 B_NOSTREAM3")
        estream(A, OPT["es"][0] + OPT["es"][1], OPT["es"][2], 247)
        A.label("B_NOSTREAM3")
    def count_body(g, i):
        j = 4 * g + i
        A(f"v_lshrrev_b32 v{A4+j}, 24, v{R+j}")
        A(f"v_and_b32 v{A4+j}, 0xfc, v{A4+j}")
        A(f"ds_add_rtn_u32 v{RK+j}, v{A4+j}, v{vT} offset:{L_CNT}")
    sort_slots(A, count_body, range(4), "B_COUNTED")
    A.label("B_COUNTED")
    A("s_mov_b64 exec, -1")
    es(A, "i")
    A(f"""
s_mov_b64 exec, -1
s_waitcnt lgkmcnt(0)
s_barrier
STAMP 8
v_mov_b32 v{tmp2}, 0
ds_read_b32 v{tmp}, v{vN6} offset:{L_CNT}
ds_read_b32 v{tmp2}, v{tmp2} offset:{L_FLAG}
v_cmp_gt_u32 vcc, s{sNn}, v{vLane}
s_waitcnt lgkmcnt(0)
v_readfirstlane_b32 s{sMax}, v{tmp2}
v_add_u32 v{NT}, 3, v{tmp}
v_lshrrev_b32 v{NT}, 2, v{NT}
v_max_u32 v{NT}, 1, v{NT}
v_cndmask_b32 v{NT}, 0, v{NT}, vcc
v_mov_b32 v{NT+1}, v{NT}
""")
    wave_scan(A, NT + 1)
    es(A, "j")
    A(f"""
v_readlane_b32 s{sTot}, v{NT+1}, 63
v_sub_u32 v{NT+4}, v{NT+1}, v{NT}
v_lshlrev_b32 v{NT+4}, 2, v{NT+4}
v_mov_b32 v{NT+5}, v{vOhp}
v_lshlrev_b32 v{NT+6}, 10, v{vLane}
s_cmp_gt_u32 s{sTot}, {CAPQ}
s_cbranch_scc1 B_OVERFLOW
s_and_saveexec_b64 s[{sEx}:{sEx+1}], vcc
v_add_u32 v{vdeg}, v{vdeg}, v{tmp}
v_lshlrev_b32 v{tmp}, 1, v{vN6}
ds_write_b64 v{tmp}, v[{NT+4}:{NT+5}] offset:{L_NTAB}
s_mov_b64 exec, s[{sEx}:{sEx+1}]
v_mov_b32 v{tmp}, s{sWave}
v_lshl_add_u32 v{tmp2}, v{tmp}, 2, v{NT+4}
B_QFILL:
v_cmpx_lt_u32 vcc, v{tmp}, v{NT}
s_cbranch_execz B_QFILLED
ds_write_b32 v{tmp2}, v{NT+6} offset:{L_QADDR}
v_add_u32 v{tmp}, 8, v{tmp}
v_add_u32 v{tmp2}, 32, v{tmp2}
s_branch B_QFILL
B_QFILLED:
s_mov_b64 exec, -1
v_mov_b32 v{vT}, {L_LIST}
s_mov_b32 s{sT4}, 0x3fff
s_waitcnt lgkmcnt(0)
""")
    def scatter_batch(groups, tag):
        for n, g in enumerate(groups):
            for i in range(4):
                j = 4 * g + i; t = NT + 8 + 4 * (4 * n + i)
                A(f"v_lshlrev_b32 v{tmp}, 1, v{A4+j}")
                A(f"ds_read_b64 v[{t}:{t+1}], v{tmp} offset:{L_NTAB}")
        A("s_waitcnt lgkmcnt(0)")
        def body(g, i):
            j = 4 * g + i; t = NT + 8 + 4 * (4 * groups.index(g) + i)
            A(f"v_add_u32 v{t}, v{t}, v{RK+j}")
            A(f"v_and_or_b32 v{t+2}, v{R+j}, s{sT4}, v{t+1}")
            A(f"v_bfe_u32 v{t+3}, v{R+j}, 14, 12")
            A(f"v_lshl_add_u32 v{t}, v{t}, 3, v{vT}")
            A(f"v_add_u32 v{t+3}, v{vC25}, v{t+3}")
            A(f"ds_write_b64 v{t}, v[{t+2}:{t+3}]")
        sort_slots(A, body, groups, tag)
    scatter_batch([0, 1], "B_SC1")
    A.label("B_SC1")
    A(f"""
s_mov_b64 exec, -1
v_cmp_lt_i32 vcc, 16, v{vLim}
s_cbranch_vccz B_SC3
""")
    scatter_batch([2], "B_SC2")
    A.label("B_SC2")
    A(f"""
s_mov_b64 exec, -1
v_cmp_lt_i32 vcc, 24, v{vLim}
s_cbranch_vccz B_SC3
""")
    scatter_batch([3], "B_SC3")
    A.label("B_SC3")
    A("s_mov_b64 exec, -1")
    A(f"""
s_add_u32 s{sT}, s{sTot}, 7
s_lshr_b32 s{sT}, s{sT}, 3
s_lshr_b32 s{sT2}, s{sT}, 3
s_and_b32 s{sT3}, s{sT}, 7
s_mul_i32 s{sT0}, s{sT2}, s{sWave}
s_min_u32 s{sN}, s{sWave}, s{sT3}
s_add_u32 s{sT0}, s{sT0}, s{sN}
s_cmp_lt_u32 s{sWave}, s{sT3}
s_cselect_b32 s{sN}, 1, 0
s_add_u32 s{sN}, s{sN}, s{sT2}
s_mul_i32 s{sT}, s{sT0}, {TB}
s_add_u32 s{sT}, s{sT}, {L_LIST}
v_add_u32 v{aX}, s{sT}, v{cX}
v_add_u32 v{aG}, s{sT}, v{cG}
v_add_u32 v{aO}, s{sT}, v{cO}
s_lshl_b32 s{sT}, s{sT0}, 5
s_add_u32 s{sT}, s{sT}, {L_QADDR}
v_mov_b32 v{aN}, s{sT}
v_add_u32 v{aQ}, s{sT}, v{v16h}
s_waitcnt lgkmcnt(0)
s_barrier
STAMP 12
s_cmp_eq_u32 s{sN}, 0
s_cbranch_scc1 B_NOTILES
s_cmp_lg_u32 s{sMode}, 0
s_cbranch_scc1 B_SAFE
""")
    main_loop(A, True)
    A.label("B_SAFE")
    main_loop(A, False)
    A.label("B_NOTILES")
    if OPT["stagger"]: A("s_barrier")
    A.label("B_LOOPEND")
    A(f"""
s_setprio 0
STAMP 10
CSTAMP 14
s_waitcnt vmcnt(0)
""")
    A(f"""
v_lshrrev_b32 v3, 5, v{vLane}
s_and_b32 s{sT}, s{sWave}, 1
s_lshl_b32 s{sT}, s{sT}, 6
v_lshlrev_b32 v4, 3, v3
v_add_u32 v4, s{sT}, v4
""")
    A(f"""
s_waitcnt vmcnt(0) lgkmcnt(0)
s_barrier
s_add_u32 s{sLo}, s{sLo}, s{sR}
s_cmp_ge_u32 s{sLo}, s{sMax}
s_cbranch_scc1 B_FINISH
""")
    fill_lists(A)
    A("s_branch B_ROUND")
    A.label("B_OVERFLOW")
    A(f"s_mov_b32 s{sR}, 8")
    A.label("B_RESTART")
    A(f"""
s_barrier
s_mov_b32 s{sLo}, 0
v_mov_b32 v{vdeg}, 0
v_mov_b32 v{chk}, 0
v_mov_b32 v{chk+1}, 0
""")
    fill_lists(A)
    zero_s(A)
    A("s_branch B_ROUND")
    A.label("B_FINISH")
    SB = L_LIST
    A(f"""
v_mov_b32 v5, 0x71800000
v_cmp_nlt_f32 vcc, v{chk}, v5
v_cmp_nlt_f32 s[{sEx}:{sEx+1}], v{chk+1}, v5
s_or_b64 vcc, vcc, s[{sEx}:{sEx+1}]
v_lshlrev_b32 v6, 2, v{vLane}
ds_write_b32 v6, v{vdeg} offset:{L_DEG}
v_lshlrev_b32 v{tmp}, 4, v{vTID}
""")
    for j in range(5):
        A(f"ds_read_b128 v[{E+4*j}:{E+4*j+3}], v{tmp} offset:{L_S + 8192*j}")
    A(f"""
v_lshrrev_b32 v7, 6, v{vTID}
v_mul_u32_u24 v7, {SBSTR}, v7
v_and_b32 v8, 63, v{vTID}
v_lshl_add_u32 v7, v8, 2, v7
v_add_u32 v7, {SB}, v7
v_mov_b32 v9, {f2u(1.0 / SCALE):#x}
v_mov_b32 v10, 0
s_waitcnt lgkmcnt(0)
""")
    for j in range(10): A(f"v_cvt_f32_f64 v{D[1]+j}, v[{E+2*j}:{E+2*j+1}]")
    for j in range(10): A(f"v_mul_f32 v{D[1]+j}, v9, v{D[1]+j}")
    for j in range(10): A(f"v_fmac_f32 v10, 0, v{D[1]+j}")
    A(f"v_cmp_u_f32 s[{sEx}:{sEx+1}], v10, v10")
    A(f"s_or_b64 vcc, vcc, s[{sEx}:{sEx+1}]")
    for j in range(5):
        A(f"v_cvt_pk_bf16_f32 v{E+j}, v{D[1]+2*j}, v{D[1]+2*j+1}")
        A(f"ds_write_b32 v7, v{E+j} offset:{8*SBSTR*j}")
    A(f"""
s_cmp_eq_u64 vcc, 0
s_cbranch_scc1 B_NOFLAG
v_mov_b32 v5, {L_FLAG}
v_mov_b32 v6, 1
ds_write_b32 v5, v6 offset:4
""")
    A.label("B_NOFLAG")
    A(f"""
s_waitcnt lgkmcnt(0)
s_barrier
v_mov_b32 v5, {L_FLAG}
ds_read_b32 v6, v5 offset:4
s_waitcnt lgkmcnt(0)
v_readfirstlane_b32 s{sT}, v6
s_cmp_lg_u32 s{sMode}, 0
s_cbranch_scc1 B_OUT
s_cmp_eq_u32 s{sT}, 0
s_cbranch_scc1 B_OUT
s_mov_b32 s{sMode}, 1
""")
    lane_consts(A)
    A("s_branch B_RESTART")
    A.label("B_OUT")
    A(f"""
s_cmp_ge_u32 s{sWave}, 4
s_cbranch_scc1 {"B_FLUSH" if OPT["stamps"] else "B_END"}
s_lshr_b32 s{sT}, s{sWave}, 1
s_lshl_b32 s{sT}, s{sT}, 5
v_and_b32 v2, 31, v{vLane}
v_add_u32 v2, s{sT}, v2
v_mul_u32_u24 v5, {SBSTR}, v2
v_lshl_add_u32 v5, v3, 4, v5
v_add_u32 v5, {SB}, v5
v_lshlrev_b32 v6, 2, v2
ds_read_b32 v7, v6 offset:{L_DEG}
""")
    for s in range(8):
        A(f"ds_read_b128 v[{X+4*s}:{X+4*s+3}], v5 offset:{32*s}")
    tr_addr(A, 11, L_W2, 128)
    A(f"s_and_b32 s{sT}, s{sWave}, 1")
    A(f"s_lshl_b32 s{sT}, s{sT}, 6")
    A(f"v_add_u32 v11, s{sT}, v11")
    wf = lambda s: (E + 4 * s) if s < 4 else (D[1] + 4 * (s - 4))
    for s in range(8):
        A(f"ds_read_b64_tr_b16 v[{wf(s)}:{wf(s)+1}], v11 offset:{2048*s}")
        A(f"ds_read_b64_tr_b16 v[{wf(s)+2}:{wf(s)+3}], v11 offset:{2048*s + 512}")
    srd(A, SO, pOut, N_NODES * 128)
    A("s_waitcnt lgkmcnt(0)")
    d = D[0]
    for s in range(8):
        A(f"v_mfma_f32_32x32x16_bf16 v[{d}:{d+15}], v[{wf(s)}:{wf(s)+3}], v[{X+4*s}:{X+4*s+3}], {'0' if s == 0 else f'v[{d}:{d+15}]'}")
    B2 = vB2
    A(f"""
v_cvt_f32_u32 v7, v7
v_add_u32 v8, s{sStart}, v2
v_lshlrev_b32 v8, 7, v8
v_add_u32 v8, v8, v4
v_cmp_gt_u32 vcc, s{sNn}, v2
""")
    for g in range(4):
        A(f"v_lshlrev_b32 v{TU[0]+4*g}, 16, v{B2+2*g}")
        A(f"v_and_b32 v{TU[0]+4*g+1}, 0xffff0000, v{B2+2*g}")
        A(f"v_lshlrev_b32 v{TU[0]+4*g+2}, 16, v{B2+2*g+1}")
        A(f"v_and_b32 v{TU[0]+4*g+3}, 0xffff0000, v{B2+2*g+1}")
    for j in range(16):
        A(f"v_fma_f32 v{d+j}, v7, v{TU[0]+j}, v{d+j}")
    A(f"s_and_saveexec_b64 s[{sEx}:{sEx+1}], vcc")
    for g in range(4):
        A(f"v_cvt_pk_bf16_f32 v{E+2*g}, v{d+4*g}, v{d+4*g+1}")
        A(f"v_cvt_pk_bf16_f32 v{E+2*g+1}, v{d+4*g+2}, v{d+4*g+3}")
        A(f"buffer_store_dwordx2 v[{E+2*g}:{E+2*g+1}], v8, s[{SO}:{SO+3}], 0 offen offset:{16*g}")
    if OPT["stamps"]:
        A.label("B_FLUSH")
        A("s_waitcnt vmcnt(0)")
        A("STAMP 12" if False else "STAMP 15")
        stamp_flush(A, 16)
    A.label("B_END")
    A("s_endpgm")
    A.pad()
    for tag in "FS":
        bad = A.check_loop(f"B_LOOP{tag}", f"s_cbranch_scc0 B_LOOP{tag}")
        assert not bad, bad
    return A

def main(path):
    k = kernel()
    hdr = open("cdna_kernels/" + NAME + ".s.ref").read().split("; Override launch geometry")[0]
    s = hdr
    s += "; One workgroup per CU: workgroup c sorts edge chunk c by destination bucket, then processes bucket c.\n"
    s += f"; @launch grid=({NB},1,1) block=(512,1,1) lds={LDS_B}\n"
    s += '.amdgcn_target "amdgcn-amd-amdhsa--gfx950"\n.text\n'
    s += f".globl {KB}\n.p2align 8\n.type {KB},@function\n" + k.text()
    acc = (NVGPR + 3) // 4 * 4
    s += f""".section .rodata,"a"
.p2align 6
.amdhsa_kernel {KB}
  .amdhsa_next_free_vgpr {NVGPR}
  .amdhsa_next_free_sgpr 102
  .amdhsa_accum_offset {acc}
  .amdhsa_group_segment_fixed_size 0
  .amdhsa_kernarg_size 88
  .amdhsa_user_sgpr_count 2
  .amdhsa_user_sgpr_kernarg_segment_ptr 1
  .amdhsa_system_sgpr_workgroup_id_x 1
.end_amdhsa_kernel
"""
    open(path, "w").write(s)

if __name__ == "__main__":
    main(OPT["out"] or "cdna_kernels/" + NAME + ".s")
```

```python
import sys, struct
from asmlib import Asm

NAME = "gather_scatter__edge_featured_mpnn_mpnn__graph"
KB = NAME + "_kernel"
N_NODES = 10000; N_EDGES = 640000; NB = 256; CH = 2500
WS_TBL = 0; WS_REC = NB * NB * 8; WS_END = WS_REC + N_EDGES * 4 + 4096
BF_ONE = 0x3F80
SCALE = -1.4426950408889634
def f2u(x): return struct.unpack("<I", struct.pack("<f", x))[0]

OPT = dict(prio=True, stamps=False, noadd=False, nodma=False, nomfma=False, novalu=False, xwarm=False, ewarm=False, psched=((2, 1), (1, 0)), estream=0, es=(4, 3, 3), touch=False, qskip=False, recpol=' sc1', fflush=True, prioflip=False, defer=False, layout='', skew=1, es2='', stagger=1, seqform=True, dmaspread=True, late=False, prime2=True, out=None)
for a in sys.argv[1:]:
    if "=" in a:
        k, v = a.split("=", 1); OPT[k] = eval(v)

L_S = 0; L_CNT = 40960; L_NTAB = 41216; L_DEG = 42240; L_FLAG = 42496; L_QT = 42752
L_QADDR = 57088; L_QEND = 60416; L_OHT = 65024; L_OHZ = 65536; L_XB0 = 65792; XBS = 6144
L_LIST = L_XB0 + 8 * XBS; LIST_BYTES = 25600; L_Z = L_LIST + LIST_BYTES; LDS_B = L_Z + 20480
L_HIST = 0; L_BASE = 1024; L_SORT = 2048; L_WRAW = L_XB0; L_XROW = L_XB0 + 40960; L_WST = L_Z
L_W2 = L_Z
QSTR = 112; CAPQ = 768; SBSTR = 272
TB = 256

vTID = 0
aX, aG, aO, aQ, aN = 1, 2, 3, 4, 5
xr = [6, 7, 8, 9]; eAddr = 10; vQ = 11; qbase = 12; c1 = 13; lanecol = 14; ohaddr = 15
xi = [16, 18, 20, 22]; ei = 24; node0 = 26; tmp = 27; chk = 28; tmp2 = 30
qa = [32, 36]
E = 40; D = [56, 72]; X = 88; Ea = 104; OH = 108; Qx = 112; We = 128; W = 144
vTbl = 208; vdeg = 210; vLane = 211; vN6 = 212; vOhp = 213; vC25 = 214; vLim = 215
TU = [216, 224]; F64 = 232; vT = 240; v16h = 241
cX, cG, cO = 242, 243, 244
vB2 = 248
NVGPR = 256
R = 40; RK = 56; A4 = 72; NT = 88

SX = 4; SE = 8; SW = 12; SO = 16; SP = 20
sEx = 24; sEx2 = 26; sT = 28; sT2 = 29; sT3 = 30; sT4 = 31
sWave = 32; sStart = 33; sNn = 34; sS6 = 35; sXB = 36; sN = 37; sT0 = 38; sMode = 39
sR = 40; sLo = 41; sMax = 42; sTagLo = 43; sTot = 44; sTagB = 45; sCnt = 46
pX, pE, pSrc, pDst, pW1, pB1, pW2, pB2 = 48, 50, 52, 54, 56, 58, 60, 62
pOut, pDbg, pWs = 96, 98, 100
WS_STAMP = 8 << 20

def srd(A, d, base, size, stride=0):
    A(f"s_mov_b32 s{d}, s{base}")
    A(f"s_and_b32 s{d+1}, s{base+1}, 0xffff")
    if stride: A(f"s_or_b32 s{d+1}, s{d+1}, {stride << 16:#x}")
    A(f"s_mov_b32 s{d+2}, {size}")
    A(f"s_mov_b32 s{d+3}, 0x20000")

def stamp_flush(A, n):
    if not OPT["stamps"]: return
    A("s_waitcnt vmcnt(0) lgkmcnt(0)")
    A("s_mov_b64 exec, -1")
    A(f"s_lshl_b32 s{sT}, s2, 4")
    A(f"s_add_u32 s{sT}, s{sT}, s{sWave}")
    A(f"s_lshl_b32 s{sT}, s{sT}, 6")
    A(f"s_add_u32 s{sT}, s{sT}, {WS_STAMP}")
    A(f"s_add_u32 s{sEx}, s{pWs}, s{sT}")
    A(f"s_addc_u32 s{sEx+1}, s{pWs+1}, 0")
    A("v_mov_b32 v1, 0")
    for i in range(n):
        A(f"v_mov_b32 v2, s{64+2*i}")
        A(f"global_store_dword v1, v2, s[{sEx}:{sEx+1}] offset:{4*i}")
    A("s_waitcnt vmcnt(0)")

def wave_scan(A, v):
    for sh in (1, 2, 4, 8):
        A(f"v_add_u32_dpp v{v}, v{v}, v{v} row_shr:{sh} row_mask:0xf bank_mask:0xf")
    A(f"v_add_u32_dpp v{v}, v{v}, v{v} row_bcast:15 row_mask:0xa bank_mask:0xf")
    A(f"v_add_u32_dpp v{v}, v{v}, v{v} row_bcast:31 row_mask:0xc bank_mask:0xf")

def fill_lists(A):
    A(f"v_lshlrev_b32 v{tmp}, 4, v{vTID}")
    A(f"v_add_u32 v{tmp2}, {L_LIST}, v{tmp}")
    for i in range(4): A(f"v_mov_b32 v{E+i}, -1")
    for i in range(4): A(f"v_mov_b32 v{E+4+i}, 0")
    for j in range(3):
        A(f"ds_write_b128 v{tmp2}, v[{E}:{E+3}] offset:{8192*j}")
    A(f"v_cmp_gt_u32 vcc, {(L_QEND - L_QADDR) // 16}, v{vTID}")
    A(f"s_and_saveexec_b64 s[{sEx}:{sEx+1}], vcc")
    A(f"ds_write_b128 v{tmp}, v[{E+4}:{E+7}] offset:{L_QADDR}")
    A(f"v_cmp_gt_u32 vcc, {(LIST_BYTES - 3 * 8192) // 16}, v{vTID}")
    A(f"s_and_b64 exec, exec, vcc")
    A(f"ds_write_b128 v{tmp2}, v[{E}:{E+3}] offset:{8192*3}")
    A(f"v_cmp_gt_u32 vcc, 16, v{vTID}")
    A(f"s_and_b64 exec, exec, vcc")
    A(f"ds_write_b128 v{tmp}, v[{E+4}:{E+7}] offset:{L_CNT}")
    A(f"s_mov_b64 exec, s[{sEx}:{sEx+1}]")

def zero_s(A):
    for j in range(5):
        A(f"ds_write_b128 v{tmp}, v[{E+4}:{E+7}] offset:{L_S + 8192*j}")

def chain(c, d):
    q = lambda r: f"v[{r}:{r+3}]"
    dd = f"v[{d}:{d+15}]"
    M = []
    for s in range(4):
        M.append(f"v_mfma_f32_32x32x16_bf16 {dd}, {q(X+4*s)}, {q(W+16*s+4*c)}, {'0' if s == 0 else dd}")
    M.append(f"v_mfma_f32_32x32x16_bf16 {dd}, {q(Ea)}, {q(We+4*c)}, {dd}")
    M.append(f"v_mfma_f32_32x32x16_bf16 {dd}, {q(OH)}, {q(Qx+4*c)}, {dd}")
    return M

def dma_x(A):
    for i in range(4):
        A(f"s_add_u32 m0, s{sXB}, {1024*i}")
        A(f"s_nop 0")
        A(f"buffer_load_dwordx4 v[{xi[i]}:{xi[i]+1}], s[{SX}:{SX+3}], 0 idxen offen lds")
def dma_e(A, slot):
    A(f"s_add_u32 m0, s{sXB}, {4096 + 1024*slot}")
    A(f"s_nop 0")
    A(f"buffer_load_dwordx4 v[{ei}:{ei+1}], s[{SE}:{SE+3}], 0 idxen offen lds")
def read_xidx(k): return [f"ds_read_u16 v{xi[i]}, v{aX} offset:{TB*k + 8*[0,2,8,10][i]}" for i in range(4)]
def read_eidx(k): return [f"ds_read_b32 v{ei}, v{aG} offset:{TB*k}"]
def read_a(eslot):
    L = [f"ds_read_b128 v[{X+4*s}:{X+4*s+3}], v{xr[s]}" for s in range(4)]
    L.append(f"ds_read_b128 v[{Ea}:{Ea+3}], v{eAddr} offset:{1024*eslot}")
    L.append(f"ds_read_b128 v[{OH}:{OH+3}], v{ohaddr} offset:1")
    return L
def read_q(c): return f"ds_read_b128 v[{Qx+4*c}:{Qx+4*c+3}], v{vQ} offset:{32*QSTR*c}"
def calc_vq():
    return [f"v_add_u32 v{tmp}, v{node0}, v{c1}", f"v_lshrrev_b32 v{tmp}, 14, v{tmp}",
            f"v_lshl_add_u32 v{vQ}, v{tmp}, 5, v{qbase}", f"v_add_u32 v{ohaddr}, v{ohaddr}, v{v16h}"]
def read_meta(k, par):
    return [f"ds_read_b128 v[{qa[par]}:{qa[par]+3}], v{aQ} offset:{32*k}",
            f"ds_read_b32 v{node0}, v{aN} offset:{32*k}",
            f"ds_read_u16 v{ohaddr}, v{aO} offset:{TB*k}"]

def pk_list(d, c):
    e = E; p = lambda r: f"v[{r}:{r+1}]"
    T = TU[c & 1]; U = T + 4; Tp = TU[(c + 1) & 1]; Up = Tp + 4
    L = []
    if OPT["seqform"]:
        oct_ = ((0, 0), (8, 2))
        for o, j in oct_: L.append(f"v_pk_mul_f32 {p(Up+j)}, {p(Up+j)}, {p(Tp+j)}")
        for o, j in oct_: L.append(f"v_pk_fma_f32 {p(d+o)}, {p(d+o)}, {p(e+o+2)}, {p(d+o)}")
        for o, j in oct_: L.append(f"v_pk_add_f32 {p(e+o)}, {p(e+o)}, 1.0 op_sel_hi:[1,0]")
        for k in (1, 2, 3):
            last = k == 3
            if k > 1:
                for o, j in oct_: L.append(f"v_pk_fma_f32 {p(d+o)}, {p(d+o)}, {p(e+o+2*k)}, {p(d+o)}")
            for o, j in oct_: L.append(f"v_pk_fma_f32 {p(U+j) if last else p(d+o)}, {p(d+o+2*k)}, {p(e+o)}, {p(d+o)}")
            for o, j in oct_: L.append(f"v_pk_fma_f32 {p(T+j) if last else p(e+o)}, {p(e+o)}, {p(e+o+2*k)}, {p(e+o)}")
        L.append(f"v_pk_fma_f32 {p(chk)}, {p(T)}, {p(T+2)}, {p(chk)}")
        return L
    for o, j in ((0, 0), (8, 2)):
        L.append(f"v_pk_mul_f32 {p(Up+j)}, {p(Up+j)}, {p(Tp+j)}")
    for o in (0, 8):
        L.append(f"v_pk_add_f32 {p(e+o+2)}, {p(e+o+2)}, 1.0 op_sel_hi:[1,0]")
        L.append(f"v_pk_add_f32 {p(e+o+6)}, {p(e+o+6)}, 1.0 op_sel_hi:[1,0]")
    for o in (0, 8):
        L.append(f"v_pk_fma_f32 {p(d+o)}, {p(d+o)}, {p(e+o+2)}, {p(d+o+2)}")
        L.append(f"v_pk_fma_f32 {p(d+o+4)}, {p(d+o+4)}, {p(e+o+6)}, {p(d+o+6)}")
    for o in (0, 8):
        L.append(f"v_pk_fma_f32 {p(d+o)}, {p(d+o+2)}, {p(e+o)}, {p(d+o)}")
        L.append(f"v_pk_fma_f32 {p(d+o+4)}, {p(d+o+6)}, {p(e+o+4)}, {p(d+o+4)}")
    for o in (0, 8):
        L.append(f"v_pk_fma_f32 {p(e+o)}, {p(e+o)}, {p(e+o+2)}, {p(e+o+2)}")
        L.append(f"v_pk_fma_f32 {p(e+o+4)}, {p(e+o+4)}, {p(e+o+6)}, {p(e+o+6)}")
    for o, j in ((0, 0), (8, 2)):
        L.append(f"v_pk_mul_f32 {p(T+j)}, {p(e+o)}, {p(e+o+4)}")
    for o in (0, 8):
        L.append(f"v_pk_mul_f32 {p(d+o)}, {p(d+o)}, {p(e+o+4)}")
    for o, j in ((0, 0), (8, 2)):
        L.append(f"v_pk_fma_f32 {p(U+j)}, {p(d+o+4)}, {p(e+o)}, {p(d+o)}")
    for j in (0, 2):
        L.append(f"v_pk_add_f32 {p(chk)}, {p(chk)}, {p(T+j)}")
    return L

def flush_q(c, q):
    U = TU[c & 1] + 4
    cv = [f"v_cvt_f64_f32 v[{F64+2*j}:{F64+2*j+1}], v{U+j}" for j in range(4)]
    ad = [f"ds_add_f64 v{q+j}, v[{F64+2*j}:{F64+2*j+1}] offset:{256*(c & 3)}" for j in range(4)]
    return cv, ad

def emit(A, x):
    if isinstance(x, tuple):
        _, sreg, lab, body = x
        A(f"s_cmp_eq_u32 s{sreg}, 0")
        A(f"s_cbranch_scc1 {lab}")
        for y in body: A(y)
        A.label(lab)
    else: A(x)

def flush_block(A, c, q, hflag, lab):
    U = TU[c & 1] + 4
    cv, ad = flush_q(c, q)
    if OPT["noadd"]: ad = [f"ds_read_b32 v{tmp2}, v{tmp2+1}"] * 4
    if not OPT["fflush"]:
        for x in cv + ad: A(x)
        return
    A(f"s_cmp_eq_u32 s{hflag}, 0")
    A(f"s_cbranch_scc1 {lab}a")
    A(f"v_add_f32 v{U}, v{U}, v{U+1}")
    A(f"v_add_f32 v{U+2}, v{U+2}, v{U+3}")
    A(f"v_add_f32 v{U}, v{U}, v{U+2}")
    A(cv[0]); A(ad[0])
    A(f"s_branch {lab}b")
    A.label(f"{lab}a")
    for x in cv + ad: A(x)
    A.label(f"{lab}b")

def tile_iter_fast(A, par):
    k = par
    W4 = "s_waitcnt lgkmcnt(1)" if OPT["fflush"] else "s_waitcnt lgkmcnt(4)"
    for ph in range(4):
        d = D[ph & 1]; dn = D[(ph + 1) & 1]
        M = chain((ph + 1) & 3, dn)
        Tp = TU[(ph + 1) & 1]
        tr = [f"v_rcp_f32 v{Tp+j}, v{Tp+j}" for j in range(4)] + [f"v_exp_f32 v{E+j}, v{d+j}" for j in range(16)]
        extra = {i: [] for i in range(7)}
        pre = []
        def q_reload(cs):
            body = [read_q(c) for c in cs]
            return [("skip", sQch, f"B_SQ{par}{ph}", body)] if OPT["qskip"] else body
        if ph == 0:
            extra[0] += read_meta(k + 1, 1 - par)[1:]
        if ph == 1:
            pre += [W4]
            if OPT["qskip"]:
                extra[0] += [f"v_add_u32 v{tmp}, v{node0}, v{c1}", f"v_lshrrev_b32 v{tmp}, 14, v{tmp}",
                             f"v_lshl_add_u32 v{tmp}, v{tmp}, 5, v{qbase}", f"v_add_u32 v{ohaddr}, v{ohaddr}, v{v16h}",
                             f"v_cmp_ne_u32 vcc, v{tmp}, v{vQ}", f"v_mov_b32 v{vQ}, v{tmp}"]
                extra[1] += ["s_cmp_lg_u64 vcc, 0", f"s_cselect_b32 s{sQch}, 1, 0"]
            else:
                extra[0] += calc_vq()
            extra[1] += q_reload((0, 1))
            extra[2] += read_xidx(k + 2) + read_eidx(k + 3)
        if ph == 2:
            extra[0] += q_reload((2,)) + [read_meta(k + 1, 1 - par)[0]]
            extra[5] += ["s_waitcnt vmcnt(1)"] + read_a(1 - par)
        if ph == 3:
            pre += [W4]
            extra[1] += q_reload((3,))
            if OPT["fflush"]:
                qn = qa[1 - par]
                extra[2] += [f"v_cmp_ne_u32 vcc, v{qn}, v{qn+3}"]
            extra[2] += [f"v_add_u32 v{qa[1-par]+j}, v{qa[1-par]+j}, v{lanecol}" for j in range(4)]
            if OPT["fflush"]:
                extra[3] += ["s_cmp_eq_u64 vcc, 0", f"s_cselect_b32 s{sH[1 - par]}, 1, 0"]
        for x in pre: A(x)
        ti = 0
        for m in range(6):
            if not OPT["nomfma"]: A(M[m])
            if ph == 3 and not OPT["nodma"]:
                if m < 4:
                    A(f"s_add_u32 m0, s{sXB}, {1024*m}")
                    A("s_nop 0")
                    A(f"buffer_load_dwordx4 v[{xi[m]}:{xi[m]+1}], s[{SX}:{SX+3}], 0 idxen offen lds")
                if m == 4: dma_e(A, 1 - par)
            if m == 5 and ph == 2:
                for x in extra[5]: emit(A, x)
            n = 3 if m < 5 else 5
            for x in tr[ti:ti + n]:
                if not OPT["novalu"]: A(x)
            ti += n
            if not (m == 5 and ph == 2):
                for x in extra[m]: emit(A, x)
        flush_block(A, ph + 2, qa[par] if ph >= 2 else qa[1 - par], sH[par] if ph >= 2 else sH[1 - par], f"B_FL{par}{ph}")
        if not OPT["novalu"]:
            for x in pk_list(d, ph): A(x)

def drain_fast(A, par):
    p = lambda r: f"v[{r}:{r+1}]"
    cv, ad = flush_q(2, qa[par])
    T = TU[1]; U = T + 4
    for j in range(4): A(f"v_rcp_f32 v{T+j}, v{T+j}")
    for x in cv + ad: A(x)
    for j in (0, 2): A(f"v_pk_mul_f32 {p(U+j)}, {p(U+j)}, {p(T+j)}")
    cv, ad = flush_q(3, qa[par])
    for x in cv + ad: A(x)

def tile_iter_safe(A, par):
    k = par; e = E; p = lambda r: f"v[{r}:{r+1}]"
    for ph in range(4):
        d = D[ph & 1]; dn = D[(ph + 1) & 1]
        if ph == 0:
            for x in read_meta(k + 1, 1 - par): A(x)
        if ph == 1:
            A("s_waitcnt lgkmcnt(4)")
            for x in calc_vq(): A(x)
            for j in range(4): A(f"v_add_u32 v{qa[1-par]+j}, v{qa[1-par]+j}, v{lanecol}")
            for x in [read_q(0), read_q(1)] + read_xidx(k + 2) + read_eidx(k + 3): A(x)
        if ph == 2: A(read_q(2))
        if ph == 3:
            A("s_waitcnt lgkmcnt(4)")
            dma_x(A); dma_e(A, 1 - par)
            A(read_q(3))
        for m in chain((ph + 1) & 3, dn): A(m)
        if ph == 2:
            A("s_waitcnt vmcnt(1)")
            for x in read_a(1 - par): A(x)
        for j in range(16): A(f"v_exp_f32 v{e+j}, v{d+j}")
        for j in range(0, 16, 2): A(f"v_pk_add_f32 {p(e+j)}, {p(e+j)}, 1.0 op_sel_hi:[1,0]")
        for j in range(16): A(f"v_rcp_f32 v{e+j}, v{e+j}")
        for j in range(0, 16, 2): A(f"v_pk_mul_f32 {p(d+j)}, {p(d+j)}, {p(e+j)}")
        for o in (0, 8):
            A(f"v_pk_add_f32 {p(d+o)}, {p(d+o)}, {p(d+o+2)}")
            A(f"v_pk_add_f32 {p(d+o+4)}, {p(d+o+4)}, {p(d+o+6)}")
        for o in (0, 8): A(f"v_pk_add_f32 {p(d+o)}, {p(d+o)}, {p(d+o+4)}")
        cvt = ((d, F64), (d + 1, F64 + 2), (d + 8, F64 + 4), (d + 9, F64 + 6))
        for r, t in cvt: A(f"v_cvt_f64_f32 v[{t}:{t+1}], v{r}")
        for j, (r, t) in enumerate(cvt): A(f"ds_add_f64 v{qa[par]+j}, v[{t}:{t+1}] offset:{256*ph}")

def main_loop(A, fast):
    tag = "F" if fast else "S"
    if OPT["prio"]: A("s_setprio 3")
    if OPT["stagger"]:
        A(f"s_cmp_lt_u32 s{sWave}, 4")
        A(f"s_cbranch_scc1 B_STG0{tag}")
        A("s_barrier")
        A.label(f"B_STG0{tag}")
    for x in read_xidx(0) + read_eidx(0): A(x)
    for x in read_meta(0, 0): A(x)
    A("s_waitcnt lgkmcnt(0)")
    dma_x(A); dma_e(A, 0)
    if OPT["stagger"] == 2:
        A(f"s_cmp_lt_u32 s{sWave}, 4")
        A(f"s_cbranch_scc1 B_STG2{tag}")
        A("s_barrier")
        A.label(f"B_STG2{tag}")
    for x in read_eidx(1): A(x)
    for x in calc_vq(): A(x)
    for j in range(4): A(f"v_add_u32 v{qa[0]+j}, v{qa[0]+j}, v{lanecol}")
    for c in range(4): A(read_q(c))
    for x in read_xidx(1): A(x)
    if fast:
        for t in TU:
            for j in range(4):
                A(f"v_mov_b32 v{t+j}, 1.0")
                A(f"v_mov_b32 v{t+4+j}, 0")
        for j in range(4): A(f"v_mov_b32 v{qa[1]+j}, v{lanecol}")
        A(f"v_cmp_ne_u32 vcc, v{qa[0]}, v{qa[0]+3}")
        A(f"s_mov_b32 s{sH[1]}, 0")
        A("s_cmp_eq_u64 vcc, 0")
        A(f"s_cselect_b32 s{sH[0]}, 1, 0")
    A("s_waitcnt vmcnt(0)")
    if OPT["stagger"]:
        A(f"s_cmp_ge_u32 s{sWave}, 4")
        A(f"s_cbranch_scc1 B_STG1{tag}")
        A("s_barrier")
        A.label(f"B_STG1{tag}")
    for x in read_a(0): A(x)
    A("s_waitcnt lgkmcnt(0)")
    if OPT["stagger"] == 2:
        A(f"s_cmp_ge_u32 s{sWave}, 4")
        A(f"s_cbranch_scc1 B_STG3{tag}")
        A("s_barrier")
        A.label(f"B_STG3{tag}")
    if OPT["prime2"]: dma_e(A, 1)
    for x in read_eidx(2): A(x)
    dma_x(A)
    A("s_waitcnt lgkmcnt(0)")
    if OPT["defer"] and fast: A(f"s_mov_b32 s{sDef}, 1")
    else: dma_e(A, 0)
    for m in chain(0, D[0]): A(m)
    if OPT["prio"]: A("s_setprio 2")
    A("s_nop 7")
    A("s_nop 3")
    if fast: A("STAMP 9"); A("CSTAMP 13")
    A.label(f"B_LOOP{tag}")
    for par in (0, 1):
        if fast: tile_iter_fast(A, par)
        else: tile_iter_safe(A, par)
        if par == 1:
            for r in (aX, aG, aO): A(f"v_add_u32 v{r}, {2*TB}, v{r}")
            for r in (aQ, aN): A(f"v_add_u32 v{r}, 64, v{r}")
        A(f"s_sub_u32 s{sN}, s{sN}, 1")
        if OPT["prio"] and not (fast and OPT["prioflip"]):
            for rem, pr in OPT["psched"]:
                A(f"s_cmp_eq_u32 s{sN}, {rem}")
                A(f"s_cbranch_scc0 B_P{tag}{par}{rem}")
                A(f"s_setprio {pr}")
                A.label(f"B_P{tag}{par}{rem}")
        A(f"s_cmp_eq_u32 s{sN}, 0")
        if par == 0: A(f"s_cbranch_scc1 {'B_DRAIN0' if fast else 'B_LOOPEND'}")
        else: A(f"s_cbranch_scc0 B_LOOP{tag}")
    if fast:
        drain_fast(A, 1)
        A("s_branch B_LOOPEND")
        A.label("B_DRAIN0")
        drain_fast(A, 0)
    A("s_branch B_LOOPEND")

def sort_slots(A, body, groups, tag):
    for g in groups:
        for i in range(4):
            A(f"v_cmpx_lt_i32 vcc, {8*g+i}, v{vLim}")
            if i % 2 == 0: A(f"s_cbranch_execz {tag}")
            body(g, i)

def estream(A, first, n, vaddr):
    srd(A, SP, pE, N_EDGES * 32)
    A(f"s_mul_i32 s{sT}, s2, {CH * 32}")
    A(f"s_mul_i32 s{sT2}, s{sWave}, 10240")
    A(f"s_add_u32 s{sT}, s{sT}, s{sT2}")
    A(f"s_add_u32 s{sT}, s{sT}, {1024 * first}")
    A(f"v_lshlrev_b32 v{vaddr}, 4, v{vLane}")
    for j in range(n):
        A(f"buffer_load_dwordx4 v[{F64}:{F64+3}], v{vaddr}, s[{SP}:{SP+3}], s{sT} offen offset:{1024*j}")

sDef = 3; sES = 47; sQch = 28; sH = [29, 30]; SES = 4
def es_init(A):
    if not OPT["es2"]: return
    srd(A, SE, pE, N_EDGES * 32)
    A(f"s_mul_i32 s{sES}, s2, {CH * 32}")
    A(f"s_mul_i32 s{sT4}, s{sWave}, 10240")
    A(f"s_add_u32 s{sES}, s{sES}, s{sT4}")
    A(f"v_lshlrev_b32 v247, 4, v{vLane}")
def es(A, tag):
    if tag not in OPT["es2"]: return
    A(f"buffer_load_dwordx4 v[{F64}:{F64+3}], v247, s[{SRDE[0]}:{SRDE[0]+3}], s{sES} offen")
    A(f"s_add_u32 s{sES}, s{sES}, 1024")
SRDE = [SE]

def tr_addr(A, dst, base, rowbytes):
    A(f"v_lshrrev_b32 v{tmp}, 5, v{vLane}")
    A(f"v_bfe_u32 v{tmp2}, v{vLane}, 2, 2")
    A(f"v_lshl_add_u32 v{tmp}, v{tmp}, 3, v{tmp2}")
    A(f"v_mul_u32_u24 v{dst}, {rowbytes}, v{tmp}")
    A(f"v_bfe_u32 v{tmp}, v{vLane}, 4, 1")
    A(f"v_lshl_add_u32 v{dst}, v{tmp}, 5, v{dst}")
    A(f"v_and_b32 v{tmp}, 3, v{vLane}")
    A(f"v_lshl_add_u32 v{dst}, v{tmp}, 3, v{dst}")
    A(f"v_add_u32 v{dst}, {base}, v{dst}")

def lane_consts(A):
    A(f"""
v_add_u32 v{vN6}, s{sS6}, v{vLane}
v_and_b32 v{vN6}, 63, v{vN6}
v_lshlrev_b32 v{vN6}, 2, v{vN6}
v_and_b32 v1, 15, v{vLane}
v_lshlrev_b32 v1, 5, v1
v_add_u32 v1, {L_OHT - 1}, v1
v_lshlrev_b32 v{vOhp}, 16, v1
v_lshrrev_b32 v4, 1, v{vTID}
v_mul_u32_u24 v{vC25}, {CH}, v4
v_and_b32 v40, 31, v{vLane}
v_lshrrev_b32 v41, 5, v{vLane}
v_bfe_u32 v42, v{vLane}, 1, 3
v_lshlrev_b32 v43, 7, v40
v_add_u32 v43, s{sXB}, v43
""")
    for s in range(4):
        A(f"v_or_b32 v44, {2*s}, v41")
        A(f"v_xor_b32 v44, v44, v42")
        A(f"v_lshl_add_u32 v{xr[s]}, v44, 4, v43")
    A(f"""
v_lshlrev_b32 v{eAddr}, 4, v{vLane}
v_add_u32 v{eAddr}, s{sXB}, v{eAddr}
v_add_u32 v{eAddr}, 0x1000, v{eAddr}
v_mul_u32_u24 v{qbase}, {QSTR}, v40
v_lshl_add_u32 v{qbase}, v41, 4, v{qbase}
v_add_u32 v{qbase}, {L_QT}, v{qbase}
v_xor_b32 v{c1}, 1, v41
v_lshlrev_b32 v{c1}, 13, v{c1}
v_lshlrev_b32 v{lanecol}, 3, v40
v_lshlrev_b32 v{v16h}, 4, v41
v_and_b32 v44, 7, v{vLane}
v_lshrrev_b32 v45, 4, v{vLane}
v_xor_b32 v46, v44, v45
v_lshlrev_b32 v{xi[0]+1}, 4, v46
v_mov_b32 v{xi[2]+1}, v{xi[0]+1}
v_xor_b32 v46, 4, v46
v_lshlrev_b32 v{xi[1]+1}, 4, v46
v_mov_b32 v{xi[3]+1}, v{xi[1]+1}
v_lshlrev_b32 v{ei+1}, 4, v41
v_bfe_u32 v44, v{vLane}, 3, 1
v_bfe_u32 v45, v{vLane}, 4, 1
v_lshlrev_b32 v46, 4, v41
v_lshl_add_u32 v46, v44, 2, v46
v_add_u32 v46, v46, v45
v_lshlrev_b32 v{cX}, 3, v46
v_bfe_u32 v44, v{vLane}, 2, 1
v_lshlrev_b32 v46, 4, v44
v_bfe_u32 v44, v{vLane}, 4, 1
v_lshl_add_u32 v46, v44, 3, v46
v_and_b32 v44, 1, v{vLane}
v_lshl_add_u32 v46, v44, 2, v46
v_bfe_u32 v44, v{vLane}, 3, 1
v_lshl_add_u32 v46, v44, 1, v46
v_bfe_u32 v44, v{vLane}, 1, 1
v_add_u32 v46, v46, v44
v_lshlrev_b32 v{cO}, 3, v46
v_add_u32 v{cG}, 4, v{cO}
v_add_u32 v{cO}, 2, v{cO}
""")

def kernel():
    A = Asm(OPT["stamps"])
    A.label(KB)
    A(f"""
s_cmp_ge_u32 s2, {NB}
s_cbranch_scc1 B_END
STAMP 0
CSTAMP 11
s_load_dwordx16 s[48:63], s[0:1], 0
s_load_dwordx4 s[96:99], s[0:1], 64
s_load_dwordx2 s[100:101], s[0:1], 80
s_memrealtime s[{sEx2}:{sEx2+1}]
v_lshrrev_b32 v1, 6, v0
v_and_b32 v{vLane}, 63, v0
v_readfirstlane_b32 s{sWave}, v1
s_mul_i32 s{sStart}, s2, 625
s_add_u32 s{sT}, s{sStart}, {625 + 15}
s_add_u32 s{sStart}, s{sStart}, 15
s_lshr_b32 s{sStart}, s{sStart}, 4
s_lshr_b32 s{sT}, s{sT}, 4
s_sub_u32 s{sNn}, s{sT}, s{sStart}
s_and_b32 s{sS6}, s{sStart}, 63
s_mul_i32 s{sXB}, s{sWave}, {XBS}
s_add_u32 s{sXB}, s{sXB}, {L_XB0}
s_mov_b32 s{sMode}, 0
s_mov_b32 s{sR}, 32
s_mov_b32 s{sLo}, 0
s_mov_b32 s{sCnt}, 0x400000
v_mov_b32 v{vdeg}, 0
v_mov_b32 v{chk}, 0
v_mov_b32 v{chk+1}, 0
v_mov_b32 v40, 0
v_mov_b32 v41, 0
v_mov_b32 v42, 0
v_mov_b32 v43, 0
v_lshlrev_b32 v2, 4, v{vTID}
v_cmp_gt_u32 vcc, 64, v{vTID}
s_and_saveexec_b64 s[{sEx}:{sEx+1}], vcc
ds_write_b128 v2, v[40:43] offset:{L_HIST}
s_mov_b64 exec, s[{sEx}:{sEx+1}]
v_cmp_gt_u32 vcc, 0x88, v{vTID}
s_and_saveexec_b64 s[{sEx}:{sEx+1}], vcc
v_lshrrev_b32 v3, 3, v{vTID}
v_and_b32 v4, 7, v{vTID}
v_lshrrev_b32 v5, 1, v3
v_and_b32 v6, 1, v3
v_lshlrev_b32 v6, 4, v6
v_mov_b32 v7, {BF_ONE:#x}
v_lshlrev_b32 v7, v6, v7
v_cmp_eq_u32 vcc, v4, v5
v_lshlrev_b32 v8, 2, v{vTID}
v_cndmask_b32 v7, 0, v7, vcc
v_add_u32 v8, {L_OHT}, v8
ds_write_b32 v8, v7
s_mov_b64 exec, s[{sEx}:{sEx+1}]
v_cmp_gt_u32 vcc, 16, v{vTID}
s_and_saveexec_b64 s[{sEx}:{sEx+1}], vcc
ds_write_b128 v2, v[40:43] offset:{L_FLAG}
s_mov_b64 exec, s[{sEx}:{sEx+1}]
s_waitcnt lgkmcnt(0)
s_barrier
STAMP 1
""")
    A(f"""
s_cmp_lg_u32 s2, 0
s_cbranch_scc1 A_NONONCE
s_cmp_lg_u32 s{sWave}, 0
s_cbranch_scc1 A_NONONCE
s_and_b32 s{sEx2+1}, s{sEx2+1}, 0xff
s_or_b32 s{sEx2+1}, s{sEx2+1}, 0x80000000
v_mov_b32 v4, s{sEx2}
v_mov_b32 v5, s{sEx2+1}
v_mov_b32 v3, 0
s_mov_b64 exec, 1
global_store_dwordx2 v3, v[4:5], s[{pDbg}:{pDbg+1}] sc1
s_mov_b64 exec, -1
""")
    A.label("A_NONONCE")
    if OPT["touch"]:
        ptrs = [pW1, pX, pB1, pWs, pE, pW2, pOut, pB2]
        A("v_mov_b32 v3, 0")
        for w, p in enumerate(ptrs):
            A(f"s_cmp_lg_u32 s{sWave}, {w}")
            A(f"s_cbranch_scc1 A_T{w}")
            A(f"global_load_dword v{F64+5}, v3, s[{p}:{p+1}]")
            A.label(f"A_T{w}")
    srd(A, SO, pDst, N_EDGES * 4)
    srd(A, SP, pSrc, N_EDGES * 4)
    A(f"""
s_mul_i32 s{sT}, s2, {CH * 4}
v_add_u32 v3, 0x2000, v2
v_mov_b32 v4, 0x7ffffff0
v_cmp_gt_u32 vcc, {CH // 4 - 512}, v{vTID}
s_mov_b64 s[{sEx2}:{sEx2+1}], vcc
v_cndmask_b32 v3, v4, v3, vcc
buffer_load_dwordx4 v[40:43], v2, s[{SO}:{SO+3}], s{sT} offen
buffer_load_dwordx4 v[44:47], v2, s[{SP}:{SP+3}], s{sT} offen
buffer_load_dwordx4 v[48:51], v3, s[{SO}:{SO+3}], s{sT} offen
buffer_load_dwordx4 v[52:55], v3, s[{SP}:{SP+3}], s{sT} offen
""")
    srd(A, SO, pW1, 144 * 128 * 2)
    srd(A, SP, pX, N_NODES * 128)
    A(f"v_lshlrev_b32 v1, 4, v{vLane}")
    A(f"s_lshl_b32 s{sT2}, s{sWave}, 10")
    for j in range(5):
        A(f"s_add_u32 m0, s{sT2}, {L_WRAW + 8192*j}")
        A(f"s_add_u32 s{sT3}, s{sT2}, {8192*j}")
        A(f"buffer_load_dwordx4 v1, s[{SO}:{SO+3}], s{sT3} offen lds")
    A(f"""
s_lshl_b32 s{sT3}, s{sWave}, 3
v_lshrrev_b32 v5, 3, v{vLane}
v_add_u32 v5, s{sT3}, v5
v_bfe_u32 v6, v5, 1, 3
v_and_b32 v7, 7, v{vLane}
v_xor_b32 v6, v6, v7
v_add_u32 v5, s{sStart}, v5
v_lshlrev_b32 v5, 7, v5
v_lshl_add_u32 v5, v6, 4, v5
s_add_u32 m0, s{sT2}, {L_XROW}
s_and_b32 s{sT3}, s{sWave}, 3
buffer_load_dwordx4 v5, s[{SP}:{SP+3}], 0 offen lds
s_lshl_b32 s{sT3}, s{sT3}, 5
v_and_b32 v5, 31, v{vLane}
v_lshrrev_b32 v222, 5, v{vLane}
v_add_u32 v221, s{sT3}, v5
v_lshlrev_b32 v9, 1, v221
global_load_ushort v223, v9, s[{pB1}:{pB1+1}]
""")
    A(f"""
v_lshlrev_b32 v11, 16, v{vTID}
v_add_u32 v12, {2048 << 14:#x}, v11
s_mov_b32 s{sT2}, 429497
STAMP 2
s_waitcnt vmcnt(7)
STAMP 3
""")
    es_init(A)
    es(A, "a")
    def hist(base, dst, src, eid):
        for i in range(4): A(f"v_mul_u32_u24 v{base+i}, s{sT2}, v{dst+i}")
        for i in range(4): A(f"v_lshrrev_b32 v{base+i}, 22, v{base+i}")
        for i in range(4):
            A(f"v_and_b32 v{base+i}, 0x3fc, v{base+i}")
            A(f"ds_add_rtn_u32 v{base+8+i}, v{base+i}, v13 offset:{L_HIST}")
        for i in range(4):
            A(f"v_lshl_or_b32 v{dst+i}, v{dst+i}, 26, v{src+i}")
            A(f"v_add_u32 v{dst+i}, v{dst+i}, v{eid}")
            if i: A(f"v_add_u32 v{dst+i}, {i << 14:#x}, v{dst+i}")
    A("v_mov_b32 v13, 1")
    hist(56, 40, 44, 11)
    es(A, "b")
    A(f"s_cmp_ge_u32 s{sWave}, 2")
    A("s_cbranch_scc1 A_H1")
    A(f"s_mov_b64 exec, s[{sEx2}:{sEx2+1}]")
    hist(60, 48, 52, 12)
    A("s_mov_b64 exec, -1")
    A.label("A_H1")
    A(f"""
s_waitcnt lgkmcnt(0)
s_barrier
v_lshlrev_b32 v14, 4, v{vLane}
ds_read_b128 v[72:75], v14 offset:{L_HIST}
v_mov_b32 v15, 0
s_cmp_lg_u32 s{sWave}, 0
s_cbranch_scc1 A_NOTAG0
global_load_dwordx2 v[16:17], v15, s[{pDbg}:{pDbg+1}] sc1
A_NOTAG0:
s_waitcnt lgkmcnt(0)
v_add_u32 v76, v72, v73
v_add_u32 v77, v76, v74
v_add_u32 v78, v77, v75
v_mov_b32 v79, v78
""")
    es(A, "c")
    wave_scan(A, 79)
    A(f"""
v_sub_u32 v80, v79, v78
v_add_u32 v81, v80, v72
v_add_u32 v82, v80, v76
v_add_u32 v83, v80, v77
ds_write_b128 v14, v[80:83] offset:{L_BASE}
s_waitcnt lgkmcnt(0)
""")
    def place(addr, rank, rec):
        for i in range(4): A(f"ds_read_b32 v{addr+i}, v{addr+i} offset:{L_BASE}")
        for i in range(4):
            A(f"s_waitcnt lgkmcnt({3-i})")
            A(f"v_add_lshl_u32 v{addr+i}, v{addr+i}, v{rank+i}, 2")
            A(f"ds_write_b32 v{addr+i}, v{rec+i} offset:{L_SORT}")
    place(56, 64, 40)
    A(f"s_cmp_ge_u32 s{sWave}, 2")
    A("s_cbranch_scc1 A_H2")
    A(f"s_mov_b64 exec, s[{sEx2}:{sEx2+1}]")
    place(60, 68, 48)
    A("s_mov_b64 exec, -1")
    A.label("A_H2")
    srd(A, SW, pWs, WS_END)
    A(f"""
s_waitcnt lgkmcnt(0)
s_barrier
STAMP 4
ds_read_b128 v[40:43], v2 offset:{L_SORT}
ds_read_b128 v[44:47], v2 offset:{L_SORT + 8192}
s_mul_i32 s{sT}, s2, {CH * 4}
s_add_u32 s{sT}, s{sT}, {WS_REC}
s_waitcnt lgkmcnt(1)
buffer_store_dwordx4 v[40:43], v2, s[{SW}:{SW+3}], s{sT} offen sc1
s_waitcnt lgkmcnt(0)
buffer_store_dwordx4 v[44:47], v3, s[{SW}:{SW+3}], s{sT} offen sc1
""")
    A(f"""
s_cmp_lg_u32 s{sWave}, 0
s_cbranch_scc1 A_DRAIN
""")
    A.label("A_NONCE")
    A(f"""
s_waitcnt vmcnt(0)
v_readfirstlane_b32 s{sTagLo}, v16
v_readfirstlane_b32 s{sTagB}, v17
s_cmp_lt_i32 s{sTagB}, 0
s_cbranch_scc1 A_HAVETAG
A_NONCE2:
s_sub_u32 s{sCnt}, s{sCnt}, 1
s_cmp_eq_u32 s{sCnt}, 0
s_cbranch_scc1 B_END
s_sleep 1
global_load_dwordx2 v[16:17], v15, s[{pDbg}:{pDbg+1}] sc1
s_waitcnt vmcnt(0)
v_readfirstlane_b32 s{sTagLo}, v16
v_readfirstlane_b32 s{sTagB}, v17
s_cmp_lt_i32 s{sTagB}, 0
s_cbranch_scc0 A_NONCE2
""")
    A.label("A_HAVETAG")
    A(f"""
v_and_b32 v17, 0xff, v17
v_mov_b32 v15, {L_FLAG}
ds_write_b64 v15, v[16:17] offset:16
s_and_b32 s{sTagB}, s{sTagB}, 0xff
""")
    A.label("A_DRAIN")
    A(f"""
s_waitcnt vmcnt(0) lgkmcnt(0)
s_barrier
s_cmp_lg_u32 s{sWave}, 0
s_cbranch_scc1 A_PUBLISHED
s_lshl_b32 s{sT}, s{sTagB}, 24
v_mov_b32 v41, s{sTagLo}
v_mov_b32 v43, s{sTagLo}
v_mov_b32 v45, s{sTagLo}
v_mov_b32 v47, s{sTagLo}
v_lshl_or_b32 v40, v72, 12, v80
v_lshl_or_b32 v42, v73, 12, v81
v_lshl_or_b32 v44, v74, 12, v82
v_lshl_or_b32 v46, v75, 12, v83
v_or_b32 v40, s{sT}, v40
v_or_b32 v42, s{sT}, v42
v_or_b32 v44, s{sT}, v44
v_or_b32 v46, s{sT}, v46
v_lshlrev_b32 v14, 5, v{vLane}
s_lshl_b32 s{sT}, s2, 11
s_add_u32 s{sT}, s{sT}, {WS_TBL}
buffer_store_dwordx4 v[40:43], v14, s[{SW}:{SW+3}], s{sT} offen sc1
buffer_store_dwordx4 v[44:47], v14, s[{SW}:{SW+3}], s{sT} offen offset:16 sc1
""")
    A.label("A_PUBLISHED")
    A("STAMP 5")
    if OPT["xwarm"]:
        srd(A, SP, pX, N_NODES * 128)
        A(f"s_lshr_b32 s{sT}, s2, 3")
        A(f"s_mul_i32 s{sT}, s{sT}, 40000")
        A(f"s_mul_i32 s{sT2}, s{sWave}, 5000")
        A(f"s_add_u32 s{sT}, s{sT}, s{sT2}")
        A(f"v_lshlrev_b32 v246, 4, v{vLane}")
        for j in range(5):
            A(f"buffer_load_dwordx4 v[{F64}:{F64+3}], v246, s[{SP}:{SP+3}], s{sT} offen offset:{1024*j if j < 4 else 0}")
            if j == 3: A(f"s_add_u32 s{sT}, s{sT}, 4096")
    es(A, "d")
    if OPT["estream"] == 3: estream(A, OPT["es"][0], OPT["es"][1], 247)
    A(f"v_mov_b32 v15, {L_FLAG}")
    A("ds_read_b64 v[16:17], v15 offset:16")
    A("s_waitcnt lgkmcnt(0)")
    A(f"v_readfirstlane_b32 s{sTagLo}, v16")
    A(f"v_readfirstlane_b32 s{sTagB}, v17")
    fill_lists(A)
    zero_s(A)
    es(A, "e")
    srd(A, SX, pX, N_NODES, stride=128)
    lane_consts(A)
    es(A, "f")
    A(f"""
s_lshr_b32 s{sT}, s{sWave}, 2
s_lshl_b32 s{sT}, s{sT}, 12
s_add_u32 s{sT}, s{sT}, {L_XROW}
v_and_b32 v216, 31, v{vLane}
v_bfe_u32 v217, v{vLane}, 1, 3
v_lshlrev_b32 v216, 7, v216
v_add_u32 v216, s{sT}, v216
""")
    for s_ in range(4):
        A(f"v_or_b32 v218, {2*s_}, v222")
        A(f"v_xor_b32 v218, v218, v217")
        A(f"v_lshl_add_u32 v218, v218, 4, v216")
        A(f"ds_read_b128 v[{X+4*s_}:{X+4*s_+3}], v218")
    tr_addr(A, 216, L_WRAW, 256)
    A(f"""
s_lshr_b32 s{sT}, s{sWave}, 2
s_lshl_b32 s{sT}, s{sT}, 12
s_and_b32 s{sT2}, s{sWave}, 3
s_lshl_b32 s{sT2}, s{sT2}, 6
s_add_u32 s{sT}, s{sT}, s{sT2}
v_add_u32 v217, s{sT}, v216
v_add_u32 v218, s{sT2}, v216
""")
    for j, (reg, off) in enumerate(((217, 0), (217, 32 * 256), (218, 128 * 256))):
        A(f"ds_read_b64_tr_b16 v[{40+4*j}:{41+4*j}], v{reg} offset:{off}")
        A(f"ds_read_b64_tr_b16 v[{42+4*j}:{43+4*j}], v{reg} offset:{off + 1024}")
    for s in range(4):
        A(f"ds_read_b64_tr_b16 v[{D[0]+4*s}:{D[0]+4*s+1}], v218 offset:{(64 + 16*s) * 256}")
        A(f"ds_read_b64_tr_b16 v[{D[0]+4*s+2}:{D[0]+4*s+3}], v218 offset:{(64 + 16*s) * 256 + 1024}")
    A(f"s_mov_b32 s{sT3}, {f2u(SCALE):#x}")
    A("s_waitcnt lgkmcnt(8)")
    for j in range(12):
        A(f"v_lshlrev_b32 v219, 16, v{40+j}")
        A(f"v_and_b32 v220, 0xffff0000, v{40+j}")
        A(f"v_mul_f32 v219, s{sT3}, v219")
        A(f"v_mul_f32 v220, s{sT3}, v220")
        A(f"v_cvt_pk_bf16_f32 v{40+j}, v219, v220")
    A(f"""
v_lshlrev_b32 v219, 4, v{vLane}
s_lshl_b32 s{sT}, s{sWave}, 10
s_add_u32 s{sT}, s{sT}, {L_WST}
v_add_u32 v219, s{sT}, v219
""")
    A(f"ds_write_b128 v219, v[40:43]")
    A(f"ds_write_b128 v219, v[44:47] offset:8192")
    A("s_waitcnt lgkmcnt(2)")
    for s in range(4):
        A(f"v_mfma_f32_32x32x16_bf16 v[{D[1]}:{D[1]+15}], v[{X+4*s}:{X+4*s+3}], v[{D[0]+4*s}:{D[0]+4*s+3}], {'0' if s == 0 else f'v[{D[1]}:{D[1]+15}]'}")
    A(f"s_cmp_ge_u32 s{sWave}, 4")
    A("s_cbranch_scc1 B_NOWC")
    A(f"ds_write_b128 v219, v[48:51] offset:16384")
    A.label("B_NOWC")
    A(f"""
v_lshlrev_b32 v223, 16, v223
v_mul_f32 v223, s{sT3}, v223
v_mul_u32_u24 v224, {QSTR}, v221
s_lshr_b32 s{sT}, s{sWave}, 2
s_lshl_b32 s{sT}, s{sT}, 6
v_lshl_add_u32 v224, v222, 3, v224
v_add_u32 v224, s{sT}, v224
""")
    for j in range(16): A(f"v_fma_f32 v{D[1]+j}, v{D[1]+j}, s{sT3}, v223")
    for g in range(4):
        A(f"v_cvt_pk_bf16_f32 v{X+2*g}, v{D[1]+4*g}, v{D[1]+4*g+1}")
        A(f"v_cvt_pk_bf16_f32 v{X+2*g+1}, v{D[1]+4*g+2}, v{D[1]+4*g+3}")
    for g in range(2):
        A(f"ds_write_b64 v224, v[{X+2*g}:{X+2*g+1}] offset:{L_QT + 16*g}")
    A(f"s_cmp_ge_u32 s{sWave}, 4")
    A(f"s_cbranch_scc1 B_QDONE")
    for g in range(2, 4):
        A(f"ds_write_b64 v224, v[{X+2*g}:{X+2*g+1}] offset:{L_QT + 16*g}")
    A.label("B_QDONE")
    es(A, "g")
    if OPT["es2"]:
        srd(A, SP, pE, N_EDGES * 32)
        SRDE[0] = SP
    srd(A, SE, pE, N_EDGES, stride=32)
    A(f"""
s_waitcnt lgkmcnt(0)
s_barrier
v_lshlrev_b32 v1, 4, v{vLane}
v_add_u32 v1, {L_WST}, v1
""")
    for u in range(16): A(f"ds_read_b128 v[{W+4*u}:{W+4*u+3}], v1 offset:{1024*u}")
    for c in range(4): A(f"ds_read_b128 v[{We+4*c}:{We+4*c+3}], v1 offset:{1024*(16+c)}")
    A(f"""
v_lshrrev_b32 v4, 1, v{vTID}
v_lshlrev_b32 v4, 11, v4
s_lshl_b32 s{sT}, s2, 3
s_add_u32 s{sT}, s{sT}, {WS_TBL}
s_mov_b32 s{sCnt}, 0x400000
STAMP 6
""")
    A.label("B_POLL")
    A(f"""
buffer_load_dwordx2 v[{vTbl}:{vTbl+1}], v4, s[{SW}:{SW+3}], s{sT} offen sc1
s_waitcnt vmcnt(0)
v_lshrrev_b32 v5, 24, v{vTbl}
v_cmp_ne_u32 vcc, s{sTagLo}, v{vTbl+1}
v_cmp_ne_u32 s[{sEx}:{sEx+1}], s{sTagB}, v5
s_or_b64 vcc, vcc, s[{sEx}:{sEx+1}]
s_and_b64 exec, exec, vcc
s_cbranch_execz B_POLLED
s_sub_u32 s{sCnt}, s{sCnt}, 1
s_cmp_eq_u32 s{sCnt}, 0
s_cbranch_scc1 B_END
s_sleep 2
s_branch B_POLL
""")
    A.label("B_POLLED")
    A("s_mov_b64 exec, -1")
    A("STAMP 7")
    A.label("B_ROUND")
    A(f"""
v_bfe_u32 v{vLim}, v{vTbl}, 12, 12
v_mov_b32 v245, v{vLim}
v_subrev_u32 v{vLim}, s{sLo}, v{vLim}
v_min_i32 v{vLim}, s{sR}, v{vLim}
v_and_b32 v{vT}, 1, v{vTID}
v_lshlrev_b32 v{vT}, 2, v{vT}
v_sub_u32 v{vLim}, v{vLim}, v{vT}
v_and_b32 v{tmp}, 0xfff, v{vTbl}
v_add3_u32 v{tmp}, v{tmp}, v{vC25}, v{vT}
v_add_u32 v{tmp}, s{sLo}, v{tmp}
v_lshlrev_b32 v{tmp}, 2, v{tmp}
v_mov_b32 v{tmp2+1}, 0x7ffffff0
s_mov_b32 s{sT}, {WS_REC}
""")
    for g in range(4):
        A(f"v_cmp_lt_i32 vcc, {8*g}, v{vLim}")
        A(f"v_cndmask_b32 v{tmp2}, v{tmp2+1}, v{tmp}, vcc")
        A(f"buffer_load_dwordx4 v[{R+4*g}:{R+4*g+3}], v{tmp2}, s[{SW}:{SW+3}], s{sT} offen offset:{32*g}{OPT['recpol']}")
    if OPT["estream"] == 1:
        A(f"s_cmp_lg_u32 s{sLo}, 0")
        A("s_cbranch_scc1 B_NOSTREAM")
        srd(A, SP, pE, N_EDGES * 32)
        A(f"s_mul_i32 s{sT}, s2, {CH * 32}")
        A(f"s_mul_i32 s{sT2}, s{sWave}, 10240")
        A(f"s_add_u32 s{sT}, s{sT}, s{sT2}")
        A(f"v_lshlrev_b32 v247, 4, v{vLane}")
        for j in range(10):
            A(f"buffer_load_dwordx4 v[{F64}:{F64+3}], v247, s[{SP}:{SP+3}], s{sT} offen offset:{1024*(j % 4)}")
            if j % 4 == 3: A(f"s_add_u32 s{sT}, s{sT}, 4096")
        A("s_waitcnt lgkmcnt(0)")
        A("s_barrier")
        A(f"v_mov_b32 v246, {L_FLAG}")
        A("ds_max_u32 v246, v245")
        A(f"v_mov_b32 v{vT}, 1")
        for j in range(16): A(f"v_mov_b32 v{A4+j}, 0")
        A("s_waitcnt vmcnt(10)")
        A("s_branch B_RECIN")
        A.label("B_NOSTREAM")
    A(f"""
s_waitcnt lgkmcnt(0)
s_barrier
v_mov_b32 v246, {L_FLAG}
ds_max_u32 v246, v245
v_mov_b32 v{vT}, 1
""")
    srd(A, SO, pW2, 128 * 64 * 2)
    A(f"v_lshlrev_b32 v247, 4, v{vLane}")
    A(f"s_lshl_b32 s{sT}, s{sWave}, 11")
    for j in range(2):
        A(f"s_add_u32 m0, s{sT}, {L_W2 + 1024*j}")
        A(f"s_add_u32 s{sT2}, s{sT}, {1024*j}")
        A(f"buffer_load_dwordx4 v247, s[{SO}:{SO+3}], s{sT2} offen lds")
    A(f"""
v_lshrrev_b32 v246, 5, v{vLane}
s_and_b32 s{sT}, s{sWave}, 1
s_lshl_b32 s{sT}, s{sT}, 6
v_lshlrev_b32 v246, 3, v246
v_add_u32 v246, s{sT}, v246
""")
    for g in range(4):
        A(f"global_load_dwordx2 v[{vB2+2*g}:{vB2+2*g+1}], v246, s[{pB2}:{pB2+1}] offset:{16*g}")
    for j in range(16): A(f"v_mov_b32 v{A4+j}, 0")
    A("s_waitcnt vmcnt(6)")
    es(A, "h")
    A.label("B_RECIN")
    if OPT["estream"] == 3 and OPT["es"][2]:
        A(f"s_cmp_lg_u32 s{sLo}, 0")
        A("s_cbranch_scc1 B_NOSTREAM3")
        estream(A, OPT["es"][0] + OPT["es"][1], OPT["es"][2], 247)
        A.label("B_NOSTREAM3")
    def count_body(g, i):
        j = 4 * g + i
        A(f"v_lshrrev_b32 v{A4+j}, 24, v{R+j}")
        A(f"v_and_b32 v{A4+j}, 0xfc, v{A4+j}")
        A(f"ds_add_rtn_u32 v{RK+j}, v{A4+j}, v{vT} offset:{L_CNT}")
    sort_slots(A, count_body, range(4), "B_COUNTED")
    A.label("B_COUNTED")
    A("s_mov_b64 exec, -1")
    es(A, "i")
    A(f"""
s_mov_b64 exec, -1
s_waitcnt lgkmcnt(0)
s_barrier
STAMP 8
v_mov_b32 v{tmp2}, 0
ds_read_b32 v{tmp}, v{vN6} offset:{L_CNT}
ds_read_b32 v{tmp2}, v{tmp2} offset:{L_FLAG}
v_cmp_gt_u32 vcc, s{sNn}, v{vLane}
s_waitcnt lgkmcnt(0)
v_readfirstlane_b32 s{sMax}, v{tmp2}
v_add_u32 v{NT}, 3, v{tmp}
v_lshrrev_b32 v{NT}, 2, v{NT}
v_max_u32 v{NT}, 1, v{NT}
v_cndmask_b32 v{NT}, 0, v{NT}, vcc
v_mov_b32 v{NT+1}, v{NT}
""")
    wave_scan(A, NT + 1)
    es(A, "j")
    A(f"""
v_readlane_b32 s{sTot}, v{NT+1}, 63
v_sub_u32 v{NT+4}, v{NT+1}, v{NT}
v_lshlrev_b32 v{NT+4}, 2, v{NT+4}
v_mov_b32 v{NT+5}, v{vOhp}
v_lshlrev_b32 v{NT+6}, 10, v{vLane}
s_cmp_gt_u32 s{sTot}, {CAPQ}
s_cbranch_scc1 B_OVERFLOW
s_and_saveexec_b64 s[{sEx}:{sEx+1}], vcc
v_add_u32 v{vdeg}, v{vdeg}, v{tmp}
v_lshlrev_b32 v{tmp}, 1, v{vN6}
ds_write_b64 v{tmp}, v[{NT+4}:{NT+5}] offset:{L_NTAB}
s_mov_b64 exec, s[{sEx}:{sEx+1}]
v_mov_b32 v{tmp}, s{sWave}
v_lshl_add_u32 v{tmp2}, v{tmp}, 2, v{NT+4}
B_QFILL:
v_cmpx_lt_u32 vcc, v{tmp}, v{NT}
s_cbranch_execz B_QFILLED
ds_write_b32 v{tmp2}, v{NT+6} offset:{L_QADDR}
v_add_u32 v{tmp}, 8, v{tmp}
v_add_u32 v{tmp2}, 32, v{tmp2}
s_branch B_QFILL
B_QFILLED:
s_mov_b64 exec, -1
v_mov_b32 v{vT}, {L_LIST}
s_mov_b32 s{sT4}, 0x3fff
s_waitcnt lgkmcnt(0)
""")
    def scatter_batch(groups, tag):
        for n, g in enumerate(groups):
            for i in range(4):
                j = 4 * g + i; t = NT + 8 + 4 * (4 * n + i)
                A(f"v_lshlrev_b32 v{tmp}, 1, v{A4+j}")
                A(f"ds_read_b64 v[{t}:{t+1}], v{tmp} offset:{L_NTAB}")
        A("s_waitcnt lgkmcnt(0)")
        def body(g, i):
            j = 4 * g + i; t = NT + 8 + 4 * (4 * groups.index(g) + i)
            A(f"v_add_u32 v{t}, v{t}, v{RK+j}")
            A(f"v_and_or_b32 v{t+2}, v{R+j}, s{sT4}, v{t+1}")
            A(f"v_bfe_u32 v{t+3}, v{R+j}, 14, 12")
            A(f"v_lshl_add_u32 v{t}, v{t}, 3, v{vT}")
            A(f"v_add_u32 v{t+3}, v{vC25}, v{t+3}")
            A(f"ds_write_b64 v{t}, v[{t+2}:{t+3}]")
        sort_slots(A, body, groups, tag)
    scatter_batch([0, 1], "B_SC1")
    A.label("B_SC1")
    A(f"""
s_mov_b64 exec, -1
v_cmp_lt_i32 vcc, 16, v{vLim}
s_cbranch_vccz B_SC3
""")
    scatter_batch([2], "B_SC2")
    A.label("B_SC2")
    A(f"""
s_mov_b64 exec, -1
v_cmp_lt_i32 vcc, 24, v{vLim}
s_cbranch_vccz B_SC3
""")
    scatter_batch([3], "B_SC3")
    A.label("B_SC3")
    A("s_mov_b64 exec, -1")
    A(f"""
s_add_u32 s{sT}, s{sTot}, 7
s_lshr_b32 s{sT}, s{sT}, 3
s_lshr_b32 s{sT2}, s{sT}, 3
s_and_b32 s{sT3}, s{sT}, 7
s_mul_i32 s{sT0}, s{sT2}, s{sWave}
s_min_u32 s{sN}, s{sWave}, s{sT3}
s_add_u32 s{sT0}, s{sT0}, s{sN}
s_cmp_lt_u32 s{sWave}, s{sT3}
s_cselect_b32 s{sN}, 1, 0
s_add_u32 s{sN}, s{sN}, s{sT2}
""")
    if OPT["skew"]:
        k = OPT["skew"]
        A(f"""
s_cmp_lt_u32 s{sT2}, {2*k + 1}
s_cbranch_scc1 B_NOSKEW
s_min_u32 s{sT3}, s{sWave}, 4
s_sub_u32 s{sT4}, s{sWave}, s{sT3}
s_sub_u32 s{sT3}, s{sT3}, s{sT4}
s_mul_i32 s{sT3}, s{sT3}, {k}
s_add_u32 s{sT0}, s{sT0}, s{sT3}
s_cmp_lt_u32 s{sWave}, 4
s_cselect_b32 s{sT3}, {k}, {-k & 0xffffffff}
s_add_u32 s{sN}, s{sN}, s{sT3}
B_NOSKEW:
""")
    A(f"""
s_mul_i32 s{sT}, s{sT0}, {TB}
s_add_u32 s{sT}, s{sT}, {L_LIST}
v_add_u32 v{aX}, s{sT}, v{cX}
v_add_u32 v{aG}, s{sT}, v{cG}
v_add_u32 v{aO}, s{sT}, v{cO}
s_lshl_b32 s{sT}, s{sT0}, 5
s_add_u32 s{sT}, s{sT}, {L_QADDR}
v_mov_b32 v{aN}, s{sT}
v_add_u32 v{aQ}, s{sT}, v{v16h}
s_waitcnt lgkmcnt(0)
s_barrier
STAMP 12
s_cmp_eq_u32 s{sN}, 0
s_cbranch_scc1 B_NOTILES
s_cmp_lg_u32 s{sMode}, 0
s_cbranch_scc1 B_SAFE
""")
    main_loop(A, True)
    A.label("B_SAFE")
    main_loop(A, False)
    A.label("B_NOTILES")
    if OPT["stagger"]: A("s_barrier")
    if OPT["stagger"] == 2: A("s_barrier")
    A.label("B_LOOPEND")
    A(f"""
s_setprio 0
STAMP 10
CSTAMP 14
s_waitcnt vmcnt(0)
""")
    A(f"""
v_lshrrev_b32 v3, 5, v{vLane}
s_and_b32 s{sT}, s{sWave}, 1
s_lshl_b32 s{sT}, s{sT}, 6
v_lshlrev_b32 v4, 3, v3
v_add_u32 v4, s{sT}, v4
""")
    A(f"""
s_waitcnt vmcnt(0) lgkmcnt(0)
s_barrier
s_add_u32 s{sLo}, s{sLo}, s{sR}
s_cmp_ge_u32 s{sLo}, s{sMax}
s_cbranch_scc1 B_FINISH
""")
    fill_lists(A)
    A("s_branch B_ROUND")
    A.label("B_OVERFLOW")
    A(f"s_mov_b32 s{sR}, 8")
    A.label("B_RESTART")
    A(f"""
s_barrier
s_mov_b32 s{sLo}, 0
v_mov_b32 v{vdeg}, 0
v_mov_b32 v{chk}, 0
v_mov_b32 v{chk+1}, 0
""")
    fill_lists(A)
    zero_s(A)
    A("s_branch B_ROUND")
    A.label("B_FINISH")
    SB = L_LIST
    A(f"""
v_mov_b32 v5, 0x71800000
v_cmp_nlt_f32 vcc, v{chk}, v5
v_cmp_nlt_f32 s[{sEx}:{sEx+1}], v{chk+1}, v5
s_or_b64 vcc, vcc, s[{sEx}:{sEx+1}]
v_lshlrev_b32 v6, 2, v{vLane}
ds_write_b32 v6, v{vdeg} offset:{L_DEG}
v_lshlrev_b32 v{tmp}, 4, v{vTID}
""")
    for j in range(5):
        A(f"ds_read_b128 v[{E+4*j}:{E+4*j+3}], v{tmp} offset:{L_S + 8192*j}")
    A(f"""
v_lshrrev_b32 v7, 6, v{vTID}
v_mul_u32_u24 v7, {SBSTR}, v7
v_and_b32 v8, 63, v{vTID}
v_lshl_add_u32 v7, v8, 2, v7
v_add_u32 v7, {SB}, v7
v_mov_b32 v9, {f2u(1.0 / SCALE):#x}
v_mov_b32 v10, 0
s_waitcnt lgkmcnt(0)
""")
    for j in range(10): A(f"v_cvt_f32_f64 v{D[1]+j}, v[{E+2*j}:{E+2*j+1}]")
    for j in range(10): A(f"v_mul_f32 v{D[1]+j}, v9, v{D[1]+j}")
    for j in range(10): A(f"v_fmac_f32 v10, 0, v{D[1]+j}")
    A(f"v_cmp_u_f32 s[{sEx}:{sEx+1}], v10, v10")
    A(f"s_or_b64 vcc, vcc, s[{sEx}:{sEx+1}]")
    for j in range(5):
        A(f"v_cvt_pk_bf16_f32 v{E+j}, v{D[1]+2*j}, v{D[1]+2*j+1}")
        A(f"ds_write_b32 v7, v{E+j} offset:{8*SBSTR*j}")
    A(f"""
s_cmp_eq_u64 vcc, 0
s_cbranch_scc1 B_NOFLAG
v_mov_b32 v5, {L_FLAG}
v_mov_b32 v6, 1
ds_write_b32 v5, v6 offset:4
""")
    A.label("B_NOFLAG")
    A(f"""
s_waitcnt lgkmcnt(0)
s_barrier
v_mov_b32 v5, {L_FLAG}
ds_read_b32 v6, v5 offset:4
s_waitcnt lgkmcnt(0)
v_readfirstlane_b32 s{sT}, v6
s_cmp_lg_u32 s{sMode}, 0
s_cbranch_scc1 B_OUT
s_cmp_eq_u32 s{sT}, 0
s_cbranch_scc1 B_OUT
s_mov_b32 s{sMode}, 1
""")
    lane_consts(A)
    A("s_branch B_RESTART")
    A.label("B_OUT")
    A(f"""
s_cmp_ge_u32 s{sWave}, 4
s_cbranch_scc1 {"B_FLUSH" if OPT["stamps"] else "B_END"}
s_lshr_b32 s{sT}, s{sWave}, 1
s_lshl_b32 s{sT}, s{sT}, 5
v_and_b32 v2, 31, v{vLane}
v_add_u32 v2, s{sT}, v2
v_mul_u32_u24 v5, {SBSTR}, v2
v_lshl_add_u32 v5, v3, 4, v5
v_add_u32 v5, {SB}, v5
v_lshlrev_b32 v6, 2, v2
ds_read_b32 v7, v6 offset:{L_DEG}
""")
    for s in range(8):
        A(f"ds_read_b128 v[{X+4*s}:{X+4*s+3}], v5 offset:{32*s}")
    tr_addr(A, 11, L_W2, 128)
    A(f"s_and_b32 s{sT}, s{sWave}, 1")
    A(f"s_lshl_b32 s{sT}, s{sT}, 6")
    A(f"v_add_u32 v11, s{sT}, v11")
    wf = lambda s: (E + 4 * s) if s < 4 else (D[1] + 4 * (s - 4))
    for s in range(8):
        A(f"ds_read_b64_tr_b16 v[{wf(s)}:{wf(s)+1}], v11 offset:{2048*s}")
        A(f"ds_read_b64_tr_b16 v[{wf(s)+2}:{wf(s)+3}], v11 offset:{2048*s + 512}")
    srd(A, SO, pOut, N_NODES * 128)
    A("s_waitcnt lgkmcnt(0)")
    d = D[0]
    for s in range(8):
        A(f"v_mfma_f32_32x32x16_bf16 v[{d}:{d+15}], v[{wf(s)}:{wf(s)+3}], v[{X+4*s}:{X+4*s+3}], {'0' if s == 0 else f'v[{d}:{d+15}]'}")
    B2 = vB2
    A(f"""
v_cvt_f32_u32 v7, v7
v_add_u32 v8, s{sStart}, v2
v_lshlrev_b32 v8, 7, v8
v_add_u32 v8, v8, v4
v_cmp_gt_u32 vcc, s{sNn}, v2
""")
    for g in range(4):
        A(f"v_lshlrev_b32 v{TU[0]+4*g}, 16, v{B2+2*g}")
        A(f"v_and_b32 v{TU[0]+4*g+1}, 0xffff0000, v{B2+2*g}")
        A(f"v_lshlrev_b32 v{TU[0]+4*g+2}, 16, v{B2+2*g+1}")
        A(f"v_and_b32 v{TU[0]+4*g+3}, 0xffff0000, v{B2+2*g+1}")
    for j in range(16):
        A(f"v_fma_f32 v{d+j}, v7, v{TU[0]+j}, v{d+j}")
    A(f"s_and_saveexec_b64 s[{sEx}:{sEx+1}], vcc")
    for g in range(4):
        A(f"v_cvt_pk_bf16_f32 v{E+2*g}, v{d+4*g}, v{d+4*g+1}")
        A(f"v_cvt_pk_bf16_f32 v{E+2*g+1}, v{d+4*g+2}, v{d+4*g+3}")
        A(f"buffer_store_dwordx2 v[{E+2*g}:{E+2*g+1}], v8, s[{SO}:{SO+3}], 0 offen offset:{16*g}")
    if OPT["stamps"]:
        A.label("B_FLUSH")
        A("s_waitcnt vmcnt(0)")
        A("STAMP 12" if False else "STAMP 15")
        stamp_flush(A, 16)
    A.label("B_END")
    A("s_endpgm")
    A.pad()
    for tag in "FS":
        bad = A.check_loop(f"B_LOOP{tag}", f"s_cbranch_scc0 B_LOOP{tag}")
        assert not bad, bad
    return A

def main(path):
    k = kernel()
    hdr = open("cdna_kernels/" + NAME + ".s.ref").read().split("; Override launch geometry")[0]
    s = hdr
    s += "; One workgroup per CU: workgroup c sorts edge chunk c by destination bucket, then processes bucket c.\n"
    s += f"; @launch grid=({NB},1,1) block=(512,1,1) lds={LDS_B}\n"
    s += '.amdgcn_target "amdgcn-amd-amdhsa--gfx950"\n.text\n'
    s += f".globl {KB}\n.p2align 8\n.type {KB},@function\n" + k.text()
    acc = (NVGPR + 3) // 4 * 4
    s += f""".section .rodata,"a"
.p2align 6
.amdhsa_kernel {KB}
  .amdhsa_next_free_vgpr {NVGPR}
  .amdhsa_next_free_sgpr 102
  .amdhsa_accum_offset {acc}
  .amdhsa_group_segment_fixed_size 0
  .amdhsa_kernarg_size 88
  .amdhsa_user_sgpr_count 2
  .amdhsa_user_sgpr_kernarg_segment_ptr 1
  .amdhsa_system_sgpr_workgroup_id_x 1
.end_amdhsa_kernel
"""
    open(path, "w").write(s)

if __name__ == "__main__":
    main(OPT["out"] or "cdna_kernels/" + NAME + ".s")
```

```python
import sys, struct
from asmlib import Asm

NAME = "gather_scatter__edge_featured_mpnn_mpnn__graph"
KB = NAME + "_kernel"
N_NODES = 10000; N_EDGES = 640000; NB = 256; CH = 2500
WS_TBL = 0; WS_REC = NB * NB * 8; WS_END = WS_REC + N_EDGES * 4 + 4096
BF_ONE = 0x3F80
SCALE = -1.4426950408889634
def f2u(x): return struct.unpack("<I", struct.pack("<f", x))[0]

OPT = dict(prio=True, stamps=False, noadd=False, nodma=False, nomfma=False, novalu=False, xwarm=False, ewarm=False, psched=((2, 1), (1, 0)), estream=0, es=(4, 3, 3), touch=False, qskip=False, recpol=' sc1', fflush=True, prioflip=False, defer=False, layout='', skew=1, es2='', stagger=1, seqform=True, dmaspread=True, late=False, prime2=True, out=None)
for a in sys.argv[1:]:
    if "=" in a:
        k, v = a.split("=", 1); OPT[k] = eval(v)

L_S = 0; L_CNT = 40960; L_NTAB = 41216; L_DEG = 42240; L_FLAG = 42496; L_QT = 42752
L_QADDR = 57088; L_QEND = 60416; L_OHT = 65024; L_OHZ = 65536; L_XB0 = 65792; XBS = 6144
L_LIST = L_XB0 + 8 * XBS; LIST_BYTES = 25600; L_Z = L_LIST + LIST_BYTES; LDS_B = L_Z + 20480
L_HIST = 0; L_BASE = 1024; L_SORT = 2048; L_WRAW = L_XB0; L_XROW = L_XB0 + 40960; L_WST = L_Z
L_W2 = L_Z
QSTR = 112; CAPQ = 768; SBSTR = 272
TB = 256

vTID = 0
aX, aG, aO, aQ, aN = 1, 2, 3, 4, 5
xr = [6, 7, 8, 9]; eAddr = 10; vQ = 11; qbase = 12; c1 = 13; lanecol = 14; ohaddr = 15
xi = [16, 18, 20, 22]; ei = 24; node0 = 26; tmp = 27; chk = 28; tmp2 = 30
qa = [32, 36]
E = 40; D = [56, 72]; X = 88; Ea = 104; OH = 108; Qx = 112; We = 128; W = 144
vTbl = 208; vdeg = 210; vLane = 211; vN6 = 212; vOhp = 213; vC25 = 214; vLim = 215
TU = [216, 224]; F64 = 232; vT = 240; v16h = 241
cX, cG, cO = 242, 243, 244
vB2 = 248
NVGPR = 256
R = 40; RK = 56; A4 = 72; NT = 88

SX = 4; SE = 8; SW = 12; SO = 16; SP = 20
sEx = 24; sEx2 = 26; sT = 28; sT2 = 29; sT3 = 30; sT4 = 31
sWave = 32; sStart = 33; sNn = 34; sS6 = 35; sXB = 36; sN = 37; sT0 = 38; sMode = 39
sR = 40; sLo = 41; sMax = 42; sTagLo = 43; sTot = 44; sTagB = 45; sCnt = 46
pX, pE, pSrc, pDst, pW1, pB1, pW2, pB2 = 48, 50, 52, 54, 56, 58, 60, 62
pOut, pDbg, pWs = 96, 98, 100
WS_STAMP = 8 << 20

def srd(A, d, base, size, stride=0):
    A(f"s_mov_b32 s{d}, s{base}")
    A(f"s_and_b32 s{d+1}, s{base+1}, 0xffff")
    if stride: A(f"s_or_b32 s{d+1}, s{d+1}, {stride << 16:#x}")
    A(f"s_mov_b32 s{d+2}, {size}")
    A(f"s_mov_b32 s{d+3}, 0x20000")

def stamp_flush(A, n):
    if not OPT["stamps"]: return
    A("s_waitcnt vmcnt(0) lgkmcnt(0)")
    A("s_mov_b64 exec, -1")
    A(f"s_lshl_b32 s{sT}, s2, 4")
    A(f"s_add_u32 s{sT}, s{sT}, s{sWave}")
    A(f"s_lshl_b32 s{sT}, s{sT}, 6")
    A(f"s_add_u32 s{sT}, s{sT}, {WS_STAMP}")
    A(f"s_add_u32 s{sEx}, s{pWs}, s{sT}")
    A(f"s_addc_u32 s{sEx+1}, s{pWs+1}, 0")
    A("v_mov_b32 v1, 0")
    for i in range(n):
        A(f"v_mov_b32 v2, s{64+2*i}")
        A(f"global_store_dword v1, v2, s[{sEx}:{sEx+1}] offset:{4*i}")
    A("s_waitcnt vmcnt(0)")

def wave_scan(A, v):
    for sh in (1, 2, 4, 8):
        A(f"v_add_u32_dpp v{v}, v{v}, v{v} row_shr:{sh} row_mask:0xf bank_mask:0xf")
    A(f"v_add_u32_dpp v{v}, v{v}, v{v} row_bcast:15 row_mask:0xa bank_mask:0xf")
    A(f"v_add_u32_dpp v{v}, v{v}, v{v} row_bcast:31 row_mask:0xc bank_mask:0xf")

def fill_lists(A):
    A(f"v_lshlrev_b32 v{tmp}, 4, v{vTID}")
    A(f"v_add_u32 v{tmp2}, {L_LIST}, v{tmp}")
    for i in range(4): A(f"v_mov_b32 v{E+i}, -1")
    for i in range(4): A(f"v_mov_b32 v{E+4+i}, 0")
    for j in range(3):
        A(f"ds_write_b128 v{tmp2}, v[{E}:{E+3}] offset:{8192*j}")
    A(f"v_cmp_gt_u32 vcc, {(L_QEND - L_QADDR) // 16}, v{vTID}")
    A(f"s_and_saveexec_b64 s[{sEx}:{sEx+1}], vcc")
    A(f"ds_write_b128 v{tmp}, v[{E+4}:{E+7}] offset:{L_QADDR}")
    A(f"v_cmp_gt_u32 vcc, {(LIST_BYTES - 3 * 8192) // 16}, v{vTID}")
    A(f"s_and_b64 exec, exec, vcc")
    A(f"ds_write_b128 v{tmp2}, v[{E}:{E+3}] offset:{8192*3}")
    A(f"v_cmp_gt_u32 vcc, 16, v{vTID}")
    A(f"s_and_b64 exec, exec, vcc")
    A(f"ds_write_b128 v{tmp}, v[{E+4}:{E+7}] offset:{L_CNT}")
    A(f"s_mov_b64 exec, s[{sEx}:{sEx+1}]")

def zero_s(A):
    for j in range(5):
        A(f"ds_write_b128 v{tmp}, v[{E+4}:{E+7}] offset:{L_S + 8192*j}")

def chain(c, d):
    q = lambda r: f"v[{r}:{r+3}]"
    dd = f"v[{d}:{d+15}]"
    M = []
    for s in range(4):
        M.append(f"v_mfma_f32_32x32x16_bf16 {dd}, {q(X+4*s)}, {q(W+16*s+4*c)}, {'0' if s == 0 else dd}")
    M.append(f"v_mfma_f32_32x32x16_bf16 {dd}, {q(Ea)}, {q(We+4*c)}, {dd}")
    M.append(f"v_mfma_f32_32x32x16_bf16 {dd}, {q(OH)}, {q(Qx+4*c)}, {dd}")
    return M

def dma_x(A):
    for i in range(4):
        A(f"s_add_u32 m0, s{sXB}, {1024*i}")
        A(f"s_nop 0")
        A(f"buffer_load_dwordx4 v[{xi[i]}:{xi[i]+1}], s[{SX}:{SX+3}], 0 idxen offen lds")
def dma_e(A, slot):
    A(f"s_add_u32 m0, s{sXB}, {4096 + 1024*slot}")
    A(f"s_nop 0")
    A(f"buffer_load_dwordx4 v[{ei}:{ei+1}], s[{SE}:{SE+3}], 0 idxen offen lds")
def read_xidx(k): return [f"ds_read_u16 v{xi[i]}, v{aX} offset:{TB*k + 8*[0,2,8,10][i]}" for i in range(4)]
def read_eidx(k): return [f"ds_read_b32 v{ei}, v{aG} offset:{TB*k}"]
def read_a(eslot):
    L = [f"ds_read_b128 v[{X+4*s}:{X+4*s+3}], v{xr[s]}" for s in range(4)]
    L.append(f"ds_read_b128 v[{Ea}:{Ea+3}], v{eAddr} offset:{1024*eslot}")
    L.append(f"ds_read_b128 v[{OH}:{OH+3}], v{ohaddr} offset:1")
    return L
def read_q(c): return f"ds_read_b128 v[{Qx+4*c}:{Qx+4*c+3}], v{vQ} offset:{32*QSTR*c}"
def calc_vq():
    return [f"v_add_u32 v{tmp}, v{node0}, v{c1}", f"v_lshrrev_b32 v{tmp}, 14, v{tmp}",
            f"v_lshl_add_u32 v{vQ}, v{tmp}, 5, v{qbase}", f"v_add_u32 v{ohaddr}, v{ohaddr}, v{v16h}"]
def read_meta(k, par):
    return [f"ds_read_b128 v[{qa[par]}:{qa[par]+3}], v{aQ} offset:{32*k}",
            f"ds_read_b32 v{node0}, v{aN} offset:{32*k}",
            f"ds_read_u16 v{ohaddr}, v{aO} offset:{TB*k}"]

def pk_list(d, c):
    e = E; p = lambda r: f"v[{r}:{r+1}]"
    T = TU[c & 1]; U = T + 4; Tp = TU[(c + 1) & 1]; Up = Tp + 4
    L = []
    if OPT["seqform"]:
        oct_ = ((0, 0), (8, 2))
        for o, j in oct_: L.append(f"v_pk_mul_f32 {p(Up+j)}, {p(Up+j)}, {p(Tp+j)}")
        for o, j in oct_: L.append(f"v_pk_fma_f32 {p(d+o)}, {p(d+o)}, {p(e+o+2)}, {p(d+o)}")
        for o, j in oct_: L.append(f"v_pk_add_f32 {p(e+o)}, {p(e+o)}, 1.0 op_sel_hi:[1,0]")
        for k in (1, 2, 3):
            last = k == 3
            if k > 1:
                for o, j in oct_: L.append(f"v_pk_fma_f32 {p(d+o)}, {p(d+o)}, {p(e+o+2*k)}, {p(d+o)}")
            for o, j in oct_: L.append(f"v_pk_fma_f32 {p(U+j) if last else p(d+o)}, {p(d+o+2*k)}, {p(e+o)}, {p(d+o)}")
            for o, j in oct_: L.append(f"v_pk_fma_f32 {p(T+j) if last else p(e+o)}, {p(e+o)}, {p(e+o+2*k)}, {p(e+o)}")
        L.append(f"v_pk_fma_f32 {p(chk)}, {p(T)}, {p(T+2)}, {p(chk)}")
        return L
    for o, j in ((0, 0), (8, 2)):
        L.append(f"v_pk_mul_f32 {p(Up+j)}, {p(Up+j)}, {p(Tp+j)}")
    for o in (0, 8):
        L.append(f"v_pk_add_f32 {p(e+o+2)}, {p(e+o+2)}, 1.0 op_sel_hi:[1,0]")
        L.append(f"v_pk_add_f32 {p(e+o+6)}, {p(e+o+6)}, 1.0 op_sel_hi:[1,0]")
    for o in (0, 8):
        L.append(f"v_pk_fma_f32 {p(d+o)}, {p(d+o)}, {p(e+o+2)}, {p(d+o+2)}")
        L.append(f"v_pk_fma_f32 {p(d+o+4)}, {p(d+o+4)}, {p(e+o+6)}, {p(d+o+6)}")
    for o in (0, 8):
        L.append(f"v_pk_fma_f32 {p(d+o)}, {p(d+o+2)}, {p(e+o)}, {p(d+o)}")
        L.append(f"v_pk_fma_f32 {p(d+o+4)}, {p(d+o+6)}, {p(e+o+4)}, {p(d+o+4)}")
    for o in (0, 8):
        L.append(f"v_pk_fma_f32 {p(e+o)}, {p(e+o)}, {p(e+o+2)}, {p(e+o+2)}")
        L.append(f"v_pk_fma_f32 {p(e+o+4)}, {p(e+o+4)}, {p(e+o+6)}, {p(e+o+6)}")
    for o, j in ((0, 0), (8, 2)):
        L.append(f"v_pk_mul_f32 {p(T+j)}, {p(e+o)}, {p(e+o+4)}")
    for o in (0, 8):
        L.append(f"v_pk_mul_f32 {p(d+o)}, {p(d+o)}, {p(e+o+4)}")
    for o, j in ((0, 0), (8, 2)):
        L.append(f"v_pk_fma_f32 {p(U+j)}, {p(d+o+4)}, {p(e+o)}, {p(d+o)}")
    for j in (0, 2):
        L.append(f"v_pk_add_f32 {p(chk)}, {p(chk)}, {p(T+j)}")
    return L

def flush_q(c, q):
    U = TU[c & 1] + 4
    cv = [f"v_cvt_f64_f32 v[{F64+2*j}:{F64+2*j+1}], v{U+j}" for j in range(4)]
    ad = [f"ds_add_f64 v{q+j}, v[{F64+2*j}:{F64+2*j+1}] offset:{256*(c & 3)}" for j in range(4)]
    return cv, ad

def emit(A, x):
    if isinstance(x, tuple):
        _, sreg, lab, body = x
        A(f"s_cmp_eq_u32 s{sreg}, 0")
        A(f"s_cbranch_scc1 {lab}")
        for y in body: A(y)
        A.label(lab)
    else: A(x)

def flush_block(A, c, q, hflag, lab):
    U = TU[c & 1] + 4
    cv, ad = flush_q(c, q)
    if OPT["noadd"]: ad = [f"ds_read_b32 v{tmp2}, v{tmp2+1}"] * 4
    if not OPT["fflush"]:
        for x in cv + ad: A(x)
        return
    A(f"s_cmp_eq_u32 s{hflag}, 0")
    A(f"s_cbranch_scc1 {lab}a")
    A(f"v_add_f32 v{U}, v{U}, v{U+1}")
    A(f"v_add_f32 v{U+2}, v{U+2}, v{U+3}")
    A(f"v_add_f32 v{U}, v{U}, v{U+2}")
    A(cv[0]); A(ad[0])
    A(f"s_branch {lab}b")
    A.label(f"{lab}a")
    for x in cv + ad: A(x)
    A.label(f"{lab}b")

def tile_iter_fast(A, par):
    k = par
    W4 = "s_waitcnt lgkmcnt(1)" if OPT["fflush"] else "s_waitcnt lgkmcnt(4)"
    for ph in range(4):
        d = D[ph & 1]; dn = D[(ph + 1) & 1]
        M = chain((ph + 1) & 3, dn)
        Tp = TU[(ph + 1) & 1]
        tr = [f"v_rcp_f32 v{Tp+j}, v{Tp+j}" for j in range(4)] + [f"v_exp_f32 v{E+j}, v{d+j}" for j in range(16)]
        extra = {i: [] for i in range(7)}
        pre = []
        def q_reload(cs):
            body = [read_q(c) for c in cs]
            return [("skip", sQch, f"B_SQ{par}{ph}", body)] if OPT["qskip"] else body
        if ph == 0:
            extra[0] += read_meta(k + 1, 1 - par)[1:]
        if ph == 1:
            pre += [W4]
            if OPT["qskip"]:
                extra[0] += [f"v_add_u32 v{tmp}, v{node0}, v{c1}", f"v_lshrrev_b32 v{tmp}, 14, v{tmp}",
                             f"v_lshl_add_u32 v{tmp}, v{tmp}, 5, v{qbase}", f"v_add_u32 v{ohaddr}, v{ohaddr}, v{v16h}",
                             f"v_cmp_ne_u32 vcc, v{tmp}, v{vQ}", f"v_mov_b32 v{vQ}, v{tmp}"]
                extra[1] += ["s_cmp_lg_u64 vcc, 0", f"s_cselect_b32 s{sQch}, 1, 0"]
            else:
                extra[0] += calc_vq()
            extra[1] += q_reload((0, 1))
            extra[2] += read_xidx(k + 2) + read_eidx(k + 3)
        if ph == 2:
            extra[0] += q_reload((2,)) + [read_meta(k + 1, 1 - par)[0]]
            extra[5] += ["s_waitcnt vmcnt(1)"] + read_a(1 - par)
        if ph == 3:
            pre += [W4]
            extra[1] += q_reload((3,))
            if OPT["fflush"]:
                qn = qa[1 - par]
                extra[2] += [f"v_cmp_ne_u32 vcc, v{qn}, v{qn+3}"]
            extra[2] += [f"v_add_u32 v{qa[1-par]+j}, v{qa[1-par]+j}, v{lanecol}" for j in range(4)]
            if OPT["fflush"]:
                extra[3] += ["s_cmp_eq_u64 vcc, 0", f"s_cselect_b32 s{sH[1 - par]}, 1, 0"]
        for x in pre: A(x)
        ti = 0
        for m in range(6):
            if not OPT["nomfma"]: A(M[m])
            if ph == 3 and not OPT["nodma"]:
                if m < 4:
                    A(f"s_add_u32 m0, s{sXB}, {1024*m}")
                    A("s_nop 0")
                    A(f"buffer_load_dwordx4 v[{xi[m]}:{xi[m]+1}], s[{SX}:{SX+3}], 0 idxen offen lds")
                if m == 4: dma_e(A, 1 - par)
            if m == 5 and ph == 2:
                for x in extra[5]: emit(A, x)
            n = 3 if m < 5 else 5
            for x in tr[ti:ti + n]:
                if not OPT["novalu"]: A(x)
            ti += n
            if not (m == 5 and ph == 2):
                for x in extra[m]: emit(A, x)
        flush_block(A, ph + 2, qa[par] if ph >= 2 else qa[1 - par], sH[par] if ph >= 2 else sH[1 - par], f"B_FL{par}{ph}")
        if not OPT["novalu"]:
            for x in pk_list(d, ph): A(x)

def drain_fast(A, par):
    p = lambda r: f"v[{r}:{r+1}]"
    cv, ad = flush_q(2, qa[par])
    T = TU[1]; U = T + 4
    for j in range(4): A(f"v_rcp_f32 v{T+j}, v{T+j}")
    for x in cv + ad: A(x)
    for j in (0, 2): A(f"v_pk_mul_f32 {p(U+j)}, {p(U+j)}, {p(T+j)}")
    cv, ad = flush_q(3, qa[par])
    for x in cv + ad: A(x)

def tile_iter_safe(A, par):
    k = par; e = E; p = lambda r: f"v[{r}:{r+1}]"
    for ph in range(4):
        d = D[ph & 1]; dn = D[(ph + 1) & 1]
        if ph == 0:
            for x in read_meta(k + 1, 1 - par): A(x)
        if ph == 1:
            A("s_waitcnt lgkmcnt(4)")
            for x in calc_vq(): A(x)
            for j in range(4): A(f"v_add_u32 v{qa[1-par]+j}, v{qa[1-par]+j}, v{lanecol}")
            for x in [read_q(0), read_q(1)] + read_xidx(k + 2) + read_eidx(k + 3): A(x)
        if ph == 2: A(read_q(2))
        if ph == 3:
            A("s_waitcnt lgkmcnt(4)")
            dma_x(A); dma_e(A, 1 - par)
            A(read_q(3))
        for m in chain((ph + 1) & 3, dn): A(m)
        if ph == 2:
            A("s_waitcnt vmcnt(1)")
            for x in read_a(1 - par): A(x)
        for j in range(16): A(f"v_exp_f32 v{e+j}, v{d+j}")
        for j in range(0, 16, 2): A(f"v_pk_add_f32 {p(e+j)}, {p(e+j)}, 1.0 op_sel_hi:[1,0]")
        for j in range(16): A(f"v_rcp_f32 v{e+j}, v{e+j}")
        for j in range(0, 16, 2): A(f"v_pk_mul_f32 {p(d+j)}, {p(d+j)}, {p(e+j)}")
        for o in (0, 8):
            A(f"v_pk_add_f32 {p(d+o)}, {p(d+o)}, {p(d+o+2)}")
            A(f"v_pk_add_f32 {p(d+o+4)}, {p(d+o+4)}, {p(d+o+6)}")
        for o in (0, 8): A(f"v_pk_add_f32 {p(d+o)}, {p(d+o)}, {p(d+o+4)}")
        cvt = ((d, F64), (d + 1, F64 + 2), (d + 8, F64 + 4), (d + 9, F64 + 6))
        for r, t in cvt: A(f"v_cvt_f64_f32 v[{t}:{t+1}], v{r}")
        for j, (r, t) in enumerate(cvt): A(f"ds_add_f64 v{qa[par]+j}, v[{t}:{t+1}] offset:{256*ph}")

def load_w2(A, keep=False):
    a, b = sEx, sEx + 1
    srd(A, SO, pW2, 128 * 64 * 2)
    A(f"v_lshlrev_b32 v247, 4, v{vLane}")
    A(f"s_lshl_b32 s{a}, s{sWave}, 11")
    for j in range(2):
        A(f"s_add_u32 m0, s{a}, {L_W2 + 1024*j}")
        A(f"s_add_u32 s{b}, s{a}, {1024*j}")
        A(f"buffer_load_dwordx4 v247, s[{SO}:{SO+3}], s{b} offen lds")
    A(f"""
v_lshrrev_b32 v246, 5, v{vLane}
s_and_b32 s{a}, s{sWave}, 1
s_lshl_b32 s{a}, s{a}, 6
v_lshlrev_b32 v246, 3, v246
v_add_u32 v246, s{a}, v246
""")
    for g in range(4):
        A(f"global_load_dwordx2 v[{vB2+2*g}:{vB2+2*g+1}], v246, s[{pB2}:{pB2+1}] offset:{16*g}")

def main_loop(A, fast):
    tag = "F" if fast else "S"
    if OPT["prio"]: A("s_setprio 3")
    if OPT["stagger"]:
        A(f"s_cmp_lt_u32 s{sWave}, 4")
        A(f"s_cbranch_scc1 B_STG0{tag}")
        A("s_barrier")
        A.label(f"B_STG0{tag}")
    for x in read_xidx(0) + read_eidx(0): A(x)
    for x in read_meta(0, 0): A(x)
    A("s_waitcnt lgkmcnt(0)")
    dma_x(A); dma_e(A, 0)
    if OPT["stagger"] == 2:
        A(f"s_cmp_lt_u32 s{sWave}, 4")
        A(f"s_cbranch_scc1 B_STG2{tag}")
        A("s_barrier")
        A.label(f"B_STG2{tag}")
    for x in read_eidx(1): A(x)
    for x in calc_vq(): A(x)
    for j in range(4): A(f"v_add_u32 v{qa[0]+j}, v{qa[0]+j}, v{lanecol}")
    for c in range(4): A(read_q(c))
    for x in read_xidx(1): A(x)
    if fast:
        for t in TU:
            for j in range(4):
                A(f"v_mov_b32 v{t+j}, 1.0")
                A(f"v_mov_b32 v{t+4+j}, 0")
        for j in range(4): A(f"v_mov_b32 v{qa[1]+j}, v{lanecol}")
        A(f"v_cmp_ne_u32 vcc, v{qa[0]}, v{qa[0]+3}")
        A(f"s_mov_b32 s{sH[1]}, 0")
        A("s_cmp_eq_u64 vcc, 0")
        A(f"s_cselect_b32 s{sH[0]}, 1, 0")
    A("s_waitcnt vmcnt(0)")
    if OPT["stagger"]:
        A(f"s_cmp_ge_u32 s{sWave}, 4")
        A(f"s_cbranch_scc1 B_STG1{tag}")
        A("s_barrier")
        A.label(f"B_STG1{tag}")
    for x in read_a(0): A(x)
    A("s_waitcnt lgkmcnt(0)")
    if OPT["stagger"] == 2:
        A(f"s_cmp_ge_u32 s{sWave}, 4")
        A(f"s_cbranch_scc1 B_STG3{tag}")
        A("s_barrier")
        A.label(f"B_STG3{tag}")
    if OPT["prime2"]: dma_e(A, 1)
    for x in read_eidx(2): A(x)
    dma_x(A)
    A("s_waitcnt lgkmcnt(0)")
    if OPT["defer"] and fast: A(f"s_mov_b32 s{sDef}, 1")
    else: dma_e(A, 0)
    for m in chain(0, D[0]): A(m)
    A(f"s_cmp_eq_u32 s{sN}, 1")
    A(f"s_cbranch_scc0 B_W2P{tag}")
    load_w2(A, keep=True)
    A.label(f"B_W2P{tag}")
    if OPT["prio"]: A("s_setprio 2")
    A("s_nop 7")
    A("s_nop 3")
    if fast: A("STAMP 9"); A("CSTAMP 13")
    A.label(f"B_LOOP{tag}")
    for par in (0, 1):
        if fast: tile_iter_fast(A, par)
        else: tile_iter_safe(A, par)
        if par == 1:
            for r in (aX, aG, aO): A(f"v_add_u32 v{r}, {2*TB}, v{r}")
            for r in (aQ, aN): A(f"v_add_u32 v{r}, 64, v{r}")
        A(f"s_sub_u32 s{sN}, s{sN}, 1")
        A(f"s_cmp_eq_u32 s{sN}, 1")
        A(f"s_cbranch_scc0 B_W2{tag}{par}")
        load_w2(A, keep=True)
        A.label(f"B_W2{tag}{par}")
        if OPT["prio"] and not (fast and OPT["prioflip"]):
            for rem, pr in OPT["psched"]:
                A(f"s_cmp_eq_u32 s{sN}, {rem}")
                A(f"s_cbranch_scc0 B_P{tag}{par}{rem}")
                A(f"s_setprio {pr}")
                A.label(f"B_P{tag}{par}{rem}")
        A(f"s_cmp_eq_u32 s{sN}, 0")
        if par == 0: A(f"s_cbranch_scc1 {'B_DRAIN0' if fast else 'B_LOOPEND'}")
        else: A(f"s_cbranch_scc0 B_LOOP{tag}")
    if fast:
        drain_fast(A, 1)
        A("s_branch B_LOOPEND")
        A.label("B_DRAIN0")
        drain_fast(A, 0)
    A("s_branch B_LOOPEND")

def sort_slots(A, body, groups, tag):
    for g in groups:
        for i in range(4):
            A(f"v_cmpx_lt_i32 vcc, {8*g+i}, v{vLim}")
            if i % 2 == 0: A(f"s_cbranch_execz {tag}")
            body(g, i)

def estream(A, first, n, vaddr):
    srd(A, SP, pE, N_EDGES * 32)
    A(f"s_mul_i32 s{sT}, s2, {CH * 32}")
    A(f"s_mul_i32 s{sT2}, s{sWave}, 10240")
    A(f"s_add_u32 s{sT}, s{sT}, s{sT2}")
    A(f"s_add_u32 s{sT}, s{sT}, {1024 * first}")
    A(f"v_lshlrev_b32 v{vaddr}, 4, v{vLane}")
    for j in range(n):
        A(f"buffer_load_dwordx4 v[{F64}:{F64+3}], v{vaddr}, s[{SP}:{SP+3}], s{sT} offen offset:{1024*j}")

sDef = 3; sFirst = 47; sES = 47; sQch = 28; sH = [29, 30]; SES = 4
def es_init(A):
    if not OPT["es2"]: return
    srd(A, SE, pE, N_EDGES * 32)
    A(f"s_mul_i32 s{sES}, s2, {CH * 32}")
    A(f"s_mul_i32 s{sT4}, s{sWave}, 10240")
    A(f"s_add_u32 s{sES}, s{sES}, s{sT4}")
    A(f"v_lshlrev_b32 v247, 4, v{vLane}")
def es(A, tag):
    if tag not in OPT["es2"]: return
    A(f"buffer_load_dwordx4 v[{F64}:{F64+3}], v247, s[{SRDE[0]}:{SRDE[0]+3}], s{sES} offen")
    A(f"s_add_u32 s{sES}, s{sES}, 1024")
SRDE = [SE]

def tr_addr(A, dst, base, rowbytes):
    A(f"v_lshrrev_b32 v{tmp}, 5, v{vLane}")
    A(f"v_bfe_u32 v{tmp2}, v{vLane}, 2, 2")
    A(f"v_lshl_add_u32 v{tmp}, v{tmp}, 3, v{tmp2}")
    A(f"v_mul_u32_u24 v{dst}, {rowbytes}, v{tmp}")
    A(f"v_bfe_u32 v{tmp}, v{vLane}, 4, 1")
    A(f"v_lshl_add_u32 v{dst}, v{tmp}, 5, v{dst}")
    A(f"v_and_b32 v{tmp}, 3, v{vLane}")
    A(f"v_lshl_add_u32 v{dst}, v{tmp}, 3, v{dst}")
    A(f"v_add_u32 v{dst}, {base}, v{dst}")

def lane_consts(A):
    A(f"""
v_add_u32 v{vN6}, s{sS6}, v{vLane}
v_and_b32 v{vN6}, 63, v{vN6}
v_lshlrev_b32 v{vN6}, 2, v{vN6}
v_and_b32 v119, 15, v{vLane}
v_lshlrev_b32 v119, 5, v119
v_add_u32 v119, {L_OHT - 1}, v119
v_lshlrev_b32 v{vOhp}, 16, v119
v_and_b32 v112, 31, v{vLane}
v_lshrrev_b32 v113, 5, v{vLane}
v_bfe_u32 v114, v{vLane}, 1, 3
v_lshlrev_b32 v115, 7, v112
v_add_u32 v115, s{sXB}, v115
""")
    for s in range(4):
        A(f"v_or_b32 v116, {2*s}, v113")
        A(f"v_xor_b32 v116, v116, v114")
        A(f"v_lshl_add_u32 v{xr[s]}, v116, 4, v115")
    A(f"""
v_lshlrev_b32 v{eAddr}, 4, v{vLane}
v_add_u32 v{eAddr}, s{sXB}, v{eAddr}
v_add_u32 v{eAddr}, 0x1000, v{eAddr}
v_mul_u32_u24 v{qbase}, {QSTR}, v112
v_lshl_add_u32 v{qbase}, v113, 4, v{qbase}
v_add_u32 v{qbase}, {L_QT}, v{qbase}
v_xor_b32 v{c1}, 1, v113
v_lshlrev_b32 v{c1}, 13, v{c1}
v_lshlrev_b32 v{lanecol}, 3, v112
v_lshlrev_b32 v{v16h}, 4, v113
v_and_b32 v116, 7, v{vLane}
v_lshrrev_b32 v117, 4, v{vLane}
v_xor_b32 v118, v116, v117
v_lshlrev_b32 v{xi[0]+1}, 4, v118
v_mov_b32 v{xi[2]+1}, v{xi[0]+1}
v_xor_b32 v118, 4, v118
v_lshlrev_b32 v{xi[1]+1}, 4, v118
v_mov_b32 v{xi[3]+1}, v{xi[1]+1}
v_lshlrev_b32 v{ei+1}, 4, v113
v_bfe_u32 v116, v{vLane}, 3, 1
v_bfe_u32 v117, v{vLane}, 4, 1
v_lshlrev_b32 v118, 4, v113
v_lshl_add_u32 v118, v116, 2, v118
v_add_u32 v118, v118, v117
v_lshlrev_b32 v{cX}, 3, v118
v_bfe_u32 v116, v{vLane}, 2, 1
v_lshlrev_b32 v118, 4, v116
v_bfe_u32 v116, v{vLane}, 4, 1
v_lshl_add_u32 v118, v116, 3, v118
v_and_b32 v116, 1, v{vLane}
v_lshl_add_u32 v118, v116, 2, v118
v_bfe_u32 v116, v{vLane}, 3, 1
v_lshl_add_u32 v118, v116, 1, v118
v_bfe_u32 v116, v{vLane}, 1, 1
v_add_u32 v118, v118, v116
v_lshlrev_b32 v{cO}, 3, v118
v_add_u32 v{cG}, 4, v{cO}
v_add_u32 v{cO}, 2, v{cO}
""")

def kernel():
    A = Asm(OPT["stamps"])
    A.label(KB)
    A(f"""
s_cmp_ge_u32 s2, {NB}
s_cbranch_scc1 B_END
STAMP 0
CSTAMP 11
s_load_dwordx16 s[48:63], s[0:1], 0
s_load_dwordx4 s[96:99], s[0:1], 64
s_load_dwordx2 s[100:101], s[0:1], 80
s_memrealtime s[{sEx2}:{sEx2+1}]
v_lshrrev_b32 v1, 6, v0
v_and_b32 v{vLane}, 63, v0
v_readfirstlane_b32 s{sWave}, v1
s_mul_i32 s{sStart}, s2, 625
s_add_u32 s{sT}, s{sStart}, {625 + 15}
s_add_u32 s{sStart}, s{sStart}, 15
s_lshr_b32 s{sStart}, s{sStart}, 4
s_lshr_b32 s{sT}, s{sT}, 4
s_sub_u32 s{sNn}, s{sT}, s{sStart}
s_and_b32 s{sS6}, s{sStart}, 63
s_mul_i32 s{sXB}, s{sWave}, {XBS}
s_add_u32 s{sXB}, s{sXB}, {L_XB0}
s_mov_b32 s{sMode}, 0
s_mov_b32 s{sR}, 32
s_mov_b32 s{sLo}, 0
s_mov_b32 s{sCnt}, 0x400000
v_mov_b32 v{vdeg}, 0
v_mov_b32 v{chk}, 0
v_mov_b32 v{chk+1}, 0
v_mov_b32 v40, 0
v_mov_b32 v41, 0
v_mov_b32 v42, 0
v_mov_b32 v43, 0
v_lshlrev_b32 v2, 4, v{vTID}
v_cmp_gt_u32 vcc, 64, v{vTID}
s_and_saveexec_b64 s[{sEx}:{sEx+1}], vcc
ds_write_b128 v2, v[40:43] offset:{L_HIST}
s_mov_b64 exec, s[{sEx}:{sEx+1}]
v_cmp_gt_u32 vcc, 0x88, v{vTID}
s_and_saveexec_b64 s[{sEx}:{sEx+1}], vcc
v_lshrrev_b32 v3, 3, v{vTID}
v_and_b32 v4, 7, v{vTID}
v_lshrrev_b32 v5, 1, v3
v_and_b32 v6, 1, v3
v_lshlrev_b32 v6, 4, v6
v_mov_b32 v7, {BF_ONE:#x}
v_lshlrev_b32 v7, v6, v7
v_cmp_eq_u32 vcc, v4, v5
v_lshlrev_b32 v8, 2, v{vTID}
v_cndmask_b32 v7, 0, v7, vcc
v_add_u32 v8, {L_OHT}, v8
ds_write_b32 v8, v7
s_mov_b64 exec, s[{sEx}:{sEx+1}]
v_cmp_gt_u32 vcc, 16, v{vTID}
s_and_saveexec_b64 s[{sEx}:{sEx+1}], vcc
ds_write_b128 v2, v[40:43] offset:{L_FLAG}
s_mov_b64 exec, s[{sEx}:{sEx+1}]
s_waitcnt lgkmcnt(0)
STAMP 1
""")
    A(f"""
s_cmp_lg_u32 s2, 0
s_cbranch_scc1 A_NONONCE
s_cmp_lg_u32 s{sWave}, 0
s_cbranch_scc1 A_NONONCE
s_and_b32 s{sEx2+1}, s{sEx2+1}, 0xff
s_or_b32 s{sEx2+1}, s{sEx2+1}, 0x80000000
v_mov_b32 v4, s{sEx2}
v_mov_b32 v5, s{sEx2+1}
v_mov_b32 v3, 0
s_mov_b64 exec, 1
global_store_dwordx2 v3, v[4:5], s[{pDbg}:{pDbg+1}] sc1
s_mov_b64 exec, -1
""")
    A.label("A_NONONCE")
    if OPT["touch"]:
        ptrs = [pW1, pX, pB1, pWs, pE, pW2, pOut, pB2]
        A("v_mov_b32 v3, 0")
        for w, p in enumerate(ptrs):
            A(f"s_cmp_lg_u32 s{sWave}, {w}")
            A(f"s_cbranch_scc1 A_T{w}")
            A(f"global_load_dword v{F64+5}, v3, s[{p}:{p+1}]")
            A.label(f"A_T{w}")
    srd(A, SO, pDst, N_EDGES * 4)
    srd(A, SP, pSrc, N_EDGES * 4)
    A(f"""
s_mul_i32 s{sT}, s2, {CH * 4}
v_add_u32 v3, 0x2000, v2
v_mov_b32 v4, 0x7ffffff0
v_cmp_gt_u32 vcc, {CH // 4 - 512}, v{vTID}
v_lshlrev_b32 v18, 2, v{vTID}
v_add_u32 v18, 0x2000, v18
v_cndmask_b32 v3, v4, v3, vcc
v_cmp_gt_u32 vcc, {CH - 2048}, v{vTID}
s_mov_b64 s[{sEx2}:{sEx2+1}], vcc
v_cndmask_b32 v18, v4, v18, vcc
buffer_load_dwordx4 v[40:43], v2, s[{SO}:{SO+3}], s{sT} offen
buffer_load_dwordx4 v[44:47], v2, s[{SP}:{SP+3}], s{sT} offen
buffer_load_dword v48, v18, s[{SO}:{SO+3}], s{sT} offen
buffer_load_dword v52, v18, s[{SP}:{SP+3}], s{sT} offen
""")
    srd(A, SO, pW1, 144 * 128 * 2)
    srd(A, SP, pX, N_NODES * 128)
    A(f"v_lshlrev_b32 v1, 4, v{vLane}")
    A(f"s_lshl_b32 s{sT2}, s{sWave}, 10")
    for j in range(5):
        A(f"s_add_u32 m0, s{sT2}, {L_WRAW + 8192*j}")
        A(f"s_add_u32 s{sT3}, s{sT2}, {8192*j}")
        A(f"buffer_load_dwordx4 v1, s[{SO}:{SO+3}], s{sT3} offen lds")
    A(f"""
s_lshl_b32 s{sT3}, s{sWave}, 3
v_lshrrev_b32 v5, 3, v{vLane}
v_add_u32 v5, s{sT3}, v5
v_bfe_u32 v6, v5, 1, 3
v_and_b32 v7, 7, v{vLane}
v_xor_b32 v6, v6, v7
v_add_u32 v5, s{sStart}, v5
v_lshlrev_b32 v5, 7, v5
v_lshl_add_u32 v5, v6, 4, v5
s_add_u32 m0, s{sT2}, {L_XROW}
s_and_b32 s{sT3}, s{sWave}, 3
buffer_load_dwordx4 v5, s[{SP}:{SP+3}], 0 offen lds
s_lshl_b32 s{sT3}, s{sT3}, 5
v_and_b32 v5, 31, v{vLane}
v_lshrrev_b32 v222, 5, v{vLane}
v_add_u32 v221, s{sT3}, v5
v_lshlrev_b32 v9, 1, v221
global_load_ushort v223, v9, s[{pB1}:{pB1+1}]
s_barrier
""")
    A(f"""
v_lshlrev_b32 v11, 16, v{vTID}
v_lshlrev_b32 v12, 14, v{vTID}
v_add_u32 v12, {2048 << 14:#x}, v12
s_mov_b32 s{sT2}, 429497
STAMP 2
s_waitcnt vmcnt(7)
STAMP 3
""")
    es_init(A)
    es(A, "a")
    def hist(base, dst, src, eid, n=4):
        for i in range(n): A(f"v_mul_u32_u24 v{base+i}, s{sT2}, v{dst+i}")
        for i in range(n): A(f"v_lshrrev_b32 v{base+i}, 22, v{base+i}")
        for i in range(n):
            A(f"v_and_b32 v{base+i}, 0x3fc, v{base+i}")
            A(f"ds_add_rtn_u32 v{base+8+i}, v{base+i}, v13 offset:{L_HIST}")
        for i in range(n):
            A(f"v_lshl_or_b32 v{dst+i}, v{dst+i}, 26, v{src+i}")
            A(f"v_add_u32 v{dst+i}, v{dst+i}, v{eid}")
            if i: A(f"v_add_u32 v{dst+i}, {i << 14:#x}, v{dst+i}")
    A("v_mov_b32 v13, 1")
    hist(56, 40, 44, 11)
    es(A, "b")
    A(f"s_mov_b64 exec, s[{sEx2}:{sEx2+1}]")
    hist(60, 48, 52, 12, 1)
    A("s_mov_b64 exec, -1")
    A.label("A_H1")
    A(f"""
s_waitcnt lgkmcnt(0)
s_barrier
v_lshlrev_b32 v14, 4, v{vLane}
ds_read_b128 v[72:75], v14 offset:{L_HIST}
v_mov_b32 v15, 0
s_cmp_lg_u32 s{sWave}, 0
s_cbranch_scc1 A_NOTAG0
global_load_dwordx2 v[16:17], v15, s[{pDbg}:{pDbg+1}] sc1
A_NOTAG0:
s_waitcnt lgkmcnt(0)
v_add_u32 v76, v72, v73
v_add_u32 v77, v76, v74
v_add_u32 v78, v77, v75
v_mov_b32 v79, v78
""")
    es(A, "c")
    wave_scan(A, 79)
    A(f"""
v_sub_u32 v80, v79, v78
v_add_u32 v81, v80, v72
v_add_u32 v82, v80, v76
v_add_u32 v83, v80, v77
ds_write_b128 v14, v[80:83] offset:{L_BASE}
s_waitcnt lgkmcnt(0)
""")
    for i in range(5): A(f"ds_read_b32 v{56+i}, v{56+i} offset:{L_BASE}")
    for i in range(4):
        A(f"s_waitcnt lgkmcnt({4-i})")
        A(f"v_add_lshl_u32 v{56+i}, v{56+i}, v{64+i}, 2")
        A(f"ds_write_b32 v{56+i}, v{40+i} offset:{L_SORT}")
    A(f"s_mov_b64 exec, s[{sEx2}:{sEx2+1}]")
    A("s_waitcnt lgkmcnt(4)")
    A(f"v_add_lshl_u32 v60, v60, v68, 2")
    A(f"ds_write_b32 v60, v48 offset:{L_SORT}")
    A("s_mov_b64 exec, -1")
    A.label("A_H2")
    srd(A, SW, pWs, WS_END)
    A(f"""
s_waitcnt lgkmcnt(0)
s_barrier
STAMP 4
ds_read_b128 v[40:43], v2 offset:{L_SORT}
ds_read_b128 v[44:47], v2 offset:{L_SORT + 8192}
s_mul_i32 s{sT}, s2, {CH * 4}
s_add_u32 s{sT}, s{sT}, {WS_REC}
s_waitcnt lgkmcnt(1)
buffer_store_dwordx4 v[40:43], v2, s[{SW}:{SW+3}], s{sT} offen sc1
s_waitcnt lgkmcnt(0)
buffer_store_dwordx4 v[44:47], v3, s[{SW}:{SW+3}], s{sT} offen sc1
""")
    A(f"""
s_cmp_lg_u32 s{sWave}, 0
s_cbranch_scc1 A_DRAIN
""")
    A.label("A_NONCE")
    A(f"""
s_waitcnt vmcnt(0)
v_readfirstlane_b32 s{sTagLo}, v16
v_readfirstlane_b32 s{sTagB}, v17
s_cmp_lt_i32 s{sTagB}, 0
s_cbranch_scc1 A_HAVETAG
A_NONCE2:
s_sub_u32 s{sCnt}, s{sCnt}, 1
s_cmp_eq_u32 s{sCnt}, 0
s_cbranch_scc1 B_END
s_sleep 1
global_load_dwordx2 v[16:17], v15, s[{pDbg}:{pDbg+1}] sc1
s_waitcnt vmcnt(0)
v_readfirstlane_b32 s{sTagLo}, v16
v_readfirstlane_b32 s{sTagB}, v17
s_cmp_lt_i32 s{sTagB}, 0
s_cbranch_scc0 A_NONCE2
""")
    A.label("A_HAVETAG")
    A(f"""
v_and_b32 v17, 0xff, v17
v_mov_b32 v15, {L_FLAG}
ds_write_b64 v15, v[16:17] offset:16
s_and_b32 s{sTagB}, s{sTagB}, 0xff
""")
    A.label("A_DRAIN")
    A(f"""
s_waitcnt vmcnt(0) lgkmcnt(0)
s_barrier
s_cmp_lg_u32 s{sWave}, 0
s_cbranch_scc1 A_PUBLISHED
s_lshl_b32 s{sT}, s{sTagB}, 24
v_mov_b32 v41, s{sTagLo}
v_mov_b32 v43, s{sTagLo}
v_mov_b32 v45, s{sTagLo}
v_mov_b32 v47, s{sTagLo}
v_lshl_or_b32 v40, v72, 12, v80
v_lshl_or_b32 v42, v73, 12, v81
v_lshl_or_b32 v44, v74, 12, v82
v_lshl_or_b32 v46, v75, 12, v83
v_or_b32 v40, s{sT}, v40
v_or_b32 v42, s{sT}, v42
v_or_b32 v44, s{sT}, v44
v_or_b32 v46, s{sT}, v46
v_lshlrev_b32 v14, 5, v{vLane}
s_lshl_b32 s{sT}, s2, 11
s_add_u32 s{sT}, s{sT}, {WS_TBL}
buffer_store_dwordx4 v[40:43], v14, s[{SW}:{SW+3}], s{sT} offen sc1
buffer_store_dwordx4 v[44:47], v14, s[{SW}:{SW+3}], s{sT} offen offset:16 sc1
""")
    A.label("A_PUBLISHED")
    A("STAMP 5")
    A(f"v_mov_b32 v15, {L_FLAG}")
    A("ds_read_b64 v[16:17], v15 offset:16")
    A(f"""
v_lshrrev_b32 v4, 1, v{vTID}
v_mul_u32_u24 v{vC25}, {CH}, v4
v_lshlrev_b32 v4, 11, v4
s_waitcnt lgkmcnt(0)
v_readfirstlane_b32 s{sTagLo}, v16
v_readfirstlane_b32 s{sTagB}, v17
""")
    A(f"""
s_lshr_b32 s{sT}, s{sWave}, 2
s_lshl_b32 s{sT}, s{sT}, 12
s_add_u32 s{sT}, s{sT}, {L_XROW}
v_and_b32 v216, 31, v{vLane}
v_bfe_u32 v217, v{vLane}, 1, 3
v_lshlrev_b32 v216, 7, v216
v_add_u32 v216, s{sT}, v216
""")
    for s_ in range(4):
        A(f"v_or_b32 v218, {2*s_}, v222")
        A(f"v_xor_b32 v218, v218, v217")
        A(f"v_lshl_add_u32 v218, v218, 4, v216")
        A(f"ds_read_b128 v[{X+4*s_}:{X+4*s_+3}], v218")
    tr_addr(A, 216, L_WRAW, 256)
    A(f"""
s_lshr_b32 s{sT}, s{sWave}, 2
s_lshl_b32 s{sT}, s{sT}, 12
s_and_b32 s{sT2}, s{sWave}, 3
s_lshl_b32 s{sT2}, s{sT2}, 6
s_add_u32 s{sT}, s{sT}, s{sT2}
v_add_u32 v217, s{sT}, v216
v_add_u32 v218, s{sT2}, v216
""")
    WC = 112
    for j, (reg, off) in enumerate(((217, 0), (217, 32 * 256), (218, 128 * 256))):
        A(f"ds_read_b64_tr_b16 v[{WC+4*j}:{WC+1+4*j}], v{reg} offset:{off}")
        A(f"ds_read_b64_tr_b16 v[{WC+2+4*j}:{WC+3+4*j}], v{reg} offset:{off + 1024}")
    for s_ in range(4):
        A(f"ds_read_b64_tr_b16 v[{D[0]+4*s_}:{D[0]+4*s_+1}], v218 offset:{(64 + 16*s_) * 256}")
        A(f"ds_read_b64_tr_b16 v[{D[0]+4*s_+2}:{D[0]+4*s_+3}], v218 offset:{(64 + 16*s_) * 256 + 1024}")
    A(f"s_mov_b32 s{sT3}, {f2u(SCALE):#x}")
    A("s_waitcnt lgkmcnt(8)")
    for j in range(12):
        A(f"v_lshlrev_b32 v219, 16, v{WC+j}")
        A(f"v_and_b32 v220, 0xffff0000, v{WC+j}")
        A(f"v_mul_f32 v219, s{sT3}, v219")
        A(f"v_mul_f32 v220, s{sT3}, v220")
        A(f"v_cvt_pk_bf16_f32 v{WC+j}, v219, v220")
    A(f"""
v_lshlrev_b32 v219, 4, v{vLane}
s_lshl_b32 s{sT}, s{sWave}, 10
s_add_u32 s{sT}, s{sT}, {L_WST}
v_add_u32 v219, s{sT}, v219
""")
    A(f"ds_write_b128 v219, v[{WC}:{WC+3}]")
    A(f"ds_write_b128 v219, v[{WC+4}:{WC+7}] offset:8192")
    A("s_waitcnt lgkmcnt(2)")
    for s_ in range(4):
        A(f"v_mfma_f32_32x32x16_bf16 v[{D[1]}:{D[1]+15}], v[{X+4*s_}:{X+4*s_+3}], v[{D[0]+4*s_}:{D[0]+4*s_+3}], {'0' if s_ == 0 else f'v[{D[1]}:{D[1]+15}]'}")
    A(f"s_cmp_ge_u32 s{sWave}, 4")
    A("s_cbranch_scc1 B_NOWC")
    A(f"ds_write_b128 v219, v[{WC+8}:{WC+11}] offset:16384")
    A.label("B_NOWC")
    A(f"""
v_lshlrev_b32 v223, 16, v223
v_mul_f32 v223, s{sT3}, v223
v_mul_u32_u24 v224, {QSTR}, v221
s_lshr_b32 s{sT}, s{sWave}, 2
s_lshl_b32 s{sT}, s{sT}, 6
v_lshl_add_u32 v224, v222, 3, v224
v_add_u32 v224, s{sT}, v224
""")
    for j in range(16): A(f"v_fma_f32 v{D[1]+j}, v{D[1]+j}, s{sT3}, v223")
    for g in range(4):
        A(f"v_cvt_pk_bf16_f32 v{X+2*g}, v{D[1]+4*g}, v{D[1]+4*g+1}")
        A(f"v_cvt_pk_bf16_f32 v{X+2*g+1}, v{D[1]+4*g+2}, v{D[1]+4*g+3}")
    for g in range(2):
        A(f"ds_write_b64 v224, v[{X+2*g}:{X+2*g+1}] offset:{L_QT + 16*g}")
    A(f"s_cmp_ge_u32 s{sWave}, 4")
    A(f"s_cbranch_scc1 B_QDONE")
    for g in range(2, 4):
        A(f"ds_write_b64 v224, v[{X+2*g}:{X+2*g+1}] offset:{L_QT + 16*g}")
    A.label("B_QDONE")
    fill_lists(A)
    zero_s(A)
    A(f"""
s_waitcnt lgkmcnt(0)
s_barrier
s_lshl_b32 s{sT}, s2, 3
s_add_u32 s{sT}, s{sT}, {WS_TBL}
s_mov_b32 s{sCnt}, 0x400000
s_mov_b32 s{sFirst}, 1
STAMP 6
""")
    A.label("B_POLL")
    A(f"""
buffer_load_dwordx2 v[{vTbl}:{vTbl+1}], v4, s[{SW}:{SW+3}], s{sT} offen sc1
s_waitcnt vmcnt(0)
v_lshrrev_b32 v5, 24, v{vTbl}
v_cmp_ne_u32 vcc, s{sTagLo}, v{vTbl+1}
v_cmp_ne_u32 s[{sEx}:{sEx+1}], s{sTagB}, v5
s_or_b64 vcc, vcc, s[{sEx}:{sEx+1}]
s_and_b64 exec, exec, vcc
s_cbranch_execz B_POLLED
s_sub_u32 s{sCnt}, s{sCnt}, 1
s_cmp_eq_u32 s{sCnt}, 0
s_cbranch_scc1 B_END
s_sleep 1
s_branch B_POLL
""")
    A.label("B_POLLED")
    A("s_mov_b64 exec, -1")
    A("STAMP 7")
    A.label("B_ROUND")
    A(f"""
v_bfe_u32 v{vLim}, v{vTbl}, 12, 12
v_mov_b32 v245, v{vLim}
v_subrev_u32 v{vLim}, s{sLo}, v{vLim}
v_min_i32 v{vLim}, s{sR}, v{vLim}
v_and_b32 v{vT}, 1, v{vTID}
v_lshlrev_b32 v{vT}, 2, v{vT}
v_sub_u32 v{vLim}, v{vLim}, v{vT}
v_and_b32 v{tmp}, 0xfff, v{vTbl}
v_add3_u32 v{tmp}, v{tmp}, v{vC25}, v{vT}
v_add_u32 v{tmp}, s{sLo}, v{tmp}
v_lshlrev_b32 v{tmp}, 2, v{tmp}
v_mov_b32 v{tmp2+1}, 0x7ffffff0
s_mov_b32 s{sT}, {WS_REC}
""")
    for g in range(4):
        A(f"v_cmp_lt_i32 vcc, {8*g}, v{vLim}")
        A(f"v_cndmask_b32 v{tmp2}, v{tmp2+1}, v{tmp}, vcc")
        A(f"buffer_load_dwordx4 v[{R+4*g}:{R+4*g+3}], v{tmp2}, s[{SW}:{SW+3}], s{sT} offen offset:{32*g} sc1")
    A(f"s_cmp_eq_u32 s{sFirst}, 0")
    A("s_cbranch_scc1 B_NOTFIRST")
    srd(A, SX, pX, N_NODES, stride=128)
    srd(A, SE, pE, N_EDGES, stride=32)
    lane_consts(A)
    A(f"""
v_lshlrev_b32 v1, 4, v{vLane}
v_add_u32 v1, {L_WST}, v1
""")
    for u in range(16): A(f"ds_read_b128 v[{W+4*u}:{W+4*u+3}], v1 offset:{1024*u}")
    for c in range(4): A(f"ds_read_b128 v[{We+4*c}:{We+4*c+3}], v1 offset:{1024*(16+c)}")
    A(f"s_mov_b32 s{sFirst}, 0")
    A("s_branch B_COUNT")
    A.label("B_NOTFIRST")
    A("s_waitcnt lgkmcnt(0)")
    A("s_barrier")
    A.label("B_COUNT")
    A(f"""
v_mov_b32 v246, {L_FLAG}
ds_max_u32 v246, v245
v_mov_b32 v{vT}, 1
""")
    for j in range(16): A(f"v_mov_b32 v{A4+j}, 0")
    A("s_waitcnt vmcnt(0)")
    def count_body(g, i):
        j = 4 * g + i
        A(f"v_lshrrev_b32 v{A4+j}, 24, v{R+j}")
        A(f"v_and_b32 v{A4+j}, 0xfc, v{A4+j}")
        A(f"ds_add_rtn_u32 v{RK+j}, v{A4+j}, v{vT} offset:{L_CNT}")
    sort_slots(A, count_body, range(4), "B_COUNTED")
    A.label("B_COUNTED")
    A("s_mov_b64 exec, -1")
    es(A, "i")
    A(f"""
s_mov_b64 exec, -1
s_waitcnt lgkmcnt(0)
s_barrier
STAMP 8
""")
    A(f"""
v_mov_b32 v{tmp2}, 0
ds_read_b32 v{tmp}, v{vN6} offset:{L_CNT}
ds_read_b32 v{tmp2}, v{tmp2} offset:{L_FLAG}
v_cmp_gt_u32 vcc, s{sNn}, v{vLane}
s_waitcnt lgkmcnt(0)
v_readfirstlane_b32 s{sMax}, v{tmp2}
v_add_u32 v{NT}, 3, v{tmp}
v_lshrrev_b32 v{NT}, 2, v{NT}
v_max_u32 v{NT}, 1, v{NT}
v_cndmask_b32 v{NT}, 0, v{NT}, vcc
v_mov_b32 v{NT+1}, v{NT}
""")
    wave_scan(A, NT + 1)
    es(A, "j")
    A(f"""
v_readlane_b32 s{sTot}, v{NT+1}, 63
v_sub_u32 v{NT+4}, v{NT+1}, v{NT}
v_lshlrev_b32 v{NT+4}, 2, v{NT+4}
v_mov_b32 v{NT+5}, v{vOhp}
v_lshlrev_b32 v{NT+6}, 10, v{vLane}
s_cmp_gt_u32 s{sTot}, {CAPQ}
s_cbranch_scc1 B_OVERFLOW
s_and_saveexec_b64 s[{sEx}:{sEx+1}], vcc
v_add_u32 v{vdeg}, v{vdeg}, v{tmp}
v_lshlrev_b32 v{tmp}, 1, v{vN6}
ds_write_b64 v{tmp}, v[{NT+4}:{NT+5}] offset:{L_NTAB}
s_mov_b64 exec, s[{sEx}:{sEx+1}]
v_mov_b32 v{tmp}, s{sWave}
v_lshl_add_u32 v{tmp2}, v{tmp}, 2, v{NT+4}
B_QFILL:
v_cmpx_lt_u32 vcc, v{tmp}, v{NT}
s_cbranch_execz B_QFILLED
ds_write_b32 v{tmp2}, v{NT+6} offset:{L_QADDR}
v_add_u32 v{tmp}, 8, v{tmp}
v_add_u32 v{tmp2}, 32, v{tmp2}
s_branch B_QFILL
B_QFILLED:
s_mov_b64 exec, -1
v_mov_b32 v{vT}, {L_LIST}
s_mov_b32 s{sT4}, 0x3fff
s_waitcnt lgkmcnt(0)
""")
    def scatter_batch(groups, tag):
        for n, g in enumerate(groups):
            for i in range(4):
                j = 4 * g + i; t = NT + 8 + 4 * (4 * n + i)
                A(f"v_lshlrev_b32 v{tmp}, 1, v{A4+j}")
                A(f"ds_read_b64 v[{t}:{t+1}], v{tmp} offset:{L_NTAB}")
        A("s_waitcnt lgkmcnt(0)")
        def body(g, i):
            j = 4 * g + i; t = NT + 8 + 4 * (4 * groups.index(g) + i)
            A(f"v_add_u32 v{t}, v{t}, v{RK+j}")
            A(f"v_and_or_b32 v{t+2}, v{R+j}, s{sT4}, v{t+1}")
            A(f"v_bfe_u32 v{t+3}, v{R+j}, 14, 12")
            A(f"v_lshl_add_u32 v{t}, v{t}, 3, v{vT}")
            A(f"v_add_u32 v{t+3}, v{vC25}, v{t+3}")
            A(f"ds_write_b64 v{t}, v[{t+2}:{t+3}]")
        sort_slots(A, body, groups, tag)
    scatter_batch([0, 1], "B_SC1")
    A.label("B_SC1")
    A(f"""
s_mov_b64 exec, -1
v_cmp_lt_i32 vcc, 16, v{vLim}
s_cbranch_vccz B_SC3
""")
    scatter_batch([2], "B_SC2")
    A.label("B_SC2")
    A(f"""
s_mov_b64 exec, -1
v_cmp_lt_i32 vcc, 24, v{vLim}
s_cbranch_vccz B_SC3
""")
    scatter_batch([3], "B_SC3")
    A.label("B_SC3")
    A("s_mov_b64 exec, -1")
    A(f"""
s_add_u32 s{sT}, s{sTot}, 7
s_lshr_b32 s{sT}, s{sT}, 3
s_lshr_b32 s{sT2}, s{sT}, 3
s_and_b32 s{sT3}, s{sT}, 7
s_mul_i32 s{sT0}, s{sT2}, s{sWave}
s_min_u32 s{sN}, s{sWave}, s{sT3}
s_add_u32 s{sT0}, s{sT0}, s{sN}
s_cmp_lt_u32 s{sWave}, s{sT3}
s_cselect_b32 s{sN}, 1, 0
s_add_u32 s{sN}, s{sN}, s{sT2}
""")
    if OPT["skew"]:
        k = OPT["skew"]
        A(f"""
s_cmp_lt_u32 s{sT2}, {2*k + 1}
s_cbranch_scc1 B_NOSKEW
s_min_u32 s{sT3}, s{sWave}, 4
s_sub_u32 s{sT4}, s{sWave}, s{sT3}
s_sub_u32 s{sT3}, s{sT3}, s{sT4}
s_mul_i32 s{sT3}, s{sT3}, {k}
s_add_u32 s{sT0}, s{sT0}, s{sT3}
s_cmp_lt_u32 s{sWave}, 4
s_cselect_b32 s{sT3}, {k}, {-k & 0xffffffff}
s_add_u32 s{sN}, s{sN}, s{sT3}
B_NOSKEW:
""")
    A(f"""
s_mul_i32 s{sT}, s{sT0}, {TB}
s_add_u32 s{sT}, s{sT}, {L_LIST}
v_add_u32 v{aX}, s{sT}, v{cX}
v_add_u32 v{aG}, s{sT}, v{cG}
v_add_u32 v{aO}, s{sT}, v{cO}
s_lshl_b32 s{sT}, s{sT0}, 5
s_add_u32 s{sT}, s{sT}, {L_QADDR}
v_mov_b32 v{aN}, s{sT}
v_add_u32 v{aQ}, s{sT}, v{v16h}
s_waitcnt lgkmcnt(0)
s_barrier
STAMP 12
s_cmp_eq_u32 s{sN}, 0
s_cbranch_scc1 B_NOTILES
s_cmp_lg_u32 s{sMode}, 0
s_cbranch_scc1 B_SAFE
""")
    main_loop(A, True)
    A.label("B_SAFE")
    main_loop(A, False)
    A.label("B_NOTILES")
    load_w2(A)
    if OPT["stagger"]: A("s_barrier")
    if OPT["stagger"] == 2: A("s_barrier")
    A.label("B_LOOPEND")
    A(f"""
s_setprio 0
STAMP 10
CSTAMP 14
s_waitcnt vmcnt(0)
""")
    A(f"""
v_lshrrev_b32 v3, 5, v{vLane}
s_and_b32 s{sT}, s{sWave}, 1
s_lshl_b32 s{sT}, s{sT}, 6
v_lshlrev_b32 v4, 3, v3
v_add_u32 v4, s{sT}, v4
""")
    A(f"""
s_waitcnt vmcnt(0) lgkmcnt(0)
s_barrier
s_add_u32 s{sLo}, s{sLo}, s{sR}
s_cmp_ge_u32 s{sLo}, s{sMax}
s_cbranch_scc1 B_FINISH
""")
    fill_lists(A)
    A("s_branch B_ROUND")
    A.label("B_OVERFLOW")
    A(f"s_mov_b32 s{sR}, 8")
    A.label("B_RESTART")
    A(f"""
s_barrier
s_mov_b32 s{sLo}, 0
v_mov_b32 v{vdeg}, 0
v_mov_b32 v{chk}, 0
v_mov_b32 v{chk+1}, 0
""")
    fill_lists(A)
    zero_s(A)
    A("s_branch B_ROUND")
    A.label("B_FINISH")
    SB = L_LIST
    A(f"""
v_mov_b32 v5, 0x71800000
v_cmp_nlt_f32 vcc, v{chk}, v5
v_cmp_nlt_f32 s[{sEx}:{sEx+1}], v{chk+1}, v5
s_or_b64 vcc, vcc, s[{sEx}:{sEx+1}]
v_lshlrev_b32 v6, 2, v{vLane}
ds_write_b32 v6, v{vdeg} offset:{L_DEG}
v_lshlrev_b32 v{tmp}, 4, v{vTID}
""")
    for j in range(5):
        A(f"ds_read_b128 v[{E+4*j}:{E+4*j+3}], v{tmp} offset:{L_S + 8192*j}")
    A(f"""
v_lshrrev_b32 v7, 6, v{vTID}
v_mul_u32_u24 v7, {SBSTR}, v7
v_and_b32 v8, 63, v{vTID}
v_lshl_add_u32 v7, v8, 2, v7
v_add_u32 v7, {SB}, v7
v_mov_b32 v9, {f2u(1.0 / SCALE):#x}
v_mov_b32 v10, 0
s_waitcnt lgkmcnt(0)
""")
    for j in range(10): A(f"v_cvt_f32_f64 v{D[1]+j}, v[{E+2*j}:{E+2*j+1}]")
    for j in range(10): A(f"v_mul_f32 v{D[1]+j}, v9, v{D[1]+j}")
    for j in range(10): A(f"v_fmac_f32 v10, 0, v{D[1]+j}")
    A(f"v_cmp_u_f32 s[{sEx}:{sEx+1}], v10, v10")
    A(f"s_or_b64 vcc, vcc, s[{sEx}:{sEx+1}]")
    for j in range(5):
        A(f"v_cvt_pk_bf16_f32 v{E+j}, v{D[1]+2*j}, v{D[1]+2*j+1}")
        A(f"ds_write_b32 v7, v{E+j} offset:{8*SBSTR*j}")
    A(f"""
s_cmp_eq_u64 vcc, 0
s_cbranch_scc1 B_NOFLAG
v_mov_b32 v5, {L_FLAG}
v_mov_b32 v6, 1
ds_write_b32 v5, v6 offset:4
""")
    A.label("B_NOFLAG")
    A(f"""
s_waitcnt lgkmcnt(0)
s_barrier
v_mov_b32 v5, {L_FLAG}
ds_read_b32 v6, v5 offset:4
s_waitcnt lgkmcnt(0)
v_readfirstlane_b32 s{sT}, v6
s_cmp_lg_u32 s{sMode}, 0
s_cbranch_scc1 B_OUT
s_cmp_eq_u32 s{sT}, 0
s_cbranch_scc1 B_OUT
s_mov_b32 s{sMode}, 1
""")
    lane_consts(A)
    A("s_branch B_RESTART")
    A.label("B_OUT")
    A(f"""
s_cmp_ge_u32 s{sWave}, 4
s_cbranch_scc1 {"B_FLUSH" if OPT["stamps"] else "B_END"}
s_lshr_b32 s{sT}, s{sWave}, 1
s_lshl_b32 s{sT}, s{sT}, 5
v_and_b32 v2, 31, v{vLane}
v_add_u32 v2, s{sT}, v2
v_mul_u32_u24 v5, {SBSTR}, v2
v_lshl_add_u32 v5, v3, 4, v5
v_add_u32 v5, {SB}, v5
v_lshlrev_b32 v6, 2, v2
ds_read_b32 v7, v6 offset:{L_DEG}
""")
    for s in range(8):
        A(f"ds_read_b128 v[{X+4*s}:{X+4*s+3}], v5 offset:{32*s}")
    tr_addr(A, 11, L_W2, 128)
    A(f"s_and_b32 s{sT}, s{sWave}, 1")
    A(f"s_lshl_b32 s{sT}, s{sT}, 6")
    A(f"v_add_u32 v11, s{sT}, v11")
    wf = lambda s: (E + 4 * s) if s < 4 else (D[1] + 4 * (s - 4))
    for s in range(8):
        A(f"ds_read_b64_tr_b16 v[{wf(s)}:{wf(s)+1}], v11 offset:{2048*s}")
        A(f"ds_read_b64_tr_b16 v[{wf(s)+2}:{wf(s)+3}], v11 offset:{2048*s + 512}")
    srd(A, SO, pOut, N_NODES * 128)
    A("s_waitcnt lgkmcnt(0)")
    d = D[0]
    for s in range(8):
        A(f"v_mfma_f32_32x32x16_bf16 v[{d}:{d+15}], v[{wf(s)}:{wf(s)+3}], v[{X+4*s}:{X+4*s+3}], {'0' if s == 0 else f'v[{d}:{d+15}]'}")
    B2 = vB2
    A(f"""
v_cvt_f32_u32 v7, v7
v_add_u32 v8, s{sStart}, v2
v_lshlrev_b32 v8, 7, v8
v_add_u32 v8, v8, v4
v_cmp_gt_u32 vcc, s{sNn}, v2
""")
    for g in range(4):
        A(f"v_lshlrev_b32 v{TU[0]+4*g}, 16, v{B2+2*g}")
        A(f"v_and_b32 v{TU[0]+4*g+1}, 0xffff0000, v{B2+2*g}")
        A(f"v_lshlrev_b32 v{TU[0]+4*g+2}, 16, v{B2+2*g+1}")
        A(f"v_and_b32 v{TU[0]+4*g+3}, 0xffff0000, v{B2+2*g+1}")
    for j in range(16):
        A(f"v_fma_f32 v{d+j}, v7, v{TU[0]+j}, v{d+j}")
    A(f"s_and_saveexec_b64 s[{sEx}:{sEx+1}], vcc")
    for g in range(4):
        A(f"v_cvt_pk_bf16_f32 v{E+2*g}, v{d+4*g}, v{d+4*g+1}")
        A(f"v_cvt_pk_bf16_f32 v{E+2*g+1}, v{d+4*g+2}, v{d+4*g+3}")
        A(f"buffer_store_dwordx2 v[{E+2*g}:{E+2*g+1}], v8, s[{SO}:{SO+3}], 0 offen offset:{16*g}")
    if OPT["stamps"]:
        A.label("B_FLUSH")
        A("s_waitcnt vmcnt(0)")
        A("STAMP 12" if False else "STAMP 15")
        stamp_flush(A, 16)
    A.label("B_END")
    A("s_endpgm")
    A.pad()
    for tag in "FS":
        bad = A.check_loop(f"B_LOOP{tag}", f"s_cbranch_scc0 B_LOOP{tag}")
        assert not bad, bad
    return A

def main(path):
    k = kernel()
    hdr = open("cdna_kernels/" + NAME + ".s.ref").read().split("; Override launch geometry")[0]
    s = hdr
    s += "; One workgroup per CU: workgroup c sorts edge chunk c by destination bucket, then processes bucket c.\n"
    s += f"; @launch grid=({NB},1,1) block=(512,1,1) lds={LDS_B}\n"
    s += '.amdgcn_target "amdgcn-amd-amdhsa--gfx950"\n.text\n'
    s += f".globl {KB}\n.p2align 8\n.type {KB},@function\n" + k.text()
    acc = (NVGPR + 3) // 4 * 4
    s += f""".section .rodata,"a"
.p2align 6
.amdhsa_kernel {KB}
  .amdhsa_next_free_vgpr {NVGPR}
  .amdhsa_next_free_sgpr 102
  .amdhsa_accum_offset {acc}
  .amdhsa_group_segment_fixed_size 0
  .amdhsa_kernarg_size 88
  .amdhsa_user_sgpr_count 2
  .amdhsa_user_sgpr_kernarg_segment_ptr 1
  .amdhsa_system_sgpr_workgroup_id_x 1
.end_amdhsa_kernel
"""
    open(path, "w").write(s)

if __name__ == "__main__":
    main(OPT["out"] or "cdna_kernels/" + NAME + ".s")
```

```python
import sys, struct
from asmlib import Asm

NAME = "gather_scatter__edge_featured_mpnn_mpnn__graph"
KB = NAME + "_kernel"
N_NODES = 10000; N_EDGES = 640000; NB = 256; CH = 2500
WS_TBL = 0; WS_REC = NB * NB * 8; WS_END = WS_REC + N_EDGES * 4 + 4096
BF_ONE = 0x3F80
SCALE = -1.4426950408889634
def f2u(x): return struct.unpack("<I", struct.pack("<f", x))[0]

OPT = dict(prio=True, stamps=False, noadd=False, nodma=False, nomfma=False, novalu=False, xwarm=False, ewarm=False, psched=((2, 1), (1, 0)), estream=0, es=(4, 3, 3), touch=False, w0=True, diagsleep=0, lcearly=True, psleep=2, qskip=False, recpol=' sc1', fflush=True, prioflip=False, defer=False, layout='', skew=1, es2='', stagger=1, seqform=True, dmaspread=True, late=False, prime2=True, out=None)
for a in sys.argv[1:]:
    if "=" in a:
        k, v = a.split("=", 1); OPT[k] = eval(v)

L_S = 0; L_CNT = 40960; L_NTAB = 41216; L_DEG = 42240; L_FLAG = 42496; L_QT = 42752
L_QADDR = 57088; L_QEND = 60416; L_OHT = 65024; L_OHZ = 65536; L_XB0 = 65792; XBS = 6144
L_LIST = L_XB0 + 8 * XBS; LIST_BYTES = 25600; L_Z = L_LIST + LIST_BYTES; LDS_B = L_Z + 20480
L_HIST = 0; L_BASE = 1024; L_SORT = 2048; L_WRAW = L_XB0; L_XROW = L_XB0 + 40960; L_WST = L_Z
L_W2 = L_Z
QSTR = 112; CAPQ = 768; SBSTR = 272
TB = 256

vTID = 0
aX, aG, aO, aQ, aN = 1, 2, 3, 4, 5
xr = [6, 7, 8, 9]; eAddr = 10; vQ = 11; qbase = 12; c1 = 13; lanecol = 14; ohaddr = 15
xi = [16, 18, 20, 22]; ei = 24; node0 = 26; tmp = 27; chk = 28; tmp2 = 30
qa = [32, 36]
E = 40; D = [56, 72]; X = 88; Ea = 104; OH = 108; Qx = 112; We = 128; W = 144
vTbl = 208; vdeg = 210; vLane = 211; vN6 = 212; vOhp = 213; vC25 = 214; vLim = 215
TU = [216, 224]; F64 = 232; vT = 240; v16h = 241
cX, cG, cO = 242, 243, 244
vB2 = 248
NVGPR = 256
R = 40; RK = 56; A4 = 72; NT = 88

SX = 4; SE = 8; SW = 12; SO = 16; SP = 20
sEx = 24; sEx2 = 26; sT = 28; sT2 = 29; sT3 = 30; sT4 = 31
sWave = 32; sStart = 33; sNn = 34; sS6 = 35; sXB = 36; sN = 37; sT0 = 38; sMode = 39
sR = 40; sLo = 41; sMax = 42; sTagLo = 43; sTot = 44; sTagB = 45; sCnt = 46
pX, pE, pSrc, pDst, pW1, pB1, pW2, pB2 = 48, 50, 52, 54, 56, 58, 60, 62
pOut, pDbg, pWs = 96, 98, 100
WS_STAMP = 8 << 20

def srd(A, d, base, size, stride=0):
    A(f"s_mov_b32 s{d}, s{base}")
    A(f"s_and_b32 s{d+1}, s{base+1}, 0xffff")
    if stride: A(f"s_or_b32 s{d+1}, s{d+1}, {stride << 16:#x}")
    A(f"s_mov_b32 s{d+2}, {size}")
    A(f"s_mov_b32 s{d+3}, 0x20000")

def stamp_flush(A, n):
    if not OPT["stamps"]: return
    A("s_waitcnt vmcnt(0) lgkmcnt(0)")
    A("s_mov_b64 exec, -1")
    A(f"s_lshl_b32 s{sT}, s2, 4")
    A(f"s_add_u32 s{sT}, s{sT}, s{sWave}")
    A(f"s_lshl_b32 s{sT}, s{sT}, 6")
    A(f"s_add_u32 s{sT}, s{sT}, {WS_STAMP}")
    A(f"s_add_u32 s{sEx}, s{pWs}, s{sT}")
    A(f"s_addc_u32 s{sEx+1}, s{pWs+1}, 0")
    A("v_mov_b32 v1, 0")
    for i in range(n):
        A(f"v_mov_b32 v2, s{64+2*i}")
        A(f"global_store_dword v1, v2, s[{sEx}:{sEx+1}] offset:{4*i}")
    A("s_waitcnt vmcnt(0)")

def wave_scan(A, v):
    for sh in (1, 2, 4, 8):
        A(f"v_add_u32_dpp v{v}, v{v}, v{v} row_shr:{sh} row_mask:0xf bank_mask:0xf")
    A(f"v_add_u32_dpp v{v}, v{v}, v{v} row_bcast:15 row_mask:0xa bank_mask:0xf")
    A(f"v_add_u32_dpp v{v}, v{v}, v{v} row_bcast:31 row_mask:0xc bank_mask:0xf")

def fill_lists(A):
    A(f"v_lshlrev_b32 v{tmp}, 4, v{vTID}")
    A(f"v_add_u32 v{tmp2}, {L_LIST}, v{tmp}")
    for i in range(4): A(f"v_mov_b32 v{E+i}, -1")
    for i in range(4): A(f"v_mov_b32 v{E+4+i}, 0")
    for j in range(3):
        A(f"ds_write_b128 v{tmp2}, v[{E}:{E+3}] offset:{8192*j}")
    A(f"v_cmp_gt_u32 vcc, {(L_QEND - L_QADDR) // 16}, v{vTID}")
    A(f"s_and_saveexec_b64 s[{sEx}:{sEx+1}], vcc")
    A(f"ds_write_b128 v{tmp}, v[{E+4}:{E+7}] offset:{L_QADDR}")
    A(f"v_cmp_gt_u32 vcc, {(LIST_BYTES - 3 * 8192) // 16}, v{vTID}")
    A(f"s_and_b64 exec, exec, vcc")
    A(f"ds_write_b128 v{tmp2}, v[{E}:{E+3}] offset:{8192*3}")
    A(f"v_cmp_gt_u32 vcc, 16, v{vTID}")
    A(f"s_and_b64 exec, exec, vcc")
    A(f"ds_write_b128 v{tmp}, v[{E+4}:{E+7}] offset:{L_CNT}")
    A(f"s_mov_b64 exec, s[{sEx}:{sEx+1}]")

def zero_s(A):
    for j in range(5):
        A(f"ds_write_b128 v{tmp}, v[{E+4}:{E+7}] offset:{L_S + 8192*j}")

def chain(c, d):
    q = lambda r: f"v[{r}:{r+3}]"
    dd = f"v[{d}:{d+15}]"
    M = []
    for s in range(4):
        M.append(f"v_mfma_f32_32x32x16_bf16 {dd}, {q(X+4*s)}, {q(W+16*s+4*c)}, {'0' if s == 0 else dd}")
    M.append(f"v_mfma_f32_32x32x16_bf16 {dd}, {q(Ea)}, {q(We+4*c)}, {dd}")
    M.append(f"v_mfma_f32_32x32x16_bf16 {dd}, {q(OH)}, {q(Qx+4*c)}, {dd}")
    return M

def dma_x(A):
    for i in range(4):
        A(f"s_add_u32 m0, s{sXB}, {1024*i}")
        A(f"s_nop 0")
        A(f"buffer_load_dwordx4 v[{xi[i]}:{xi[i]+1}], s[{SX}:{SX+3}], 0 idxen offen lds")
def dma_e(A, slot):
    A(f"s_add_u32 m0, s{sXB}, {4096 + 1024*slot}")
    A(f"s_nop 0")
    A(f"buffer_load_dwordx4 v[{ei}:{ei+1}], s[{SE}:{SE+3}], 0 idxen offen lds")
def read_xidx(k): return [f"ds_read_u16 v{xi[i]}, v{aX} offset:{TB*k + 8*[0,2,8,10][i]}" for i in range(4)]
def read_eidx(k): return [f"ds_read_b32 v{ei}, v{aG} offset:{TB*k}"]
def read_a(eslot):
    L = [f"ds_read_b128 v[{X+4*s}:{X+4*s+3}], v{xr[s]}" for s in range(4)]
    L.append(f"ds_read_b128 v[{Ea}:{Ea+3}], v{eAddr} offset:{1024*eslot}")
    L.append(f"ds_read_b128 v[{OH}:{OH+3}], v{ohaddr} offset:1")
    return L
def read_q(c): return f"ds_read_b128 v[{Qx+4*c}:{Qx+4*c+3}], v{vQ} offset:{32*QSTR*c}"
def calc_vq():
    return [f"v_add_u32 v{tmp}, v{node0}, v{c1}", f"v_lshrrev_b32 v{tmp}, 14, v{tmp}",
            f"v_lshl_add_u32 v{vQ}, v{tmp}, 5, v{qbase}", f"v_add_u32 v{ohaddr}, v{ohaddr}, v{v16h}"]
def read_meta(k, par):
    return [f"ds_read_b128 v[{qa[par]}:{qa[par]+3}], v{aQ} offset:{32*k}",
            f"ds_read_b32 v{node0}, v{aN} offset:{32*k}",
            f"ds_read_u16 v{ohaddr}, v{aO} offset:{TB*k}"]

def pk_list(d, c):
    e = E; p = lambda r: f"v[{r}:{r+1}]"
    T = TU[c & 1]; U = T + 4; Tp = TU[(c + 1) & 1]; Up = Tp + 4
    L = []
    if OPT["seqform"]:
        oct_ = ((0, 0), (8, 2))
        for o, j in oct_: L.append(f"v_pk_mul_f32 {p(Up+j)}, {p(Up+j)}, {p(Tp+j)}")
        for o, j in oct_: L.append(f"v_pk_fma_f32 {p(d+o)}, {p(d+o)}, {p(e+o+2)}, {p(d+o)}")
        for o, j in oct_: L.append(f"v_pk_add_f32 {p(e+o)}, {p(e+o)}, 1.0 op_sel_hi:[1,0]")
        for k in (1, 2, 3):
            last = k == 3
            if k > 1:
                for o, j in oct_: L.append(f"v_pk_fma_f32 {p(d+o)}, {p(d+o)}, {p(e+o+2*k)}, {p(d+o)}")
            for o, j in oct_: L.append(f"v_pk_fma_f32 {p(U+j) if last else p(d+o)}, {p(d+o+2*k)}, {p(e+o)}, {p(d+o)}")
            for o, j in oct_: L.append(f"v_pk_fma_f32 {p(T+j) if last else p(e+o)}, {p(e+o)}, {p(e+o+2*k)}, {p(e+o)}")
        L.append(f"v_pk_fma_f32 {p(chk)}, {p(T)}, {p(T+2)}, {p(chk)}")
        return L
    for o, j in ((0, 0), (8, 2)):
        L.append(f"v_pk_mul_f32 {p(Up+j)}, {p(Up+j)}, {p(Tp+j)}")
    for o in (0, 8):
        L.append(f"v_pk_add_f32 {p(e+o+2)}, {p(e+o+2)}, 1.0 op_sel_hi:[1,0]")
        L.append(f"v_pk_add_f32 {p(e+o+6)}, {p(e+o+6)}, 1.0 op_sel_hi:[1,0]")
    for o in (0, 8):
        L.append(f"v_pk_fma_f32 {p(d+o)}, {p(d+o)}, {p(e+o+2)}, {p(d+o+2)}")
        L.append(f"v_pk_fma_f32 {p(d+o+4)}, {p(d+o+4)}, {p(e+o+6)}, {p(d+o+6)}")
    for o in (0, 8):
        L.append(f"v_pk_fma_f32 {p(d+o)}, {p(d+o+2)}, {p(e+o)}, {p(d+o)}")
        L.append(f"v_pk_fma_f32 {p(d+o+4)}, {p(d+o+6)}, {p(e+o+4)}, {p(d+o+4)}")
    for o in (0, 8):
        L.append(f"v_pk_fma_f32 {p(e+o)}, {p(e+o)}, {p(e+o+2)}, {p(e+o+2)}")
        L.append(f"v_pk_fma_f32 {p(e+o+4)}, {p(e+o+4)}, {p(e+o+6)}, {p(e+o+6)}")
    for o, j in ((0, 0), (8, 2)):
        L.append(f"v_pk_mul_f32 {p(T+j)}, {p(e+o)}, {p(e+o+4)}")
    for o in (0, 8):
        L.append(f"v_pk_mul_f32 {p(d+o)}, {p(d+o)}, {p(e+o+4)}")
    for o, j in ((0, 0), (8, 2)):
        L.append(f"v_pk_fma_f32 {p(U+j)}, {p(d+o+4)}, {p(e+o)}, {p(d+o)}")
    for j in (0, 2):
        L.append(f"v_pk_add_f32 {p(chk)}, {p(chk)}, {p(T+j)}")
    return L

def flush_q(c, q):
    U = TU[c & 1] + 4
    cv = [f"v_cvt_f64_f32 v[{F64+2*j}:{F64+2*j+1}], v{U+j}" for j in range(4)]
    ad = [f"ds_add_f64 v{q+j}, v[{F64+2*j}:{F64+2*j+1}] offset:{256*(c & 3)}" for j in range(4)]
    return cv, ad

def emit(A, x):
    if isinstance(x, tuple):
        _, sreg, lab, body = x
        A(f"s_cmp_eq_u32 s{sreg}, 0")
        A(f"s_cbranch_scc1 {lab}")
        for y in body: A(y)
        A.label(lab)
    else: A(x)

def flush_block(A, c, q, hflag, lab):
    U = TU[c & 1] + 4
    cv, ad = flush_q(c, q)
    if OPT["noadd"]: ad = [f"ds_read_b32 v{tmp2}, v{tmp2+1}"] * 4
    if not OPT["fflush"]:
        for x in cv + ad: A(x)
        return
    A(f"s_cmp_eq_u32 s{hflag}, 0")
    A(f"s_cbranch_scc1 {lab}a")
    A(f"v_add_f32 v{U}, v{U}, v{U+1}")
    A(f"v_add_f32 v{U+2}, v{U+2}, v{U+3}")
    A(f"v_add_f32 v{U}, v{U}, v{U+2}")
    A(cv[0]); A(ad[0])
    A(f"s_branch {lab}b")
    A.label(f"{lab}a")
    for x in cv + ad: A(x)
    A.label(f"{lab}b")

def tile_body(A, par, hp, hc):
    k = par; p = lambda r: f"v[{r}:{r+1}]"
    W0 = "s_waitcnt lgkmcnt(0)" if OPT["w0"] else None
    for ph in range(4):
        d = D[ph & 1]; dn = D[(ph + 1) & 1]
        M = chain((ph + 1) & 3, dn)
        Tp = TU[(ph + 1) & 1]; Up = Tp + 4
        Tc = TU[ph & 1]; Uc = Tc + 4
        tr = [f"v_exp_f32 v{E+j}, v{d+j}" for j in range(16)]
        hB = hc if ph >= 1 else hp; qB = qa[par] if ph >= 1 else qa[1 - par]
        hD = hc if ph >= 2 else hp; qD = qa[par] if ph >= 2 else qa[1 - par]
        cB = (ph + 3) & 3
        prev_tail = lambda h: 0 if h else 4
        extra = {i: [] for i in range(7)}
        pre = []
        if ph == 0:
            extra[1] += read_meta(k + 1, 1 - par)[1:]
        if ph == 1:
            pre += [f"s_waitcnt lgkmcnt({prev_tail(hp)})"]
            extra[1] += calc_vq() + [read_q(0), read_q(1)]
            extra[2] += read_xidx(k + 2) + read_eidx(k + 3)
        if ph == 2:
            extra[1] += [read_q(2), read_meta(k + 1, 1 - par)[0]]
            extra[5] += ["s_waitcnt vmcnt(1)"] + read_a(1 - par)
        if ph == 3:
            pre += [f"s_waitcnt lgkmcnt({prev_tail(hc)})"]
            extra[1] += [read_q(3)]
            qn = qa[1 - par]
            extra[2] += [f"v_cmp_ne_u32 vcc, v{qn}, v{qn+3}"]
            extra[2] += [f"v_add_u32 v{qn+j}, v{qn+j}, v{lanecol}" for j in range(4)]
            extra[3] += ["s_cmp_eq_u64 vcc, 0", f"s_cselect_b32 s{sH[0]}, 1, 0"]
        for x in pre: A(x)
        ti = 0
        for m in range(6):
            A(M[m])
            if ph == 3 and not OPT["nodma"]:
                if m < 4:
                    A(f"s_add_u32 m0, s{sXB}, {1024*m}")
                    A("s_nop 0")
                    A(f"buffer_load_dwordx4 v[{xi[m]}:{xi[m]+1}], s[{SX}:{SX+3}], 0 idxen offen lds")
                if m == 4: dma_e(A, 1 - par)
            if m == 5 and ph == 2:
                for x in extra[5]: A(x)
            if m == 0:
                if hB:
                    for x in merged_tail(Tp, qB, cB): A(x)
                else:
                    for j in range(4): A(f"v_rcp_f32 v{Tp+j}, v{Tp+j}")
            else:
                n = 3 if m < 5 else 4
                for x in tr[ti:ti + n]: A(x)
                ti += n
            if not (m == 5 and ph == 2):
                for x in extra[m]: A(x)
        assert ti == 16
        if not hD:
            cv, ad = flush_q(ph + 2, qD)
            for x in cv + ad: A(x)
        pk = pk_list(d, ph)
        if not hB:
            for x in pk[:2]: A(x)
        for x in pk[2:-1]: A(x)
        if hc:
            A(f"v_pk_mul_f32 {p(F64+4)}, {p(Uc)}, {p(Tc+2)}")
            A(f"v_pk_fma_f32 {p(Uc)}, {p(Uc+2)}, {p(Tc)}, {p(F64+4)}")
            A(f"v_pk_mul_f32 {p(Tc)}, {p(Tc)}, {p(Tc+2)}")
        else:
            A(pk[-1])

def merged_tail(Tp, q, c):
    Up = Tp + 4
    return [f"v_mul_f32 v{Tp+2}, v{Tp}, v{Tp+1}",
            f"v_mul_f32 v{Up+2}, v{Up}, v{Tp+1}",
            f"v_fma_f32 v{Up+2}, v{Up+1}, v{Tp}, v{Up+2}",
            f"v_rcp_f32 v{Tp+3}, v{Tp+2}",
            f"v_add_f32 v{chk}, v{chk}, v{Tp+2}",
            f"v_mul_f32 v{Up+2}, v{Up+2}, v{Tp+3}",
            f"v_cvt_f64_f32 v[{F64}:{F64+1}], v{Up+2}",
            f"ds_add_f64 v{q}, v[{F64}:{F64+1}] offset:{256*c}"]

def drain_fast(A, par, hc):
    p = lambda r: f"v[{r}:{r+1}]"
    Tp = TU[1]; Up = Tp + 4
    if hc:
        for x in merged_tail(Tp, qa[par], 3): A(x)
        return
    cv2, ad2 = flush_q(2, qa[par])
    cv3, ad3 = flush_q(3, qa[par])
    for x in ([f"v_rcp_f32 v{Tp+j}, v{Tp+j}" for j in range(4)] + cv2 + ad2 +
              [f"v_pk_mul_f32 {p(Up+j)}, {p(Up+j)}, {p(Tp+j)}" for j in (0, 2)] + cv3 + ad3): A(x)

def fast_loop(A):
    A(f"s_cmp_eq_u32 s{sH[0]}, 0")
    A("s_cbranch_scc0 B_T001")
    order = [(0, 0, 0), (1, 0, 0), (1, 0, 1), (0, 1, 0), (0, 0, 1), (1, 1, 1), (0, 1, 1), (1, 1, 0)]
    for n, (par, hp, hc) in enumerate(order):
        A.label(f"B_T{par}{hp}{hc}")
        tile_body(A, par, hp, hc)
        if par == 1:
            for r in (aX, aG, aO): A(f"v_add_u32 v{r}, {2*TB}, v{r}")
            for r in (aQ, aN): A(f"v_add_u32 v{r}, 64, v{r}")
        A(f"s_sub_u32 s{sN}, s{sN}, 1")
        A(f"s_cmp_eq_u32 s{sN}, 1")
        A(f"s_cbranch_scc0 B_W2T{par}{hp}{hc}")
        load_w2(A)
        A.label(f"B_W2T{par}{hp}{hc}")
        if OPT["prio"]:
            for rem, pr in OPT["psched"]:
                A(f"s_cmp_eq_u32 s{sN}, {rem}")
                A(f"s_cbranch_scc0 B_PT{par}{hp}{hc}{rem}")
                A(f"s_setprio {pr}")
                A.label(f"B_PT{par}{hp}{hc}{rem}")
        A(f"s_cmp_eq_u32 s{sN}, 0")
        A(f"s_cbranch_scc1 B_DRAIN{par}{hc}")
        A(f"s_cmp_eq_u32 s{sH[0]}, 0")
        nxt0 = (1 - par, hc, 0); nxt1 = (1 - par, hc, 1)
        follow = order[n + 1] if n + 1 < len(order) else None
        name = lambda t: f"B_T{t[0]}{t[1]}{t[2]}"
        if follow == nxt0:
            A(f"s_cbranch_scc0 {name(nxt1)}")
        elif follow == nxt1:
            A(f"s_cbranch_scc1 {name(nxt0)}")
        else:
            A(f"s_cbranch_scc0 {name(nxt1)}")
            A(f"s_branch {name(nxt0)}")
    for par in (0, 1):
        for hc in (0, 1):
            A.label(f"B_DRAIN{par}{hc}")
            drain_fast(A, par, hc)
            A("s_branch B_LOOPEND")

def tile_iter_safe(A, par):
    k = par; e = E; p = lambda r: f"v[{r}:{r+1}]"
    for ph in range(4):
        d = D[ph & 1]; dn = D[(ph + 1) & 1]
        if ph == 0:
            for x in read_meta(k + 1, 1 - par): A(x)
        if ph == 1:
            A("s_waitcnt lgkmcnt(4)")
            for x in calc_vq(): A(x)
            for j in range(4): A(f"v_add_u32 v{qa[1-par]+j}, v{qa[1-par]+j}, v{lanecol}")
            for x in [read_q(0), read_q(1)] + read_xidx(k + 2) + read_eidx(k + 3): A(x)
        if ph == 2: A(read_q(2))
        if ph == 3:
            A("s_waitcnt lgkmcnt(4)")
            dma_x(A); dma_e(A, 1 - par)
            A(read_q(3))
        for m in chain((ph + 1) & 3, dn): A(m)
        if ph == 2:
            A("s_waitcnt vmcnt(1)")
            for x in read_a(1 - par): A(x)
        for j in range(16): A(f"v_exp_f32 v{e+j}, v{d+j}")
        for j in range(0, 16, 2): A(f"v_pk_add_f32 {p(e+j)}, {p(e+j)}, 1.0 op_sel_hi:[1,0]")
        for j in range(16): A(f"v_rcp_f32 v{e+j}, v{e+j}")
        for j in range(0, 16, 2): A(f"v_pk_mul_f32 {p(d+j)}, {p(d+j)}, {p(e+j)}")
        for o in (0, 8):
            A(f"v_pk_add_f32 {p(d+o)}, {p(d+o)}, {p(d+o+2)}")
            A(f"v_pk_add_f32 {p(d+o+4)}, {p(d+o+4)}, {p(d+o+6)}")
        for o in (0, 8): A(f"v_pk_add_f32 {p(d+o)}, {p(d+o)}, {p(d+o+4)}")
        cvt = ((d, F64), (d + 1, F64 + 2), (d + 8, F64 + 4), (d + 9, F64 + 6))
        for r, t in cvt: A(f"v_cvt_f64_f32 v[{t}:{t+1}], v{r}")
        for j, (r, t) in enumerate(cvt): A(f"ds_add_f64 v{qa[par]+j}, v[{t}:{t+1}] offset:{256*ph}")

def load_w2(A, keep=False):
    a, b = sEx, sEx + 1
    srd(A, SO, pW2, 128 * 64 * 2)
    A(f"v_lshlrev_b32 v247, 4, v{vLane}")
    A(f"s_lshl_b32 s{a}, s{sWave}, 11")
    for j in range(2):
        A(f"s_add_u32 m0, s{a}, {L_W2 + 1024*j}")
        A(f"s_add_u32 s{b}, s{a}, {1024*j}")
        A(f"buffer_load_dwordx4 v247, s[{SO}:{SO+3}], s{b} offen lds")
    A(f"""
v_lshrrev_b32 v246, 5, v{vLane}
s_and_b32 s{a}, s{sWave}, 1
s_lshl_b32 s{a}, s{a}, 6
v_lshlrev_b32 v246, 3, v246
v_add_u32 v246, s{a}, v246
""")
    for g in range(4):
        A(f"global_load_dwordx2 v[{vB2+2*g}:{vB2+2*g+1}], v246, s[{pB2}:{pB2+1}] offset:{16*g}")

def main_loop(A, fast):
    tag = "F" if fast else "S"
    if OPT["prio"]: A("s_setprio 3")
    if OPT["stagger"]:
        A(f"s_cmp_lt_u32 s{sWave}, 4")
        A(f"s_cbranch_scc1 B_STG0{tag}")
        A("s_barrier")
        A.label(f"B_STG0{tag}")
    for x in read_xidx(0) + read_eidx(0): A(x)
    for x in read_meta(0, 0): A(x)
    A("s_waitcnt lgkmcnt(0)")
    dma_x(A); dma_e(A, 0)
    if OPT["stagger"] == 2:
        A(f"s_cmp_lt_u32 s{sWave}, 4")
        A(f"s_cbranch_scc1 B_STG2{tag}")
        A("s_barrier")
        A.label(f"B_STG2{tag}")
    for x in read_eidx(1): A(x)
    for x in calc_vq(): A(x)
    for j in range(4): A(f"v_add_u32 v{qa[0]+j}, v{qa[0]+j}, v{lanecol}")
    for c in range(4): A(read_q(c))
    for x in read_xidx(1): A(x)
    if fast:
        for t in TU:
            for j in range(4):
                A(f"v_mov_b32 v{t+j}, 1.0")
                A(f"v_mov_b32 v{t+4+j}, 0")
        for j in range(4): A(f"v_mov_b32 v{qa[1]+j}, v{lanecol}")
        A(f"v_cmp_ne_u32 vcc, v{qa[0]}, v{qa[0]+3}")
        A(f"s_mov_b32 s{sH[1]}, 0")
        A("s_cmp_eq_u64 vcc, 0")
        A(f"s_cselect_b32 s{sH[0]}, 1, 0")
    A("s_waitcnt vmcnt(0)")
    if OPT["stagger"]:
        A(f"s_cmp_ge_u32 s{sWave}, 4")
        A(f"s_cbranch_scc1 B_STG1{tag}")
        A("s_barrier")
        A.label(f"B_STG1{tag}")
    for x in read_a(0): A(x)
    A("s_waitcnt lgkmcnt(0)")
    if OPT["stagger"] == 2:
        A(f"s_cmp_ge_u32 s{sWave}, 4")
        A(f"s_cbranch_scc1 B_STG3{tag}")
        A("s_barrier")
        A.label(f"B_STG3{tag}")
    if OPT["prime2"]: dma_e(A, 1)
    for x in read_eidx(2): A(x)
    dma_x(A)
    A("s_waitcnt lgkmcnt(0)")
    if OPT["defer"] and fast: A(f"s_mov_b32 s{sDef}, 1")
    else: dma_e(A, 0)
    for m in chain(0, D[0]): A(m)
    A(f"s_cmp_eq_u32 s{sN}, 1")
    A(f"s_cbranch_scc0 B_W2P{tag}")
    load_w2(A, keep=True)
    A.label(f"B_W2P{tag}")
    if OPT["prio"]: A("s_setprio 2")
    A("s_nop 7")
    A("s_nop 3")
    if fast: A("STAMP 9"); A("CSTAMP 13")
    if fast:
        fast_loop(A)
        return
    A.label(f"B_LOOP{tag}")
    for par in (0, 1):
        tile_iter_safe(A, par)
        if par == 1:
            for r in (aX, aG, aO): A(f"v_add_u32 v{r}, {2*TB}, v{r}")
            for r in (aQ, aN): A(f"v_add_u32 v{r}, 64, v{r}")
        A(f"s_sub_u32 s{sN}, s{sN}, 1")
        A(f"s_cmp_eq_u32 s{sN}, 1")
        A(f"s_cbranch_scc0 B_W2{tag}{par}")
        load_w2(A, keep=True)
        A.label(f"B_W2{tag}{par}")
        A(f"s_cmp_eq_u32 s{sN}, 0")
        if par == 0: A(f"s_cbranch_scc1 B_LOOPEND")
        else: A(f"s_cbranch_scc0 B_LOOP{tag}")
    A("s_branch B_LOOPEND")

def sort_slots(A, body, groups, tag):
    for g in groups:
        for i in range(4):
            A(f"v_cmpx_lt_i32 vcc, {8*g+i}, v{vLim}")
            if i % 2 == 0: A(f"s_cbranch_execz {tag}")
            body(g, i)

def estream(A, first, n, vaddr):
    srd(A, SP, pE, N_EDGES * 32)
    A(f"s_mul_i32 s{sT}, s2, {CH * 32}")
    A(f"s_mul_i32 s{sT2}, s{sWave}, 10240")
    A(f"s_add_u32 s{sT}, s{sT}, s{sT2}")
    A(f"s_add_u32 s{sT}, s{sT}, {1024 * first}")
    A(f"v_lshlrev_b32 v{vaddr}, 4, v{vLane}")
    for j in range(n):
        A(f"buffer_load_dwordx4 v[{F64}:{F64+3}], v{vaddr}, s[{SP}:{SP+3}], s{sT} offen offset:{1024*j}")

sDef = 3; sFirst = 47; sES = 47; sQch = 28; sH = [29, 30]; SES = 4
def es_init(A):
    if not OPT["es2"]: return
    srd(A, SE, pE, N_EDGES * 32)
    A(f"s_mul_i32 s{sES}, s2, {CH * 32}")
    A(f"s_mul_i32 s{sT4}, s{sWave}, 10240")
    A(f"s_add_u32 s{sES}, s{sES}, s{sT4}")
    A(f"v_lshlrev_b32 v247, 4, v{vLane}")
def es(A, tag):
    if tag not in OPT["es2"]: return
    A(f"buffer_load_dwordx4 v[{F64}:{F64+3}], v247, s[{SRDE[0]}:{SRDE[0]+3}], s{sES} offen")
    A(f"s_add_u32 s{sES}, s{sES}, 1024")
SRDE = [SE]

def tr_addr(A, dst, base, rowbytes):
    A(f"v_lshrrev_b32 v{tmp}, 5, v{vLane}")
    A(f"v_bfe_u32 v{tmp2}, v{vLane}, 2, 2")
    A(f"v_lshl_add_u32 v{tmp}, v{tmp}, 3, v{tmp2}")
    A(f"v_mul_u32_u24 v{dst}, {rowbytes}, v{tmp}")
    A(f"v_bfe_u32 v{tmp}, v{vLane}, 4, 1")
    A(f"v_lshl_add_u32 v{dst}, v{tmp}, 5, v{dst}")
    A(f"v_and_b32 v{tmp}, 3, v{vLane}")
    A(f"v_lshl_add_u32 v{dst}, v{tmp}, 3, v{dst}")
    A(f"v_add_u32 v{dst}, {base}, v{dst}")

def lane_consts(A):
    A(f"""
v_add_u32 v{vN6}, s{sS6}, v{vLane}
v_and_b32 v{vN6}, 63, v{vN6}
v_lshlrev_b32 v{vN6}, 2, v{vN6}
v_and_b32 v119, 15, v{vLane}
v_lshlrev_b32 v119, 5, v119
v_add_u32 v119, {L_OHT - 1}, v119
v_lshlrev_b32 v{vOhp}, 16, v119
v_and_b32 v112, 31, v{vLane}
v_lshrrev_b32 v113, 5, v{vLane}
v_bfe_u32 v114, v{vLane}, 1, 3
v_lshlrev_b32 v115, 7, v112
v_add_u32 v115, s{sXB}, v115
""")
    for s in range(4):
        A(f"v_or_b32 v116, {2*s}, v113")
        A(f"v_xor_b32 v116, v116, v114")
        A(f"v_lshl_add_u32 v{xr[s]}, v116, 4, v115")
    A(f"""
v_lshlrev_b32 v{eAddr}, 4, v{vLane}
v_add_u32 v{eAddr}, s{sXB}, v{eAddr}
v_add_u32 v{eAddr}, 0x1000, v{eAddr}
v_mul_u32_u24 v{qbase}, {QSTR}, v112
v_lshl_add_u32 v{qbase}, v113, 4, v{qbase}
v_add_u32 v{qbase}, {L_QT}, v{qbase}
v_xor_b32 v{c1}, 1, v113
v_lshlrev_b32 v{c1}, 13, v{c1}
v_lshlrev_b32 v{lanecol}, 3, v112
v_lshlrev_b32 v{v16h}, 4, v113
v_and_b32 v116, 7, v{vLane}
v_lshrrev_b32 v117, 4, v{vLane}
v_xor_b32 v118, v116, v117
v_lshlrev_b32 v{xi[0]+1}, 4, v118
v_mov_b32 v{xi[2]+1}, v{xi[0]+1}
v_xor_b32 v118, 4, v118
v_lshlrev_b32 v{xi[1]+1}, 4, v118
v_mov_b32 v{xi[3]+1}, v{xi[1]+1}
v_lshlrev_b32 v{ei+1}, 4, v113
v_bfe_u32 v116, v{vLane}, 3, 1
v_bfe_u32 v117, v{vLane}, 4, 1
v_lshlrev_b32 v118, 4, v113
v_lshl_add_u32 v118, v116, 2, v118
v_add_u32 v118, v118, v117
v_lshlrev_b32 v{cX}, 3, v118
v_bfe_u32 v116, v{vLane}, 2, 1
v_lshlrev_b32 v118, 4, v116
v_bfe_u32 v116, v{vLane}, 4, 1
v_lshl_add_u32 v118, v116, 3, v118
v_and_b32 v116, 1, v{vLane}
v_lshl_add_u32 v118, v116, 2, v118
v_bfe_u32 v116, v{vLane}, 3, 1
v_lshl_add_u32 v118, v116, 1, v118
v_bfe_u32 v116, v{vLane}, 1, 1
v_add_u32 v118, v118, v116
v_lshlrev_b32 v{cO}, 3, v118
v_add_u32 v{cG}, 4, v{cO}
v_add_u32 v{cO}, 2, v{cO}
""")

def kernel():
    A = Asm(OPT["stamps"])
    A.label(KB)
    A(f"""
s_cmp_ge_u32 s2, {NB}
s_cbranch_scc1 B_END
STAMP 0
CSTAMP 11
s_load_dwordx16 s[48:63], s[0:1], 0
s_load_dwordx4 s[96:99], s[0:1], 64
s_load_dwordx2 s[100:101], s[0:1], 80
s_memrealtime s[{sEx2}:{sEx2+1}]
v_lshrrev_b32 v1, 6, v0
v_and_b32 v{vLane}, 63, v0
v_readfirstlane_b32 s{sWave}, v1
s_mul_i32 s{sStart}, s2, 625
s_add_u32 s{sT}, s{sStart}, {625 + 15}
s_add_u32 s{sStart}, s{sStart}, 15
s_lshr_b32 s{sStart}, s{sStart}, 4
s_lshr_b32 s{sT}, s{sT}, 4
s_sub_u32 s{sNn}, s{sT}, s{sStart}
s_and_b32 s{sS6}, s{sStart}, 63
s_mul_i32 s{sXB}, s{sWave}, {XBS}
s_add_u32 s{sXB}, s{sXB}, {L_XB0}
s_mov_b32 s{sMode}, 0
s_mov_b32 s{sR}, 32
s_mov_b32 s{sLo}, 0
s_mov_b32 s{sCnt}, 0x400000
v_mov_b32 v{vdeg}, 0
v_mov_b32 v{chk}, 0
v_mov_b32 v{chk+1}, 0
v_mov_b32 v40, 0
v_mov_b32 v41, 0
v_mov_b32 v42, 0
v_mov_b32 v43, 0
v_lshlrev_b32 v2, 4, v{vTID}
v_cmp_gt_u32 vcc, 64, v{vTID}
s_and_saveexec_b64 s[{sEx}:{sEx+1}], vcc
ds_write_b128 v2, v[40:43] offset:{L_HIST}
s_mov_b64 exec, s[{sEx}:{sEx+1}]
v_cmp_gt_u32 vcc, 0x88, v{vTID}
s_and_saveexec_b64 s[{sEx}:{sEx+1}], vcc
v_lshrrev_b32 v3, 3, v{vTID}
v_and_b32 v4, 7, v{vTID}
v_lshrrev_b32 v5, 1, v3
v_and_b32 v6, 1, v3
v_lshlrev_b32 v6, 4, v6
v_mov_b32 v7, {BF_ONE:#x}
v_lshlrev_b32 v7, v6, v7
v_cmp_eq_u32 vcc, v4, v5
v_lshlrev_b32 v8, 2, v{vTID}
v_cndmask_b32 v7, 0, v7, vcc
v_add_u32 v8, {L_OHT}, v8
ds_write_b32 v8, v7
s_mov_b64 exec, s[{sEx}:{sEx+1}]
v_cmp_gt_u32 vcc, 16, v{vTID}
s_and_saveexec_b64 s[{sEx}:{sEx+1}], vcc
ds_write_b128 v2, v[40:43] offset:{L_FLAG}
s_mov_b64 exec, s[{sEx}:{sEx+1}]
s_waitcnt lgkmcnt(0)
STAMP 1
""")
    A(f"""
s_cmp_lg_u32 s2, 0
s_cbranch_scc1 A_NONONCE
s_cmp_lg_u32 s{sWave}, 0
s_cbranch_scc1 A_NONONCE
s_and_b32 s{sEx2+1}, s{sEx2+1}, 0xff
s_or_b32 s{sEx2+1}, s{sEx2+1}, 0x80000000
v_mov_b32 v4, s{sEx2}
v_mov_b32 v5, s{sEx2+1}
v_mov_b32 v3, 0
s_mov_b64 exec, 1
global_store_dwordx2 v3, v[4:5], s[{pDbg}:{pDbg+1}] sc1
s_mov_b64 exec, -1
""")
    A.label("A_NONONCE")
    if OPT["touch"]:
        ptrs = [pW1, pX, pB1, pWs, pE, pW2, pOut, pB2]
        A("v_mov_b32 v3, 0")
        for w, p in enumerate(ptrs):
            A(f"s_cmp_lg_u32 s{sWave}, {w}")
            A(f"s_cbranch_scc1 A_T{w}")
            A(f"global_load_dword v{F64+5}, v3, s[{p}:{p+1}]")
            A.label(f"A_T{w}")
    srd(A, SO, pDst, N_EDGES * 4)
    srd(A, SP, pSrc, N_EDGES * 4)
    A(f"""
s_mul_i32 s{sT}, s2, {CH * 4}
v_add_u32 v3, 0x2000, v2
v_mov_b32 v4, 0x7ffffff0
v_cmp_gt_u32 vcc, {CH // 4 - 512}, v{vTID}
v_lshlrev_b32 v18, 2, v{vTID}
v_add_u32 v18, 0x2000, v18
v_cndmask_b32 v3, v4, v3, vcc
v_cmp_gt_u32 vcc, {CH - 2048}, v{vTID}
s_mov_b64 s[{sEx2}:{sEx2+1}], vcc
v_cndmask_b32 v18, v4, v18, vcc
buffer_load_dwordx4 v[40:43], v2, s[{SO}:{SO+3}], s{sT} offen
buffer_load_dwordx4 v[44:47], v2, s[{SP}:{SP+3}], s{sT} offen
buffer_load_dword v48, v18, s[{SO}:{SO+3}], s{sT} offen
buffer_load_dword v52, v18, s[{SP}:{SP+3}], s{sT} offen
""")
    srd(A, SO, pW1, 144 * 128 * 2)
    srd(A, SP, pX, N_NODES * 128)
    A(f"v_lshlrev_b32 v1, 4, v{vLane}")
    A(f"s_lshl_b32 s{sT2}, s{sWave}, 10")
    for j in range(5):
        A(f"s_add_u32 m0, s{sT2}, {L_WRAW + 8192*j}")
        A(f"s_add_u32 s{sT3}, s{sT2}, {8192*j}")
        A(f"buffer_load_dwordx4 v1, s[{SO}:{SO+3}], s{sT3} offen lds")
    A(f"""
s_lshl_b32 s{sT3}, s{sWave}, 3
v_lshrrev_b32 v5, 3, v{vLane}
v_add_u32 v5, s{sT3}, v5
v_bfe_u32 v6, v5, 1, 3
v_and_b32 v7, 7, v{vLane}
v_xor_b32 v6, v6, v7
v_add_u32 v5, s{sStart}, v5
v_lshlrev_b32 v5, 7, v5
v_lshl_add_u32 v5, v6, 4, v5
s_add_u32 m0, s{sT2}, {L_XROW}
s_and_b32 s{sT3}, s{sWave}, 3
buffer_load_dwordx4 v5, s[{SP}:{SP+3}], 0 offen lds
s_lshl_b32 s{sT3}, s{sT3}, 5
v_and_b32 v5, 31, v{vLane}
v_lshrrev_b32 v222, 5, v{vLane}
v_add_u32 v221, s{sT3}, v5
v_lshlrev_b32 v9, 1, v221
global_load_ushort v223, v9, s[{pB1}:{pB1+1}]
s_barrier
""")
    A(f"""
v_lshlrev_b32 v11, 16, v{vTID}
v_lshlrev_b32 v12, 14, v{vTID}
v_add_u32 v12, {2048 << 14:#x}, v12
s_mov_b32 s{sT2}, 429497
STAMP 2
s_waitcnt vmcnt(7)
STAMP 3
""")
    es_init(A)
    es(A, "a")
    def hist(base, dst, src, eid, n=4):
        for i in range(n): A(f"v_mul_u32_u24 v{base+i}, s{sT2}, v{dst+i}")
        for i in range(n): A(f"v_lshrrev_b32 v{base+i}, 22, v{base+i}")
        for i in range(n):
            A(f"v_and_b32 v{base+i}, 0x3fc, v{base+i}")
            A(f"ds_add_rtn_u32 v{base+8+i}, v{base+i}, v13 offset:{L_HIST}")
        for i in range(n):
            A(f"v_lshl_or_b32 v{dst+i}, v{dst+i}, 26, v{src+i}")
            A(f"v_add_u32 v{dst+i}, v{dst+i}, v{eid}")
            if i: A(f"v_add_u32 v{dst+i}, {i << 14:#x}, v{dst+i}")
    A("v_mov_b32 v13, 1")
    hist(56, 40, 44, 11)
    es(A, "b")
    A(f"s_mov_b64 exec, s[{sEx2}:{sEx2+1}]")
    hist(60, 48, 52, 12, 1)
    A("s_mov_b64 exec, -1")
    A.label("A_H1")
    A(f"""
s_waitcnt lgkmcnt(0)
s_barrier
v_lshlrev_b32 v14, 4, v{vLane}
ds_read_b128 v[72:75], v14 offset:{L_HIST}
v_mov_b32 v15, 0
s_cmp_lg_u32 s{sWave}, 0
s_cbranch_scc1 A_NOTAG0
global_load_dwordx2 v[16:17], v15, s[{pDbg}:{pDbg+1}] sc1
A_NOTAG0:
s_waitcnt lgkmcnt(0)
v_add_u32 v76, v72, v73
v_add_u32 v77, v76, v74
v_add_u32 v78, v77, v75
v_mov_b32 v79, v78
""")
    es(A, "c")
    wave_scan(A, 79)
    A(f"""
v_sub_u32 v80, v79, v78
v_add_u32 v81, v80, v72
v_add_u32 v82, v80, v76
v_add_u32 v83, v80, v77
ds_write_b128 v14, v[80:83] offset:{L_BASE}
s_waitcnt lgkmcnt(0)
""")
    for i in range(5): A(f"ds_read_b32 v{56+i}, v{56+i} offset:{L_BASE}")
    for i in range(4):
        A(f"s_waitcnt lgkmcnt({4-i})")
        A(f"v_add_lshl_u32 v{56+i}, v{56+i}, v{64+i}, 2")
        A(f"ds_write_b32 v{56+i}, v{40+i} offset:{L_SORT}")
    A(f"s_mov_b64 exec, s[{sEx2}:{sEx2+1}]")
    A("s_waitcnt lgkmcnt(4)")
    A(f"v_add_lshl_u32 v60, v60, v68, 2")
    A(f"ds_write_b32 v60, v48 offset:{L_SORT}")
    A("s_mov_b64 exec, -1")
    A.label("A_H2")
    srd(A, SW, pWs, WS_END)
    A(f"""
s_waitcnt lgkmcnt(0)
s_barrier
STAMP 4
ds_read_b128 v[40:43], v2 offset:{L_SORT}
ds_read_b128 v[44:47], v2 offset:{L_SORT + 8192}
s_mul_i32 s{sT}, s2, {CH * 4}
s_add_u32 s{sT}, s{sT}, {WS_REC}
s_waitcnt lgkmcnt(1)
buffer_store_dwordx4 v[40:43], v2, s[{SW}:{SW+3}], s{sT} offen sc1
s_waitcnt lgkmcnt(0)
buffer_store_dwordx4 v[44:47], v3, s[{SW}:{SW+3}], s{sT} offen sc1
""")
    A(f"""
s_cmp_lg_u32 s{sWave}, 0
s_cbranch_scc1 A_DRAIN
""")
    A.label("A_NONCE")
    A(f"""
s_waitcnt vmcnt(0)
v_readfirstlane_b32 s{sTagLo}, v16
v_readfirstlane_b32 s{sTagB}, v17
s_cmp_lt_i32 s{sTagB}, 0
s_cbranch_scc1 A_HAVETAG
A_NONCE2:
s_sub_u32 s{sCnt}, s{sCnt}, 1
s_cmp_eq_u32 s{sCnt}, 0
s_cbranch_scc1 B_END
s_sleep 1
global_load_dwordx2 v[16:17], v15, s[{pDbg}:{pDbg+1}] sc1
s_waitcnt vmcnt(0)
v_readfirstlane_b32 s{sTagLo}, v16
v_readfirstlane_b32 s{sTagB}, v17
s_cmp_lt_i32 s{sTagB}, 0
s_cbranch_scc0 A_NONCE2
""")
    A.label("A_HAVETAG")
    A(f"""
v_and_b32 v17, 0xff, v17
v_mov_b32 v15, {L_FLAG}
ds_write_b64 v15, v[16:17] offset:16
s_and_b32 s{sTagB}, s{sTagB}, 0xff
""")
    A.label("A_DRAIN")
    A(f"""
s_waitcnt vmcnt(0) lgkmcnt(0)
s_barrier
s_cmp_lg_u32 s{sWave}, 0
s_cbranch_scc1 A_PUBLISHED
s_lshl_b32 s{sT}, s{sTagB}, 24
v_mov_b32 v41, s{sTagLo}
v_mov_b32 v43, s{sTagLo}
v_mov_b32 v45, s{sTagLo}
v_mov_b32 v47, s{sTagLo}
v_lshl_or_b32 v40, v72, 12, v80
v_lshl_or_b32 v42, v73, 12, v81
v_lshl_or_b32 v44, v74, 12, v82
v_lshl_or_b32 v46, v75, 12, v83
v_or_b32 v40, s{sT}, v40
v_or_b32 v42, s{sT}, v42
v_or_b32 v44, s{sT}, v44
v_or_b32 v46, s{sT}, v46
v_lshlrev_b32 v14, 5, v{vLane}
s_lshl_b32 s{sT}, s2, 11
s_add_u32 s{sT}, s{sT}, {WS_TBL}
buffer_store_dwordx4 v[40:43], v14, s[{SW}:{SW+3}], s{sT} offen sc1
buffer_store_dwordx4 v[44:47], v14, s[{SW}:{SW+3}], s{sT} offen offset:16 sc1
""")
    A.label("A_PUBLISHED")
    A("STAMP 5")
    A(f"v_mov_b32 v15, {L_FLAG}")
    A("ds_read_b64 v[16:17], v15 offset:16")
    A(f"""
v_lshrrev_b32 v4, 1, v{vTID}
v_mul_u32_u24 v{vC25}, {CH}, v4
v_lshlrev_b32 v4, 11, v4
s_waitcnt lgkmcnt(0)
v_readfirstlane_b32 s{sTagLo}, v16
v_readfirstlane_b32 s{sTagB}, v17
""")
    A(f"""
s_lshr_b32 s{sT}, s{sWave}, 2
s_lshl_b32 s{sT}, s{sT}, 12
s_add_u32 s{sT}, s{sT}, {L_XROW}
v_and_b32 v216, 31, v{vLane}
v_bfe_u32 v217, v{vLane}, 1, 3
v_lshlrev_b32 v216, 7, v216
v_add_u32 v216, s{sT}, v216
""")
    for s_ in range(4):
        A(f"v_or_b32 v218, {2*s_}, v222")
        A(f"v_xor_b32 v218, v218, v217")
        A(f"v_lshl_add_u32 v218, v218, 4, v216")
        A(f"ds_read_b128 v[{X+4*s_}:{X+4*s_+3}], v218")
    tr_addr(A, 216, L_WRAW, 256)
    A(f"""
s_lshr_b32 s{sT}, s{sWave}, 2
s_lshl_b32 s{sT}, s{sT}, 12
s_and_b32 s{sT2}, s{sWave}, 3
s_lshl_b32 s{sT2}, s{sT2}, 6
s_add_u32 s{sT}, s{sT}, s{sT2}
v_add_u32 v217, s{sT}, v216
v_add_u32 v218, s{sT2}, v216
""")
    WC = 112
    for j, (reg, off) in enumerate(((217, 0), (217, 32 * 256), (218, 128 * 256))):
        A(f"ds_read_b64_tr_b16 v[{WC+4*j}:{WC+1+4*j}], v{reg} offset:{off}")
        A(f"ds_read_b64_tr_b16 v[{WC+2+4*j}:{WC+3+4*j}], v{reg} offset:{off + 1024}")
    for s_ in range(4):
        A(f"ds_read_b64_tr_b16 v[{D[0]+4*s_}:{D[0]+4*s_+1}], v218 offset:{(64 + 16*s_) * 256}")
        A(f"ds_read_b64_tr_b16 v[{D[0]+4*s_+2}:{D[0]+4*s_+3}], v218 offset:{(64 + 16*s_) * 256 + 1024}")
    A(f"s_mov_b32 s{sT3}, {f2u(SCALE):#x}")
    A("s_waitcnt lgkmcnt(8)")
    for j in range(12):
        A(f"v_lshlrev_b32 v219, 16, v{WC+j}")
        A(f"v_and_b32 v220, 0xffff0000, v{WC+j}")
        A(f"v_mul_f32 v219, s{sT3}, v219")
        A(f"v_mul_f32 v220, s{sT3}, v220")
        A(f"v_cvt_pk_bf16_f32 v{WC+j}, v219, v220")
    A(f"""
v_lshlrev_b32 v219, 4, v{vLane}
s_lshl_b32 s{sT}, s{sWave}, 10
s_add_u32 s{sT}, s{sT}, {L_WST}
v_add_u32 v219, s{sT}, v219
""")
    A(f"ds_write_b128 v219, v[{WC}:{WC+3}]")
    A(f"ds_write_b128 v219, v[{WC+4}:{WC+7}] offset:8192")
    A("s_waitcnt lgkmcnt(2)")
    for s_ in range(4):
        A(f"v_mfma_f32_32x32x16_bf16 v[{D[1]}:{D[1]+15}], v[{X+4*s_}:{X+4*s_+3}], v[{D[0]+4*s_}:{D[0]+4*s_+3}], {'0' if s_ == 0 else f'v[{D[1]}:{D[1]+15}]'}")
    A(f"s_cmp_ge_u32 s{sWave}, 4")
    A("s_cbranch_scc1 B_NOWC")
    A(f"ds_write_b128 v219, v[{WC+8}:{WC+11}] offset:16384")
    A.label("B_NOWC")
    A(f"""
v_lshlrev_b32 v223, 16, v223
v_mul_f32 v223, s{sT3}, v223
v_mul_u32_u24 v224, {QSTR}, v221
s_lshr_b32 s{sT}, s{sWave}, 2
s_lshl_b32 s{sT}, s{sT}, 6
v_lshl_add_u32 v224, v222, 3, v224
v_add_u32 v224, s{sT}, v224
""")
    for j in range(16): A(f"v_fma_f32 v{D[1]+j}, v{D[1]+j}, s{sT3}, v223")
    for g in range(4):
        A(f"v_cvt_pk_bf16_f32 v{X+2*g}, v{D[1]+4*g}, v{D[1]+4*g+1}")
        A(f"v_cvt_pk_bf16_f32 v{X+2*g+1}, v{D[1]+4*g+2}, v{D[1]+4*g+3}")
    for g in range(2):
        A(f"ds_write_b64 v224, v[{X+2*g}:{X+2*g+1}] offset:{L_QT + 16*g}")
    A(f"s_cmp_ge_u32 s{sWave}, 4")
    A(f"s_cbranch_scc1 B_QDONE")
    for g in range(2, 4):
        A(f"ds_write_b64 v224, v[{X+2*g}:{X+2*g+1}] offset:{L_QT + 16*g}")
    A.label("B_QDONE")
    fill_lists(A)
    zero_s(A)
    if OPT["lcearly"]:
        srd(A, SX, pX, N_NODES, stride=128)
        srd(A, SE, pE, N_EDGES, stride=32)
        lane_consts(A)
    A(f"""
s_waitcnt lgkmcnt(0)
s_barrier
s_lshl_b32 s{sT}, s2, 3
s_add_u32 s{sT}, s{sT}, {WS_TBL}
s_mov_b32 s{sCnt}, 0x400000
s_mov_b32 s{sFirst}, 1
STAMP 6
""")
    A.label("B_POLL")
    A(f"""
buffer_load_dwordx2 v[{vTbl}:{vTbl+1}], v4, s[{SW}:{SW+3}], s{sT} offen sc1
s_waitcnt vmcnt(0)
v_lshrrev_b32 v5, 24, v{vTbl}
v_cmp_ne_u32 vcc, s{sTagLo}, v{vTbl+1}
v_cmp_ne_u32 s[{sEx}:{sEx+1}], s{sTagB}, v5
s_or_b64 vcc, vcc, s[{sEx}:{sEx+1}]
s_and_b64 exec, exec, vcc
s_cbranch_execz B_POLLED
s_sub_u32 s{sCnt}, s{sCnt}, 1
s_cmp_eq_u32 s{sCnt}, 0
s_cbranch_scc1 B_END
s_sleep {OPT["psleep"]}
s_branch B_POLL
""")
    A.label("B_POLLED")
    A("s_mov_b64 exec, -1")
    A("STAMP 7")
    A.label("B_ROUND")
    A(f"""
v_bfe_u32 v{vLim}, v{vTbl}, 12, 12
v_mov_b32 v245, v{vLim}
v_subrev_u32 v{vLim}, s{sLo}, v{vLim}
v_min_i32 v{vLim}, s{sR}, v{vLim}
v_and_b32 v{vT}, 1, v{vTID}
v_lshlrev_b32 v{vT}, 2, v{vT}
v_sub_u32 v{vLim}, v{vLim}, v{vT}
v_and_b32 v{tmp}, 0xfff, v{vTbl}
v_add3_u32 v{tmp}, v{tmp}, v{vC25}, v{vT}
v_add_u32 v{tmp}, s{sLo}, v{tmp}
v_lshlrev_b32 v{tmp}, 2, v{tmp}
v_mov_b32 v{tmp2+1}, 0x7ffffff0
s_mov_b32 s{sT}, {WS_REC}
""")
    for g in range(4):
        A(f"v_cmp_lt_i32 vcc, {8*g}, v{vLim}")
        A(f"v_cndmask_b32 v{tmp2}, v{tmp2+1}, v{tmp}, vcc")
        A(f"buffer_load_dwordx4 v[{R+4*g}:{R+4*g+3}], v{tmp2}, s[{SW}:{SW+3}], s{sT} offen offset:{32*g} sc1")
    A(f"s_cmp_eq_u32 s{sFirst}, 0")
    A("s_cbranch_scc1 B_NOTFIRST")
    if not OPT["lcearly"]:
        srd(A, SX, pX, N_NODES, stride=128)
        srd(A, SE, pE, N_EDGES, stride=32)
        lane_consts(A)
    A(f"""
v_lshlrev_b32 v1, 4, v{vLane}
v_add_u32 v1, {L_WST}, v1
""")
    for u in range(16): A(f"ds_read_b128 v[{W+4*u}:{W+4*u+3}], v1 offset:{1024*u}")
    for c in range(4): A(f"ds_read_b128 v[{We+4*c}:{We+4*c+3}], v1 offset:{1024*(16+c)}")
    A(f"s_mov_b32 s{sFirst}, 0")
    A("s_branch B_COUNT")
    A.label("B_NOTFIRST")
    A("s_waitcnt lgkmcnt(0)")
    A("s_barrier")
    A.label("B_COUNT")
    A(f"""
v_mov_b32 v246, {L_FLAG}
ds_max_u32 v246, v245
v_mov_b32 v{vT}, 1
""")
    for j in range(16): A(f"v_mov_b32 v{A4+j}, 0")
    A("s_waitcnt vmcnt(0)")
    def count_body(g, i):
        j = 4 * g + i
        A(f"v_lshrrev_b32 v{A4+j}, 24, v{R+j}")
        A(f"v_and_b32 v{A4+j}, 0xfc, v{A4+j}")
        A(f"ds_add_rtn_u32 v{RK+j}, v{A4+j}, v{vT} offset:{L_CNT}")
    sort_slots(A, count_body, range(4), "B_COUNTED")
    A.label("B_COUNTED")
    A("s_mov_b64 exec, -1")
    es(A, "i")
    A(f"""
s_mov_b64 exec, -1
s_waitcnt lgkmcnt(0)
s_barrier
STAMP 8
""")
    A(f"""
v_mov_b32 v{tmp2}, 0
ds_read_b32 v{tmp}, v{vN6} offset:{L_CNT}
ds_read_b32 v{tmp2}, v{tmp2} offset:{L_FLAG}
v_cmp_gt_u32 vcc, s{sNn}, v{vLane}
s_waitcnt lgkmcnt(0)
v_readfirstlane_b32 s{sMax}, v{tmp2}
v_add_u32 v{NT}, 3, v{tmp}
v_lshrrev_b32 v{NT}, 2, v{NT}
v_max_u32 v{NT}, 1, v{NT}
v_cndmask_b32 v{NT}, 0, v{NT}, vcc
v_mov_b32 v{NT+1}, v{NT}
""")
    wave_scan(A, NT + 1)
    es(A, "j")
    A(f"""
v_readlane_b32 s{sTot}, v{NT+1}, 63
v_sub_u32 v{NT+4}, v{NT+1}, v{NT}
v_lshlrev_b32 v{NT+4}, 2, v{NT+4}
v_mov_b32 v{NT+5}, v{vOhp}
v_lshlrev_b32 v{NT+6}, 10, v{vLane}
s_cmp_gt_u32 s{sTot}, {CAPQ}
s_cbranch_scc1 B_OVERFLOW
s_and_saveexec_b64 s[{sEx}:{sEx+1}], vcc
v_add_u32 v{vdeg}, v{vdeg}, v{tmp}
v_lshlrev_b32 v{tmp}, 1, v{vN6}
ds_write_b64 v{tmp}, v[{NT+4}:{NT+5}] offset:{L_NTAB}
s_mov_b64 exec, s[{sEx}:{sEx+1}]
v_mov_b32 v{tmp}, s{sWave}
v_lshl_add_u32 v{tmp2}, v{tmp}, 2, v{NT+4}
B_QFILL:
v_cmpx_lt_u32 vcc, v{tmp}, v{NT}
s_cbranch_execz B_QFILLED
ds_write_b32 v{tmp2}, v{NT+6} offset:{L_QADDR}
v_add_u32 v{tmp}, 8, v{tmp}
v_add_u32 v{tmp2}, 32, v{tmp2}
s_branch B_QFILL
B_QFILLED:
s_mov_b64 exec, -1
v_mov_b32 v{vT}, {L_LIST}
s_mov_b32 s{sT4}, 0x3fff
s_waitcnt lgkmcnt(0)
""")
    def scatter_batch(groups, tag):
        for n, g in enumerate(groups):
            for i in range(4):
                j = 4 * g + i; t = NT + 8 + 4 * (4 * n + i)
                A(f"v_lshlrev_b32 v{tmp}, 1, v{A4+j}")
                A(f"ds_read_b64 v[{t}:{t+1}], v{tmp} offset:{L_NTAB}")
        A("s_waitcnt lgkmcnt(0)")
        def body(g, i):
            j = 4 * g + i; t = NT + 8 + 4 * (4 * groups.index(g) + i)
            A(f"v_add_u32 v{t}, v{t}, v{RK+j}")
            A(f"v_and_or_b32 v{t+2}, v{R+j}, s{sT4}, v{t+1}")
            A(f"v_bfe_u32 v{t+3}, v{R+j}, 14, 12")
            A(f"v_lshl_add_u32 v{t}, v{t}, 3, v{vT}")
            A(f"v_add_u32 v{t+3}, v{vC25}, v{t+3}")
            A(f"ds_write_b64 v{t}, v[{t+2}:{t+3}]")
        sort_slots(A, body, groups, tag)
    scatter_batch([0, 1], "B_SC1")
    A.label("B_SC1")
    A(f"""
s_mov_b64 exec, -1
v_cmp_lt_i32 vcc, 16, v{vLim}
s_cbranch_vccz B_SC3
""")
    scatter_batch([2], "B_SC2")
    A.label("B_SC2")
    A(f"""
s_mov_b64 exec, -1
v_cmp_lt_i32 vcc, 24, v{vLim}
s_cbranch_vccz B_SC3
""")
    scatter_batch([3], "B_SC3")
    A.label("B_SC3")
    A("s_mov_b64 exec, -1")
    A(f"""
s_add_u32 s{sT}, s{sTot}, 7
s_lshr_b32 s{sT}, s{sT}, 3
s_lshr_b32 s{sT2}, s{sT}, 3
s_and_b32 s{sT3}, s{sT}, 7
s_mul_i32 s{sT0}, s{sT2}, s{sWave}
s_min_u32 s{sN}, s{sWave}, s{sT3}
s_add_u32 s{sT0}, s{sT0}, s{sN}
s_cmp_lt_u32 s{sWave}, s{sT3}
s_cselect_b32 s{sN}, 1, 0
s_add_u32 s{sN}, s{sN}, s{sT2}
""")
    if OPT["skew"]:
        k = OPT["skew"]
        A(f"""
s_cmp_lt_u32 s{sT2}, {2*k + 1}
s_cbranch_scc1 B_NOSKEW
s_min_u32 s{sT3}, s{sWave}, 4
s_sub_u32 s{sT4}, s{sWave}, s{sT3}
s_sub_u32 s{sT3}, s{sT3}, s{sT4}
s_mul_i32 s{sT3}, s{sT3}, {k}
s_add_u32 s{sT0}, s{sT0}, s{sT3}
s_cmp_lt_u32 s{sWave}, 4
s_cselect_b32 s{sT3}, {k}, {-k & 0xffffffff}
s_add_u32 s{sN}, s{sN}, s{sT3}
B_NOSKEW:
""")
    A(f"""
s_mul_i32 s{sT}, s{sT0}, {TB}
s_add_u32 s{sT}, s{sT}, {L_LIST}
v_add_u32 v{aX}, s{sT}, v{cX}
v_add_u32 v{aG}, s{sT}, v{cG}
v_add_u32 v{aO}, s{sT}, v{cO}
s_lshl_b32 s{sT}, s{sT0}, 5
s_add_u32 s{sT}, s{sT}, {L_QADDR}
v_mov_b32 v{aN}, s{sT}
v_add_u32 v{aQ}, s{sT}, v{v16h}
s_waitcnt lgkmcnt(0)
s_barrier
""")
    for _ in range(OPT["diagsleep"]): A("s_sleep 36")
    A(f"""
STAMP 12
s_cmp_eq_u32 s{sN}, 0
s_cbranch_scc1 B_NOTILES
s_cmp_lg_u32 s{sMode}, 0
s_cbranch_scc1 B_SAFE
""")
    main_loop(A, True)
    A.label("B_SAFE")
    main_loop(A, False)
    A.label("B_NOTILES")
    load_w2(A)
    if OPT["stagger"]: A("s_barrier")
    if OPT["stagger"] == 2: A("s_barrier")
    A.label("B_LOOPEND")
    A(f"""
s_setprio 0
STAMP 10
CSTAMP 14
s_waitcnt vmcnt(0)
""")
    A(f"""
v_lshrrev_b32 v3, 5, v{vLane}
s_and_b32 s{sT}, s{sWave}, 1
s_lshl_b32 s{sT}, s{sT}, 6
v_lshlrev_b32 v4, 3, v3
v_add_u32 v4, s{sT}, v4
""")
    A(f"""
s_waitcnt vmcnt(0) lgkmcnt(0)
s_barrier
s_add_u32 s{sLo}, s{sLo}, s{sR}
s_cmp_ge_u32 s{sLo}, s{sMax}
s_cbranch_scc1 B_FINISH
""")
    fill_lists(A)
    A("s_branch B_ROUND")
    A.label("B_OVERFLOW")
    A(f"s_mov_b32 s{sR}, 8")
    A.label("B_RESTART")
    A(f"""
s_barrier
s_mov_b32 s{sLo}, 0
v_mov_b32 v{vdeg}, 0
v_mov_b32 v{chk}, 0
v_mov_b32 v{chk+1}, 0
""")
    fill_lists(A)
    zero_s(A)
    A("s_branch B_ROUND")
    A.label("B_FINISH")
    SB = L_LIST
    wf = lambda s_: (216 + 4 * s_) if s_ < 6 else (120 + 4 * (s_ - 6))
    BU = E
    A(f"""
v_lshlrev_b32 v{tmp}, 4, v{vTID}
""")
    for j in range(5):
        A(f"ds_read_b128 v[{E+4*j}:{E+4*j+3}], v{tmp} offset:{L_S + 8192*j}")
    tr_addr(A, 11, L_W2, 128)
    A(f"s_and_b32 s{sT}, s{sWave}, 1")
    A(f"s_lshl_b32 s{sT}, s{sT}, 6")
    A(f"v_add_u32 v11, s{sT}, v11")
    A(f"""
v_mov_b32 v5, 0x71800000
v_cmp_nlt_f32 vcc, v{chk}, v5
v_cmp_nlt_f32 s[{sEx}:{sEx+1}], v{chk+1}, v5
s_or_b64 vcc, vcc, s[{sEx}:{sEx+1}]
v_lshlrev_b32 v6, 2, v{vLane}
ds_write_b32 v6, v{vdeg} offset:{L_DEG}
""")
    for s_ in range(4):
        A(f"ds_read_b64_tr_b16 v[{wf(s_)}:{wf(s_)+1}], v11 offset:{2048*s_}")
        A(f"ds_read_b64_tr_b16 v[{wf(s_)+2}:{wf(s_)+3}], v11 offset:{2048*s_ + 512}")
    A(f"""
v_lshrrev_b32 v7, 6, v{vTID}
v_mul_u32_u24 v7, {SBSTR}, v7
v_and_b32 v8, 63, v{vTID}
v_lshl_add_u32 v7, v8, 2, v7
v_add_u32 v7, {SB}, v7
v_mov_b32 v9, {f2u(1.0 / SCALE):#x}
v_mov_b32 v10, 0
s_waitcnt lgkmcnt(9)
""")
    for j in range(10): A(f"v_cvt_f32_f64 v{D[1]+j}, v[{E+2*j}:{E+2*j+1}]")
    for s_ in range(4, 8):
        A(f"ds_read_b64_tr_b16 v[{wf(s_)}:{wf(s_)+1}], v11 offset:{2048*s_}")
        A(f"ds_read_b64_tr_b16 v[{wf(s_)+2}:{wf(s_)+3}], v11 offset:{2048*s_ + 512}")
    for j in range(10): A(f"v_mul_f32 v{D[1]+j}, v9, v{D[1]+j}")
    for j in range(5):
        A(f"v_cvt_pk_bf16_f32 v{E+j}, v{D[1]+2*j}, v{D[1]+2*j+1}")
        A(f"ds_write_b32 v7, v{E+j} offset:{8*SBSTR*j}")
    for j in range(10): A(f"v_fmac_f32 v10, 0, v{D[1]+j}")
    A(f"v_cmp_u_f32 s[{sEx}:{sEx+1}], v10, v10")
    A(f"s_or_b64 vcc, vcc, s[{sEx}:{sEx+1}]")
    A(f"""
s_cmp_eq_u64 vcc, 0
s_cbranch_scc1 B_NOFLAG
v_mov_b32 v5, {L_FLAG}
v_mov_b32 v6, 1
ds_write_b32 v5, v6 offset:4
""")
    A.label("B_NOFLAG")
    A(f"""
s_lshr_b32 s{sT}, s{sWave}, 1
s_lshl_b32 s{sT}, s{sT}, 5
v_and_b32 v2, 31, v{vLane}
v_add_u32 v2, s{sT}, v2
v_mul_u32_u24 v5, {SBSTR}, v2
v_lshl_add_u32 v5, v3, 4, v5
v_add_u32 v5, {SB}, v5
v_lshlrev_b32 v6, 2, v2
v_add_u32 v8, s{sStart}, v2
v_lshlrev_b32 v8, 7, v8
v_add_u32 v8, v8, v4
v_mov_b32 v9, {L_FLAG}
""")
    B2 = vB2
    for g in range(4):
        A(f"v_lshlrev_b32 v{BU+4*g}, 16, v{B2+2*g}")
        A(f"v_and_b32 v{BU+4*g+1}, 0xffff0000, v{B2+2*g}")
        A(f"v_lshlrev_b32 v{BU+4*g+2}, 16, v{B2+2*g+1}")
        A(f"v_and_b32 v{BU+4*g+3}, 0xffff0000, v{B2+2*g+1}")
    srd(A, SO, pOut, N_NODES * 128)
    A(f"""
s_waitcnt lgkmcnt(0)
s_barrier
ds_read_b32 v10, v9 offset:4
ds_read_b32 v7, v6 offset:{L_DEG}
""")
    for s_ in range(8):
        A(f"ds_read_b128 v[{X+4*s_}:{X+4*s_+3}], v5 offset:{32*s_}")
    A(f"""
s_waitcnt lgkmcnt(9)
v_readfirstlane_b32 s{sT}, v10
s_cmp_lg_u32 s{sMode}, 0
s_cbranch_scc1 B_OUT
s_cmp_eq_u32 s{sT}, 0
s_cbranch_scc1 B_OUT
s_mov_b32 s{sMode}, 1
s_waitcnt lgkmcnt(0)
""")
    lane_consts(A)
    A("s_branch B_RESTART")
    A.label("B_OUT")
    A(f"""
s_cmp_ge_u32 s{sWave}, 4
s_cbranch_scc1 {"B_FLUSH" if OPT["stamps"] else "B_END"}
""")
    d = D[0]
    for s_ in range(8):
        A(f"s_waitcnt lgkmcnt({7 - s_})")
        A(f"v_mfma_f32_32x32x16_bf16 v[{d}:{d+15}], v[{wf(s_)}:{wf(s_)+3}], v[{X+4*s_}:{X+4*s_+3}], {'0' if s_ == 0 else f'v[{d}:{d+15}]'}")
    A(f"""
v_cvt_f32_u32 v7, v7
v_cmp_gt_u32 vcc, s{sNn}, v2
""")
    for j in range(16):
        A(f"v_fma_f32 v{d+j}, v7, v{BU+j}, v{d+j}")
    A(f"s_and_saveexec_b64 s[{sEx}:{sEx+1}], vcc")
    for g in range(4):
        A(f"v_cvt_pk_bf16_f32 v{D[1]+2*g}, v{d+4*g}, v{d+4*g+1}")
        A(f"v_cvt_pk_bf16_f32 v{D[1]+2*g+1}, v{d+4*g+2}, v{d+4*g+3}")
        A(f"buffer_store_dwordx2 v[{D[1]+2*g}:{D[1]+2*g+1}], v8, s[{SO}:{SO+3}], 0 offen offset:{16*g}")
    if OPT["stamps"]:
        A.label("B_FLUSH")
        A("s_waitcnt vmcnt(0)")
        A("STAMP 12" if False else "STAMP 15")
        stamp_flush(A, 16)
    A.label("B_END")
    A("s_endpgm")
    A.pad()
    bad = A.check_loop("B_LOOPS", "s_cbranch_scc0 B_LOOPS")
    assert not bad, bad
    return A

def main(path):
    k = kernel()
    hdr = open("cdna_kernels/" + NAME + ".s.ref").read().split("; Override launch geometry")[0]
    s = hdr
    s += "; One workgroup per CU: workgroup c sorts edge chunk c by destination bucket, then processes bucket c.\n"
    s += f"; @launch grid=({NB},1,1) block=(512,1,1) lds={LDS_B}\n"
    s += '.amdgcn_target "amdgcn-amd-amdhsa--gfx950"\n.text\n'
    s += f".globl {KB}\n.p2align 8\n.type {KB},@function\n" + k.text()
    acc = (NVGPR + 3) // 4 * 4
    s += f""".section .rodata,"a"
.p2align 6
.amdhsa_kernel {KB}
  .amdhsa_next_free_vgpr {NVGPR}
  .amdhsa_next_free_sgpr 102
  .amdhsa_accum_offset {acc}
  .amdhsa_group_segment_fixed_size 0
  .amdhsa_kernarg_size 88
  .amdhsa_user_sgpr_count 2
  .amdhsa_user_sgpr_kernarg_segment_ptr 1
  .amdhsa_system_sgpr_workgroup_id_x 1
.end_amdhsa_kernel
"""
    open(path, "w").write(s)

if __name__ == "__main__":
    main(OPT["out"] or "cdna_kernels/" + NAME + ".s")
```

```python
import sys, struct
from asmlib import Asm

NAME = "gather_scatter__edge_featured_mpnn_mpnn__graph"
KB = NAME + "_kernel"
N_NODES = 10000; N_EDGES = 640000; NB = 256; CH = 2500
WS_TBL = 0; WS_REC = NB * NB * 8; WS_END = WS_REC + N_EDGES * 4 + 4096
BF_ONE = 0x3F80
SCALE = -1.4426950408889634
def f2u(x): return struct.unpack("<I", struct.pack("<f", x))[0]

OPT = dict(prio=True, stamps=False, noadd=False, nodma=False, nomfma=False, novalu=False, xwarm=False, ewarm=False, psched=((2, 1), (1, 0)), estream=0, es=(4, 3, 3), touch=False, ppoll=False, wearly=False, predelay=0, w0=True, diagsleep=0, lcearly=False, psleep=2, qskip=False, recpol=' sc1', fflush=True, prioflip=False, defer=False, layout='', skew=1, es2='', stagger=1, seqform=True, dmaspread=True, late=False, prime2=True, out=None)
for a in sys.argv[1:]:
    if "=" in a:
        k, v = a.split("=", 1); OPT[k] = eval(v)

L_S = 0; L_CNT = 40960; L_NTAB = 41216; L_DEG = 42240; L_FLAG = 42496; L_QT = 42752
L_QADDR = 57088; L_QEND = 60416; L_OHT = 65024; L_OHZ = 65536; L_XB0 = 65792; XBS = 6144
L_LIST = L_XB0 + 8 * XBS; LIST_BYTES = 25600; L_Z = L_LIST + LIST_BYTES; LDS_B = L_Z + 20480
L_HIST = 0; L_BASE = 1024; L_SORT = 2048; L_WRAW = L_XB0; L_XROW = L_XB0 + 40960; L_WST = L_Z
L_W2 = L_Z
QSTR = 112; CAPQ = 768; SBSTR = 272
TB = 256

vTID = 0
aX, aG, aO, aQ, aN = 1, 2, 3, 4, 5
xr = [6, 7, 8, 9]; eAddr = 10; vQ = 11; qbase = 12; c1 = 13; lanecol = 14; ohaddr = 15
xi = [16, 18, 20, 22]; ei = 24; node0 = 26; tmp = 27; chk = 28; tmp2 = 30
qa = [32, 36]
E = 40; D = [56, 72]; X = 88; Ea = 104; OH = 108; Qx = 112; We = 128; W = 144
vTbl = 208; vdeg = 210; vLane = 211; vN6 = 212; vOhp = 213; vC25 = 214; vLim = 215
TU = [216, 224]; F64 = 232; vT = 240; v16h = 241
cX, cG, cO = 242, 243, 244
vB2 = 248
NVGPR = 256
R = 40; RK = 56; A4 = 72; NT = 88

SX = 4; SE = 8; SW = 12; SO = 16; SP = 20
sEx = 24; sEx2 = 26; sT = 28; sT2 = 29; sT3 = 30; sT4 = 31
sWave = 32; sStart = 33; sNn = 34; sS6 = 35; sXB = 36; sN = 37; sT0 = 38; sMode = 39
sR = 40; sLo = 41; sMax = 42; sTagLo = 43; sTot = 44; sTagB = 45; sCnt = 46
pX, pE, pSrc, pDst, pW1, pB1, pW2, pB2 = 48, 50, 52, 54, 56, 58, 60, 62
pOut, pDbg, pWs = 96, 98, 100
WS_STAMP = 8 << 20

def srd(A, d, base, size, stride=0):
    A(f"s_mov_b32 s{d}, s{base}")
    A(f"s_and_b32 s{d+1}, s{base+1}, 0xffff")
    if stride: A(f"s_or_b32 s{d+1}, s{d+1}, {stride << 16:#x}")
    A(f"s_mov_b32 s{d+2}, {size}")
    A(f"s_mov_b32 s{d+3}, 0x20000")

def stamp_flush(A, n):
    if not OPT["stamps"]: return
    A("s_waitcnt vmcnt(0) lgkmcnt(0)")
    A("s_mov_b64 exec, -1")
    A(f"s_lshl_b32 s{sT}, s2, 4")
    A(f"s_add_u32 s{sT}, s{sT}, s{sWave}")
    A(f"s_lshl_b32 s{sT}, s{sT}, 6")
    A(f"s_add_u32 s{sT}, s{sT}, {WS_STAMP}")
    A(f"s_add_u32 s{sEx}, s{pWs}, s{sT}")
    A(f"s_addc_u32 s{sEx+1}, s{pWs+1}, 0")
    A("v_mov_b32 v1, 0")
    for i in range(n):
        A(f"v_mov_b32 v2, s{64+2*i}")
        A(f"global_store_dword v1, v2, s[{sEx}:{sEx+1}] offset:{4*i}")
    A("s_waitcnt vmcnt(0)")

def wave_scan(A, v):
    for sh in (1, 2, 4, 8):
        A(f"v_add_u32_dpp v{v}, v{v}, v{v} row_shr:{sh} row_mask:0xf bank_mask:0xf")
    A(f"v_add_u32_dpp v{v}, v{v}, v{v} row_bcast:15 row_mask:0xa bank_mask:0xf")
    A(f"v_add_u32_dpp v{v}, v{v}, v{v} row_bcast:31 row_mask:0xc bank_mask:0xf")

def fill_lists(A):
    A(f"v_lshlrev_b32 v{tmp}, 4, v{vTID}")
    A(f"v_add_u32 v{tmp2}, {L_LIST}, v{tmp}")
    for i in range(4): A(f"v_mov_b32 v{E+i}, -1")
    for i in range(4): A(f"v_mov_b32 v{E+4+i}, 0")
    for j in range(3):
        A(f"ds_write_b128 v{tmp2}, v[{E}:{E+3}] offset:{8192*j}")
    A(f"v_cmp_gt_u32 vcc, {(L_QEND - L_QADDR) // 16}, v{vTID}")
    A(f"s_and_saveexec_b64 s[{sEx}:{sEx+1}], vcc")
    A(f"ds_write_b128 v{tmp}, v[{E+4}:{E+7}] offset:{L_QADDR}")
    A(f"v_cmp_gt_u32 vcc, {(LIST_BYTES - 3 * 8192) // 16}, v{vTID}")
    A(f"s_and_b64 exec, exec, vcc")
    A(f"ds_write_b128 v{tmp2}, v[{E}:{E+3}] offset:{8192*3}")
    A(f"v_cmp_gt_u32 vcc, 16, v{vTID}")
    A(f"s_and_b64 exec, exec, vcc")
    A(f"ds_write_b128 v{tmp}, v[{E+4}:{E+7}] offset:{L_CNT}")
    A(f"s_mov_b64 exec, s[{sEx}:{sEx+1}]")

def zero_s(A):
    for j in range(5):
        A(f"ds_write_b128 v{tmp}, v[{E+4}:{E+7}] offset:{L_S + 8192*j}")

def chain(c, d):
    q = lambda r: f"v[{r}:{r+3}]"
    dd = f"v[{d}:{d+15}]"
    M = []
    for s in range(4):
        M.append(f"v_mfma_f32_32x32x16_bf16 {dd}, {q(X+4*s)}, {q(W+16*s+4*c)}, {'0' if s == 0 else dd}")
    M.append(f"v_mfma_f32_32x32x16_bf16 {dd}, {q(Ea)}, {q(We+4*c)}, {dd}")
    M.append(f"v_mfma_f32_32x32x16_bf16 {dd}, {q(OH)}, {q(Qx+4*c)}, {dd}")
    return M

def dma_x(A):
    for i in range(4):
        A(f"s_add_u32 m0, s{sXB}, {1024*i}")
        A(f"s_nop 0")
        A(f"buffer_load_dwordx4 v[{xi[i]}:{xi[i]+1}], s[{SX}:{SX+3}], 0 idxen offen lds")
def dma_e(A, slot):
    A(f"s_add_u32 m0, s{sXB}, {4096 + 1024*slot}")
    A(f"s_nop 0")
    A(f"buffer_load_dwordx4 v[{ei}:{ei+1}], s[{SE}:{SE+3}], 0 idxen offen lds")
def read_xidx(k): return [f"ds_read_u16 v{xi[i]}, v{aX} offset:{TB*k + 8*[0,2,8,10][i]}" for i in range(4)]
def read_eidx(k): return [f"ds_read_b32 v{ei}, v{aG} offset:{TB*k}"]
def read_a(eslot):
    L = [f"ds_read_b128 v[{X+4*s}:{X+4*s+3}], v{xr[s]}" for s in range(4)]
    L.append(f"ds_read_b128 v[{Ea}:{Ea+3}], v{eAddr} offset:{1024*eslot}")
    L.append(f"ds_read_b128 v[{OH}:{OH+3}], v{ohaddr} offset:1")
    return L
def read_q(c): return f"ds_read_b128 v[{Qx+4*c}:{Qx+4*c+3}], v{vQ} offset:{32*QSTR*c}"
def calc_vq():
    return [f"v_add_u32 v{tmp}, v{node0}, v{c1}", f"v_lshrrev_b32 v{tmp}, 14, v{tmp}",
            f"v_lshl_add_u32 v{vQ}, v{tmp}, 5, v{qbase}", f"v_add_u32 v{ohaddr}, v{ohaddr}, v{v16h}"]
def read_meta(k, par):
    return [f"ds_read_b128 v[{qa[par]}:{qa[par]+3}], v{aQ} offset:{32*k}",
            f"ds_read_b32 v{node0}, v{aN} offset:{32*k}",
            f"ds_read_u16 v{ohaddr}, v{aO} offset:{TB*k}"]

def pk_list(d, c):
    e = E; p = lambda r: f"v[{r}:{r+1}]"
    T = TU[c & 1]; U = T + 4; Tp = TU[(c + 1) & 1]; Up = Tp + 4
    L = []
    if OPT["seqform"]:
        oct_ = ((0, 0), (8, 2))
        for o, j in oct_: L.append(f"v_pk_mul_f32 {p(Up+j)}, {p(Up+j)}, {p(Tp+j)}")
        for o, j in oct_: L.append(f"v_pk_fma_f32 {p(d+o)}, {p(d+o)}, {p(e+o+2)}, {p(d+o)}")
        for o, j in oct_: L.append(f"v_pk_add_f32 {p(e+o)}, {p(e+o)}, 1.0 op_sel_hi:[1,0]")
        for k in (1, 2, 3):
            last = k == 3
            if k > 1:
                for o, j in oct_: L.append(f"v_pk_fma_f32 {p(d+o)}, {p(d+o)}, {p(e+o+2*k)}, {p(d+o)}")
            for o, j in oct_: L.append(f"v_pk_fma_f32 {p(U+j) if last else p(d+o)}, {p(d+o+2*k)}, {p(e+o)}, {p(d+o)}")
            for o, j in oct_: L.append(f"v_pk_fma_f32 {p(T+j) if last else p(e+o)}, {p(e+o)}, {p(e+o+2*k)}, {p(e+o)}")
        L.append(f"v_pk_fma_f32 {p(chk)}, {p(T)}, {p(T+2)}, {p(chk)}")
        return L
    for o, j in ((0, 0), (8, 2)):
        L.append(f"v_pk_mul_f32 {p(Up+j)}, {p(Up+j)}, {p(Tp+j)}")
    for o in (0, 8):
        L.append(f"v_pk_add_f32 {p(e+o+2)}, {p(e+o+2)}, 1.0 op_sel_hi:[1,0]")
        L.append(f"v_pk_add_f32 {p(e+o+6)}, {p(e+o+6)}, 1.0 op_sel_hi:[1,0]")
    for o in (0, 8):
        L.append(f"v_pk_fma_f32 {p(d+o)}, {p(d+o)}, {p(e+o+2)}, {p(d+o+2)}")
        L.append(f"v_pk_fma_f32 {p(d+o+4)}, {p(d+o+4)}, {p(e+o+6)}, {p(d+o+6)}")
    for o in (0, 8):
        L.append(f"v_pk_fma_f32 {p(d+o)}, {p(d+o+2)}, {p(e+o)}, {p(d+o)}")
        L.append(f"v_pk_fma_f32 {p(d+o+4)}, {p(d+o+6)}, {p(e+o+4)}, {p(d+o+4)}")
    for o in (0, 8):
        L.append(f"v_pk_fma_f32 {p(e+o)}, {p(e+o)}, {p(e+o+2)}, {p(e+o+2)}")
        L.append(f"v_pk_fma_f32 {p(e+o+4)}, {p(e+o+4)}, {p(e+o+6)}, {p(e+o+6)}")
    for o, j in ((0, 0), (8, 2)):
        L.append(f"v_pk_mul_f32 {p(T+j)}, {p(e+o)}, {p(e+o+4)}")
    for o in (0, 8):
        L.append(f"v_pk_mul_f32 {p(d+o)}, {p(d+o)}, {p(e+o+4)}")
    for o, j in ((0, 0), (8, 2)):
        L.append(f"v_pk_fma_f32 {p(U+j)}, {p(d+o+4)}, {p(e+o)}, {p(d+o)}")
    for j in (0, 2):
        L.append(f"v_pk_add_f32 {p(chk)}, {p(chk)}, {p(T+j)}")
    return L

def flush_q(c, q):
    U = TU[c & 1] + 4
    cv = [f"v_cvt_f64_f32 v[{F64+2*j}:{F64+2*j+1}], v{U+j}" for j in range(4)]
    ad = [f"ds_add_f64 v{q+j}, v[{F64+2*j}:{F64+2*j+1}] offset:{256*(c & 3)}" for j in range(4)]
    return cv, ad

def emit(A, x):
    if isinstance(x, tuple):
        _, sreg, lab, body = x
        A(f"s_cmp_eq_u32 s{sreg}, 0")
        A(f"s_cbranch_scc1 {lab}")
        for y in body: A(y)
        A.label(lab)
    else: A(x)

def flush_block(A, c, q, hflag, lab):
    U = TU[c & 1] + 4
    cv, ad = flush_q(c, q)
    if OPT["noadd"]: ad = [f"ds_read_b32 v{tmp2}, v{tmp2+1}"] * 4
    if not OPT["fflush"]:
        for x in cv + ad: A(x)
        return
    A(f"s_cmp_eq_u32 s{hflag}, 0")
    A(f"s_cbranch_scc1 {lab}a")
    A(f"v_add_f32 v{U}, v{U}, v{U+1}")
    A(f"v_add_f32 v{U+2}, v{U+2}, v{U+3}")
    A(f"v_add_f32 v{U}, v{U}, v{U+2}")
    A(cv[0]); A(ad[0])
    A(f"s_branch {lab}b")
    A.label(f"{lab}a")
    for x in cv + ad: A(x)
    A.label(f"{lab}b")

def tile_body(A, par, hp, hc):
    k = par; p = lambda r: f"v[{r}:{r+1}]"
    W0 = "s_waitcnt lgkmcnt(0)" if OPT["w0"] else None
    for ph in range(4):
        d = D[ph & 1]; dn = D[(ph + 1) & 1]
        M = chain((ph + 1) & 3, dn)
        Tp = TU[(ph + 1) & 1]; Up = Tp + 4
        Tc = TU[ph & 1]; Uc = Tc + 4
        tr = [f"v_exp_f32 v{E+j}, v{d+j}" for j in range(16)]
        hB = hc if ph >= 1 else hp; qB = qa[par] if ph >= 1 else qa[1 - par]
        hD = hc if ph >= 2 else hp; qD = qa[par] if ph >= 2 else qa[1 - par]
        cB = (ph + 3) & 3
        prev_tail = lambda h: 0 if h else 4
        extra = {i: [] for i in range(7)}
        pre = []
        if ph == 0:
            extra[1] += read_meta(k + 1, 1 - par)[1:]
            extra[2] += [f"v_add_u32 v{qa[par]+j}, v{qa[par]+j}, v{lanecol}" for j in range(1 if hc else 4)]
        if ph == 1:
            pre += [f"s_waitcnt lgkmcnt({prev_tail(hp)})"]
            extra[1] += calc_vq() + [read_q(0), read_q(1)]
            extra[2] += read_xidx(k + 2) + read_eidx(k + 3)
        if ph == 2:
            extra[1] += [read_q(2), read_meta(k + 1, 1 - par)[0]]
            extra[5] += ["s_waitcnt vmcnt(1)"] + read_a(1 - par)
        if ph == 3:
            pre += [f"s_waitcnt lgkmcnt({prev_tail(hc)})"]
            extra[1] += [read_q(3)]
            qn = qa[1 - par]
            extra[2] += [f"v_cmp_ne_u32 vcc, v{qn}, v{qn+3}"]
            extra[3] += ["s_cmp_eq_u64 vcc, 0", f"s_cselect_b32 s{sH[0]}, 1, 0"]
        for x in pre: A(x)
        ti = 0
        for m in range(6):
            A(M[m])
            if ph == 3 and not OPT["nodma"]:
                if m < 4:
                    A(f"s_add_u32 m0, s{sXB}, {1024*m}")
                    A("s_nop 0")
                    A(f"buffer_load_dwordx4 v[{xi[m]}:{xi[m]+1}], s[{SX}:{SX+3}], 0 idxen offen lds")
                if m == 4: dma_e(A, 1 - par)
            if m == 5 and ph == 2:
                for x in extra[5]: A(x)
            if m == 0:
                if hB:
                    for x in merged_tail(Tp, qB, cB): A(x)
                else:
                    for j in range(4): A(f"v_rcp_f32 v{Tp+j}, v{Tp+j}")
            else:
                n = 3 if m < 5 else 4
                for x in tr[ti:ti + n]: A(x)
                ti += n
            if not (m == 5 and ph == 2):
                for x in extra[m]: A(x)
        assert ti == 16
        if not hD:
            cv, ad = flush_q(ph + 2, qD)
            for x in cv + ad: A(x)
        pk = pk_list(d, ph)
        if not hB:
            for x in pk[:2]: A(x)
        for x in pk[2:-1]: A(x)
        if hc:
            A(f"v_pk_mul_f32 {p(F64+4)}, {p(Uc)}, {p(Tc+2)}")
            A(f"v_pk_fma_f32 {p(Uc)}, {p(Uc+2)}, {p(Tc)}, {p(F64+4)}")
            A(f"v_pk_mul_f32 {p(Tc)}, {p(Tc)}, {p(Tc+2)}")
        else:
            A(pk[-1])

def merged_tail(Tp, q, c):
    Up = Tp + 4
    return [f"v_mul_f32 v{Tp+2}, v{Tp}, v{Tp+1}",
            f"v_mul_f32 v{Up+2}, v{Up}, v{Tp+1}",
            f"v_fma_f32 v{Up+2}, v{Up+1}, v{Tp}, v{Up+2}",
            f"v_rcp_f32 v{Tp+3}, v{Tp+2}",
            f"v_add_f32 v{chk}, v{chk}, v{Tp+2}",
            f"v_mul_f32 v{Up+2}, v{Up+2}, v{Tp+3}",
            f"v_cvt_f64_f32 v[{F64}:{F64+1}], v{Up+2}",
            f"ds_add_f64 v{q}, v[{F64}:{F64+1}] offset:{256*c}"]

def drain_fast(A, par, hc):
    p = lambda r: f"v[{r}:{r+1}]"
    Tp = TU[1]; Up = Tp + 4
    if hc:
        for x in merged_tail(Tp, qa[par], 3): A(x)
        return
    cv2, ad2 = flush_q(2, qa[par])
    cv3, ad3 = flush_q(3, qa[par])
    for x in ([f"v_rcp_f32 v{Tp+j}, v{Tp+j}" for j in range(4)] + cv2 + ad2 +
              [f"v_pk_mul_f32 {p(Up+j)}, {p(Up+j)}, {p(Tp+j)}" for j in (0, 2)] + cv3 + ad3): A(x)

def fast_loop(A):
    A(f"s_cmp_eq_u32 s{sH[0]}, 0")
    A("s_cbranch_scc0 B_T001")
    order = [(0, 0, 0), (1, 0, 0), (1, 0, 1), (0, 1, 0), (0, 0, 1), (1, 1, 1), (0, 1, 1), (1, 1, 0)]
    for n, (par, hp, hc) in enumerate(order):
        A.label(f"B_T{par}{hp}{hc}")
        tile_body(A, par, hp, hc)
        if par == 1:
            for r in (aX, aG, aO): A(f"v_add_u32 v{r}, {2*TB}, v{r}")
            for r in (aQ, aN): A(f"v_add_u32 v{r}, 64, v{r}")
        A(f"s_sub_u32 s{sN}, s{sN}, 1")
        A(f"s_cmp_eq_u32 s{sN}, 1")
        A(f"s_cbranch_scc0 B_W2T{par}{hp}{hc}")
        load_w2(A)
        A.label(f"B_W2T{par}{hp}{hc}")
        if OPT["prio"]:
            for rem, pr in OPT["psched"]:
                A(f"s_cmp_eq_u32 s{sN}, {rem}")
                A(f"s_cbranch_scc0 B_PT{par}{hp}{hc}{rem}")
                A(f"s_setprio {pr}")
                A.label(f"B_PT{par}{hp}{hc}{rem}")
        A(f"s_cmp_eq_u32 s{sN}, 0")
        A(f"s_cbranch_scc1 B_DRAIN{par}{hc}")
        A(f"s_cmp_eq_u32 s{sH[0]}, 0")
        nxt0 = (1 - par, hc, 0); nxt1 = (1 - par, hc, 1)
        follow = order[n + 1] if n + 1 < len(order) else None
        name = lambda t: f"B_T{t[0]}{t[1]}{t[2]}"
        if follow == nxt0:
            A(f"s_cbranch_scc0 {name(nxt1)}")
        elif follow == nxt1:
            A(f"s_cbranch_scc1 {name(nxt0)}")
        else:
            A(f"s_cbranch_scc0 {name(nxt1)}")
            A(f"s_branch {name(nxt0)}")
    for par in (0, 1):
        for hc in (0, 1):
            A.label(f"B_DRAIN{par}{hc}")
            drain_fast(A, par, hc)
            A("s_branch B_LOOPEND")

def tile_iter_safe(A, par):
    k = par; e = E; p = lambda r: f"v[{r}:{r+1}]"
    for ph in range(4):
        d = D[ph & 1]; dn = D[(ph + 1) & 1]
        if ph == 0:
            for x in read_meta(k + 1, 1 - par): A(x)
        if ph == 1:
            A("s_waitcnt lgkmcnt(4)")
            for x in calc_vq(): A(x)
            for j in range(4): A(f"v_add_u32 v{qa[1-par]+j}, v{qa[1-par]+j}, v{lanecol}")
            for x in [read_q(0), read_q(1)] + read_xidx(k + 2) + read_eidx(k + 3): A(x)
        if ph == 2: A(read_q(2))
        if ph == 3:
            A("s_waitcnt lgkmcnt(4)")
            dma_x(A); dma_e(A, 1 - par)
            A(read_q(3))
        for m in chain((ph + 1) & 3, dn): A(m)
        if ph == 2:
            A("s_waitcnt vmcnt(1)")
            for x in read_a(1 - par): A(x)
        for j in range(16): A(f"v_exp_f32 v{e+j}, v{d+j}")
        for j in range(0, 16, 2): A(f"v_pk_add_f32 {p(e+j)}, {p(e+j)}, 1.0 op_sel_hi:[1,0]")
        for j in range(16): A(f"v_rcp_f32 v{e+j}, v{e+j}")
        for j in range(0, 16, 2): A(f"v_pk_mul_f32 {p(d+j)}, {p(d+j)}, {p(e+j)}")
        for o in (0, 8):
            A(f"v_pk_add_f32 {p(d+o)}, {p(d+o)}, {p(d+o+2)}")
            A(f"v_pk_add_f32 {p(d+o+4)}, {p(d+o+4)}, {p(d+o+6)}")
        for o in (0, 8): A(f"v_pk_add_f32 {p(d+o)}, {p(d+o)}, {p(d+o+4)}")
        cvt = ((d, F64), (d + 1, F64 + 2), (d + 8, F64 + 4), (d + 9, F64 + 6))
        for r, t in cvt: A(f"v_cvt_f64_f32 v[{t}:{t+1}], v{r}")
        for j, (r, t) in enumerate(cvt): A(f"ds_add_f64 v{qa[par]+j}, v[{t}:{t+1}] offset:{256*ph}")

def load_w2(A, keep=False):
    a, b = sEx, sEx + 1
    srd(A, SO, pW2, 128 * 64 * 2)
    A(f"v_lshlrev_b32 v247, 4, v{vLane}")
    A(f"s_lshl_b32 s{a}, s{sWave}, 11")
    for j in range(2):
        A(f"s_add_u32 m0, s{a}, {L_W2 + 1024*j}")
        A(f"s_add_u32 s{b}, s{a}, {1024*j}")
        A(f"buffer_load_dwordx4 v247, s[{SO}:{SO+3}], s{b} offen lds")
    A(f"""
v_lshrrev_b32 v246, 5, v{vLane}
s_and_b32 s{a}, s{sWave}, 1
s_lshl_b32 s{a}, s{a}, 6
v_lshlrev_b32 v246, 3, v246
v_add_u32 v246, s{a}, v246
""")
    for g in range(4):
        A(f"global_load_dwordx2 v[{vB2+2*g}:{vB2+2*g+1}], v246, s[{pB2}:{pB2+1}] offset:{16*g}")

def main_loop(A, fast):
    tag = "F" if fast else "S"
    if OPT["prio"]: A("s_setprio 3")
    if OPT["stagger"]:
        A(f"s_cmp_lt_u32 s{sWave}, 4")
        A(f"s_cbranch_scc1 B_STG0{tag}")
        A("s_barrier")
        A.label(f"B_STG0{tag}")
    for x in read_xidx(0) + read_eidx(0): A(x)
    for x in read_meta(0, 0): A(x)
    A("s_waitcnt lgkmcnt(0)")
    dma_x(A); dma_e(A, 0)
    if OPT["stagger"] == 2:
        A(f"s_cmp_lt_u32 s{sWave}, 4")
        A(f"s_cbranch_scc1 B_STG2{tag}")
        A("s_barrier")
        A.label(f"B_STG2{tag}")
    for x in read_eidx(1): A(x)
    for x in calc_vq(): A(x)
    if not fast:
        for j in range(4): A(f"v_add_u32 v{qa[0]+j}, v{qa[0]+j}, v{lanecol}")
    for c in range(4): A(read_q(c))
    for x in read_xidx(1): A(x)
    if fast:
        for t in TU:
            for j in range(4):
                A(f"v_mov_b32 v{t+j}, 1.0")
                A(f"v_mov_b32 v{t+4+j}, 0")
        for j in range(4): A(f"v_mov_b32 v{qa[1]+j}, v{lanecol}")
        A(f"v_cmp_ne_u32 vcc, v{qa[0]}, v{qa[0]+3}")
        A(f"s_mov_b32 s{sH[1]}, 0")
        A("s_cmp_eq_u64 vcc, 0")
        A(f"s_cselect_b32 s{sH[0]}, 1, 0")
    A("s_waitcnt vmcnt(0)")
    if OPT["stagger"]:
        A(f"s_cmp_ge_u32 s{sWave}, 4")
        A(f"s_cbranch_scc1 B_STG1{tag}")
        A("s_barrier")
        A.label(f"B_STG1{tag}")
    for x in read_a(0): A(x)
    A("s_waitcnt lgkmcnt(0)")
    if OPT["stagger"] == 2:
        A(f"s_cmp_ge_u32 s{sWave}, 4")
        A(f"s_cbranch_scc1 B_STG3{tag}")
        A("s_barrier")
        A.label(f"B_STG3{tag}")
    if OPT["prime2"]: dma_e(A, 1)
    for x in read_eidx(2): A(x)
    dma_x(A)
    A("s_waitcnt lgkmcnt(0)")
    if OPT["defer"] and fast: A(f"s_mov_b32 s{sDef}, 1")
    else: dma_e(A, 0)
    for m in chain(0, D[0]): A(m)
    A(f"s_cmp_eq_u32 s{sN}, 1")
    A(f"s_cbranch_scc0 B_W2P{tag}")
    load_w2(A, keep=True)
    A.label(f"B_W2P{tag}")
    if OPT["prio"]: A("s_setprio 2")
    A("s_nop 7")
    A("s_nop 3")
    if fast: A("STAMP 9"); A("CSTAMP 13")
    if fast:
        fast_loop(A)
        return
    A.label(f"B_LOOP{tag}")
    for par in (0, 1):
        tile_iter_safe(A, par)
        if par == 1:
            for r in (aX, aG, aO): A(f"v_add_u32 v{r}, {2*TB}, v{r}")
            for r in (aQ, aN): A(f"v_add_u32 v{r}, 64, v{r}")
        A(f"s_sub_u32 s{sN}, s{sN}, 1")
        A(f"s_cmp_eq_u32 s{sN}, 1")
        A(f"s_cbranch_scc0 B_W2{tag}{par}")
        load_w2(A, keep=True)
        A.label(f"B_W2{tag}{par}")
        A(f"s_cmp_eq_u32 s{sN}, 0")
        if par == 0: A(f"s_cbranch_scc1 B_LOOPEND")
        else: A(f"s_cbranch_scc0 B_LOOP{tag}")
    A("s_branch B_LOOPEND")

def sort_slots(A, body, groups, tag, wait=False):
    for g in groups:
        if wait: A(f"s_waitcnt vmcnt({3 - g})")
        for i in range(4):
            A(f"v_cmpx_lt_i32 vcc, {8*g+i}, v{vLim}")
            if i % 2 == 0: A(f"s_cbranch_execz {tag}")
            body(g, i)

def estream(A, first, n, vaddr):
    srd(A, SP, pE, N_EDGES * 32)
    A(f"s_mul_i32 s{sT}, s2, {CH * 32}")
    A(f"s_mul_i32 s{sT2}, s{sWave}, 10240")
    A(f"s_add_u32 s{sT}, s{sT}, s{sT2}")
    A(f"s_add_u32 s{sT}, s{sT}, {1024 * first}")
    A(f"v_lshlrev_b32 v{vaddr}, 4, v{vLane}")
    for j in range(n):
        A(f"buffer_load_dwordx4 v[{F64}:{F64+3}], v{vaddr}, s[{SP}:{SP+3}], s{sT} offen offset:{1024*j}")

sDef = 3; sFirst = 47; sES = 47; sQch = 28; sH = [29, 30]; SES = 4
def es_init(A):
    if not OPT["es2"]: return
    srd(A, SE, pE, N_EDGES * 32)
    A(f"s_mul_i32 s{sES}, s2, {CH * 32}")
    A(f"s_mul_i32 s{sT4}, s{sWave}, 10240")
    A(f"s_add_u32 s{sES}, s{sES}, s{sT4}")
    A(f"v_lshlrev_b32 v247, 4, v{vLane}")
def es(A, tag):
    if tag not in OPT["es2"]: return
    A(f"buffer_load_dwordx4 v[{F64}:{F64+3}], v247, s[{SRDE[0]}:{SRDE[0]+3}], s{sES} offen")
    A(f"s_add_u32 s{sES}, s{sES}, 1024")
SRDE = [SE]

def tr_addr(A, dst, base, rowbytes):
    A(f"v_lshrrev_b32 v{tmp}, 5, v{vLane}")
    A(f"v_bfe_u32 v{tmp2}, v{vLane}, 2, 2")
    A(f"v_lshl_add_u32 v{tmp}, v{tmp}, 3, v{tmp2}")
    A(f"v_mul_u32_u24 v{dst}, {rowbytes}, v{tmp}")
    A(f"v_bfe_u32 v{tmp}, v{vLane}, 4, 1")
    A(f"v_lshl_add_u32 v{dst}, v{tmp}, 5, v{dst}")
    A(f"v_and_b32 v{tmp}, 3, v{vLane}")
    A(f"v_lshl_add_u32 v{dst}, v{tmp}, 3, v{dst}")
    A(f"v_add_u32 v{dst}, {base}, v{dst}")

def lane_consts(A):
    A(f"""
v_add_u32 v{vN6}, s{sS6}, v{vLane}
v_and_b32 v{vN6}, 63, v{vN6}
v_lshlrev_b32 v{vN6}, 2, v{vN6}
v_and_b32 v119, 15, v{vLane}
v_lshlrev_b32 v119, 5, v119
v_add_u32 v119, {L_OHT - 1}, v119
v_lshlrev_b32 v{vOhp}, 16, v119
v_and_b32 v112, 31, v{vLane}
v_lshrrev_b32 v113, 5, v{vLane}
v_bfe_u32 v114, v{vLane}, 1, 3
v_lshlrev_b32 v115, 7, v112
v_add_u32 v115, s{sXB}, v115
""")
    for s in range(4):
        A(f"v_or_b32 v116, {2*s}, v113")
        A(f"v_xor_b32 v116, v116, v114")
        A(f"v_lshl_add_u32 v{xr[s]}, v116, 4, v115")
    A(f"""
v_lshlrev_b32 v{eAddr}, 4, v{vLane}
v_add_u32 v{eAddr}, s{sXB}, v{eAddr}
v_add_u32 v{eAddr}, 0x1000, v{eAddr}
v_mul_u32_u24 v{qbase}, {QSTR}, v112
v_lshl_add_u32 v{qbase}, v113, 4, v{qbase}
v_add_u32 v{qbase}, {L_QT}, v{qbase}
v_xor_b32 v{c1}, 1, v113
v_lshlrev_b32 v{c1}, 13, v{c1}
v_lshlrev_b32 v{lanecol}, 3, v112
v_lshlrev_b32 v{v16h}, 4, v113
v_and_b32 v116, 7, v{vLane}
v_lshrrev_b32 v117, 4, v{vLane}
v_xor_b32 v118, v116, v117
v_lshlrev_b32 v{xi[0]+1}, 4, v118
v_mov_b32 v{xi[2]+1}, v{xi[0]+1}
v_xor_b32 v118, 4, v118
v_lshlrev_b32 v{xi[1]+1}, 4, v118
v_mov_b32 v{xi[3]+1}, v{xi[1]+1}
v_lshlrev_b32 v{ei+1}, 4, v113
v_bfe_u32 v116, v{vLane}, 3, 1
v_bfe_u32 v117, v{vLane}, 4, 1
v_lshlrev_b32 v118, 4, v113
v_lshl_add_u32 v118, v116, 2, v118
v_add_u32 v118, v118, v117
v_lshlrev_b32 v{cX}, 3, v118
v_bfe_u32 v116, v{vLane}, 2, 1
v_lshlrev_b32 v118, 4, v116
v_bfe_u32 v116, v{vLane}, 4, 1
v_lshl_add_u32 v118, v116, 3, v118
v_and_b32 v116, 1, v{vLane}
v_lshl_add_u32 v118, v116, 2, v118
v_bfe_u32 v116, v{vLane}, 3, 1
v_lshl_add_u32 v118, v116, 1, v118
v_bfe_u32 v116, v{vLane}, 1, 1
v_add_u32 v118, v118, v116
v_lshlrev_b32 v{cO}, 3, v118
v_add_u32 v{cG}, 4, v{cO}
v_add_u32 v{cO}, 2, v{cO}
""")

def kernel():
    A = Asm(OPT["stamps"])
    A.label(KB)
    A(f"""
s_cmp_ge_u32 s2, {NB}
s_cbranch_scc1 B_END
STAMP 0
CSTAMP 11
s_load_dwordx16 s[48:63], s[0:1], 0
s_load_dwordx4 s[96:99], s[0:1], 64
s_load_dwordx2 s[100:101], s[0:1], 80
s_memrealtime s[{sEx2}:{sEx2+1}]
v_lshrrev_b32 v1, 6, v0
v_and_b32 v{vLane}, 63, v0
v_readfirstlane_b32 s{sWave}, v1
s_mul_i32 s{sStart}, s2, 625
s_add_u32 s{sT}, s{sStart}, {625 + 15}
s_add_u32 s{sStart}, s{sStart}, 15
s_lshr_b32 s{sStart}, s{sStart}, 4
s_lshr_b32 s{sT}, s{sT}, 4
s_sub_u32 s{sNn}, s{sT}, s{sStart}
s_and_b32 s{sS6}, s{sStart}, 63
s_mul_i32 s{sXB}, s{sWave}, {XBS}
s_add_u32 s{sXB}, s{sXB}, {L_XB0}
s_mov_b32 s{sMode}, 0
s_mov_b32 s{sR}, 32
s_mov_b32 s{sLo}, 0
s_mov_b32 s{sCnt}, 0x400000
v_mov_b32 v{vdeg}, 0
v_mov_b32 v{chk}, 0
v_mov_b32 v{chk+1}, 0
v_mov_b32 v40, 0
v_mov_b32 v41, 0
v_mov_b32 v42, 0
v_mov_b32 v43, 0
v_lshlrev_b32 v2, 4, v{vTID}
v_cmp_gt_u32 vcc, 64, v{vTID}
s_and_saveexec_b64 s[{sEx}:{sEx+1}], vcc
ds_write_b128 v2, v[40:43] offset:{L_HIST}
s_mov_b64 exec, s[{sEx}:{sEx+1}]
v_cmp_gt_u32 vcc, 0x88, v{vTID}
s_and_saveexec_b64 s[{sEx}:{sEx+1}], vcc
v_lshrrev_b32 v3, 3, v{vTID}
v_and_b32 v4, 7, v{vTID}
v_lshrrev_b32 v5, 1, v3
v_and_b32 v6, 1, v3
v_lshlrev_b32 v6, 4, v6
v_mov_b32 v7, {BF_ONE:#x}
v_lshlrev_b32 v7, v6, v7
v_cmp_eq_u32 vcc, v4, v5
v_lshlrev_b32 v8, 2, v{vTID}
v_cndmask_b32 v7, 0, v7, vcc
v_add_u32 v8, {L_OHT}, v8
ds_write_b32 v8, v7
s_mov_b64 exec, s[{sEx}:{sEx+1}]
v_cmp_gt_u32 vcc, 16, v{vTID}
s_and_saveexec_b64 s[{sEx}:{sEx+1}], vcc
ds_write_b128 v2, v[40:43] offset:{L_FLAG}
s_mov_b64 exec, s[{sEx}:{sEx+1}]
s_waitcnt lgkmcnt(0)
STAMP 1
""")
    A(f"""
s_cmp_lg_u32 s2, 0
s_cbranch_scc1 A_NONONCE
s_cmp_lg_u32 s{sWave}, 0
s_cbranch_scc1 A_NONONCE
s_and_b32 s{sEx2+1}, s{sEx2+1}, 0xff
s_or_b32 s{sEx2+1}, s{sEx2+1}, 0x80000000
v_mov_b32 v4, s{sEx2}
v_mov_b32 v5, s{sEx2+1}
v_mov_b32 v3, 0
s_mov_b64 exec, 1
global_store_dwordx2 v3, v[4:5], s[{pDbg}:{pDbg+1}] sc1
s_mov_b64 exec, -1
""")
    A.label("A_NONONCE")
    if OPT["touch"]:
        ptrs = [pW1, pX, pB1, pWs, pE, pW2, pOut, pB2]
        A("v_mov_b32 v3, 0")
        for w, p in enumerate(ptrs):
            A(f"s_cmp_lg_u32 s{sWave}, {w}")
            A(f"s_cbranch_scc1 A_T{w}")
            A(f"global_load_dword v{F64+5}, v3, s[{p}:{p+1}]")
            A.label(f"A_T{w}")
    srd(A, SO, pDst, N_EDGES * 4)
    srd(A, SP, pSrc, N_EDGES * 4)
    A(f"""
s_mul_i32 s{sT}, s2, {CH * 4}
v_add_u32 v3, 0x2000, v2
v_mov_b32 v4, 0x7ffffff0
v_cmp_gt_u32 vcc, {CH // 4 - 512}, v{vTID}
v_lshlrev_b32 v18, 2, v{vTID}
v_add_u32 v18, 0x2000, v18
v_cndmask_b32 v3, v4, v3, vcc
v_cmp_gt_u32 vcc, {CH - 2048}, v{vTID}
s_mov_b64 s[{sEx2}:{sEx2+1}], vcc
v_cndmask_b32 v18, v4, v18, vcc
buffer_load_dwordx4 v[40:43], v2, s[{SO}:{SO+3}], s{sT} offen
buffer_load_dword v48, v18, s[{SO}:{SO+3}], s{sT} offen
buffer_load_dwordx4 v[44:47], v2, s[{SP}:{SP+3}], s{sT} offen
buffer_load_dword v52, v18, s[{SP}:{SP+3}], s{sT} offen
""")
    srd(A, SO, pW1, 144 * 128 * 2)
    srd(A, SP, pX, N_NODES * 128)
    A(f"v_lshlrev_b32 v1, 4, v{vLane}")
    A(f"s_lshl_b32 s{sT2}, s{sWave}, 10")
    for j in range(5):
        A(f"s_add_u32 m0, s{sT2}, {L_WRAW + 8192*j}")
        A(f"s_add_u32 s{sT3}, s{sT2}, {8192*j}")
        A(f"buffer_load_dwordx4 v1, s[{SO}:{SO+3}], s{sT3} offen lds")
    A(f"""
s_lshl_b32 s{sT3}, s{sWave}, 3
v_lshrrev_b32 v5, 3, v{vLane}
v_add_u32 v5, s{sT3}, v5
v_bfe_u32 v6, v5, 1, 3
v_and_b32 v7, 7, v{vLane}
v_xor_b32 v6, v6, v7
v_add_u32 v5, s{sStart}, v5
v_lshlrev_b32 v5, 7, v5
v_lshl_add_u32 v5, v6, 4, v5
s_add_u32 m0, s{sT2}, {L_XROW}
s_and_b32 s{sT3}, s{sWave}, 3
buffer_load_dwordx4 v5, s[{SP}:{SP+3}], 0 offen lds
s_lshl_b32 s{sT3}, s{sT3}, 5
v_and_b32 v5, 31, v{vLane}
v_lshrrev_b32 v222, 5, v{vLane}
v_add_u32 v221, s{sT3}, v5
v_lshlrev_b32 v9, 1, v221
global_load_ushort v223, v9, s[{pB1}:{pB1+1}]
s_barrier
""")
    A(f"""
v_lshlrev_b32 v11, 16, v{vTID}
v_lshlrev_b32 v12, 14, v{vTID}
v_add_u32 v12, {2048 << 14:#x}, v12
s_mov_b32 s{sT2}, 429497
STAMP 2
s_waitcnt vmcnt(9)
STAMP 3
""")
    es_init(A)
    es(A, "a")
    def hist(base, dst, n=4):
        for i in range(n): A(f"v_mul_u32_u24 v{base+i}, s{sT2}, v{dst+i}")
        for i in range(n): A(f"v_lshrrev_b32 v{base+i}, 22, v{base+i}")
        for i in range(n):
            A(f"v_and_b32 v{base+i}, 0x3fc, v{base+i}")
            A(f"ds_add_rtn_u32 v{base+8+i}, v{base+i}, v13 offset:{L_HIST}")
    def recs(dst, src, eid, n=4):
        for i in range(n):
            A(f"v_lshl_or_b32 v{dst+i}, v{dst+i}, 26, v{src+i}")
            A(f"v_add_u32 v{dst+i}, v{dst+i}, v{eid}")
            if i: A(f"v_add_u32 v{dst+i}, {i << 14:#x}, v{dst+i}")
    A("v_mov_b32 v13, 1")
    hist(56, 40)
    A(f"s_mov_b64 exec, s[{sEx2}:{sEx2+1}]")
    hist(60, 48, 1)
    A("s_mov_b64 exec, -1")
    A("s_waitcnt vmcnt(7)")
    recs(40, 44, 11)
    recs(48, 52, 12, 1)
    A.label("A_H1")
    A(f"""
s_waitcnt lgkmcnt(0)
s_barrier
v_lshlrev_b32 v14, 4, v{vLane}
ds_read_b128 v[72:75], v14 offset:{L_HIST}
v_mov_b32 v15, 0
s_cmp_lg_u32 s{sWave}, 0
s_cbranch_scc1 A_NOTAG0
global_load_dwordx2 v[16:17], v15, s[{pDbg}:{pDbg+1}] sc1
A_NOTAG0:
s_waitcnt lgkmcnt(0)
v_add_u32 v76, v72, v73
v_add_u32 v77, v76, v74
v_add_u32 v78, v77, v75
v_mov_b32 v79, v78
""")
    es(A, "c")
    wave_scan(A, 79)
    A(f"""
v_sub_u32 v80, v79, v78
v_add_u32 v81, v80, v72
v_add_u32 v82, v80, v76
v_add_u32 v83, v80, v77
ds_write_b128 v14, v[80:83] offset:{L_BASE}
s_waitcnt lgkmcnt(0)
""")
    for i in range(5): A(f"ds_read_b32 v{56+i}, v{56+i} offset:{L_BASE}")
    for i in range(4):
        A(f"s_waitcnt lgkmcnt({4-i})")
        A(f"v_add_lshl_u32 v{56+i}, v{56+i}, v{64+i}, 2")
        A(f"ds_write_b32 v{56+i}, v{40+i} offset:{L_SORT}")
    A(f"s_mov_b64 exec, s[{sEx2}:{sEx2+1}]")
    A("s_waitcnt lgkmcnt(4)")
    A(f"v_add_lshl_u32 v60, v60, v68, 2")
    A(f"ds_write_b32 v60, v48 offset:{L_SORT}")
    A("s_mov_b64 exec, -1")
    A.label("A_H2")
    srd(A, SW, pWs, WS_END)
    A(f"""
s_waitcnt lgkmcnt(0)
s_barrier
STAMP 4
ds_read_b128 v[40:43], v2 offset:{L_SORT}
ds_read_b128 v[44:47], v2 offset:{L_SORT + 8192}
s_mul_i32 s{sT}, s2, {CH * 4}
s_add_u32 s{sT}, s{sT}, {WS_REC}
s_waitcnt lgkmcnt(1)
buffer_store_dwordx4 v[40:43], v2, s[{SW}:{SW+3}], s{sT} offen sc1
s_waitcnt lgkmcnt(0)
buffer_store_dwordx4 v[44:47], v3, s[{SW}:{SW+3}], s{sT} offen sc1
""")
    A(f"""
s_cmp_lg_u32 s{sWave}, 0
s_cbranch_scc1 A_DRAIN
""")
    A.label("A_NONCE")
    A(f"""
s_waitcnt vmcnt(0)
v_readfirstlane_b32 s{sTagLo}, v16
v_readfirstlane_b32 s{sTagB}, v17
s_cmp_lt_i32 s{sTagB}, 0
s_cbranch_scc1 A_HAVETAG
A_NONCE2:
s_sub_u32 s{sCnt}, s{sCnt}, 1
s_cmp_eq_u32 s{sCnt}, 0
s_cbranch_scc1 B_END
s_sleep 1
global_load_dwordx2 v[16:17], v15, s[{pDbg}:{pDbg+1}] sc1
s_waitcnt vmcnt(0)
v_readfirstlane_b32 s{sTagLo}, v16
v_readfirstlane_b32 s{sTagB}, v17
s_cmp_lt_i32 s{sTagB}, 0
s_cbranch_scc0 A_NONCE2
""")
    A.label("A_HAVETAG")
    A(f"""
v_and_b32 v17, 0xff, v17
v_mov_b32 v15, {L_FLAG}
ds_write_b64 v15, v[16:17] offset:16
s_and_b32 s{sTagB}, s{sTagB}, 0xff
""")
    A.label("A_DRAIN")
    A(f"""
s_waitcnt vmcnt(0) lgkmcnt(0)
s_barrier
s_cmp_lg_u32 s{sWave}, 0
s_cbranch_scc1 A_PUBLISHED
s_lshl_b32 s{sT}, s{sTagB}, 24
v_mov_b32 v41, s{sTagLo}
v_mov_b32 v43, s{sTagLo}
v_mov_b32 v45, s{sTagLo}
v_mov_b32 v47, s{sTagLo}
v_lshl_or_b32 v40, v72, 12, v80
v_lshl_or_b32 v42, v73, 12, v81
v_lshl_or_b32 v44, v74, 12, v82
v_lshl_or_b32 v46, v75, 12, v83
v_or_b32 v40, s{sT}, v40
v_or_b32 v42, s{sT}, v42
v_or_b32 v44, s{sT}, v44
v_or_b32 v46, s{sT}, v46
v_lshlrev_b32 v14, 5, v{vLane}
s_lshl_b32 s{sT}, s2, 11
s_add_u32 s{sT}, s{sT}, {WS_TBL}
buffer_store_dwordx4 v[40:43], v14, s[{SW}:{SW+3}], s{sT} offen sc1
buffer_store_dwordx4 v[44:47], v14, s[{SW}:{SW+3}], s{sT} offen offset:16 sc1
""")
    A.label("A_PUBLISHED")
    A("STAMP 5")
    A(f"v_mov_b32 v15, {L_FLAG}")
    A("ds_read_b64 v[16:17], v15 offset:16")
    A(f"""
v_lshrrev_b32 v4, 1, v{vTID}
v_mul_u32_u24 v{vC25}, {CH}, v4
v_lshlrev_b32 v4, 11, v4
s_waitcnt lgkmcnt(0)
v_readfirstlane_b32 s{sTagLo}, v16
v_readfirstlane_b32 s{sTagB}, v17
""")
    A(f"""
s_lshr_b32 s{sT}, s{sWave}, 2
s_lshl_b32 s{sT}, s{sT}, 12
s_add_u32 s{sT}, s{sT}, {L_XROW}
v_and_b32 v216, 31, v{vLane}
v_bfe_u32 v217, v{vLane}, 1, 3
v_lshlrev_b32 v216, 7, v216
v_add_u32 v216, s{sT}, v216
""")
    for s_ in range(4):
        A(f"v_or_b32 v218, {2*s_}, v222")
        A(f"v_xor_b32 v218, v218, v217")
        A(f"v_lshl_add_u32 v218, v218, 4, v216")
        A(f"ds_read_b128 v[{X+4*s_}:{X+4*s_+3}], v218")
    tr_addr(A, 216, L_WRAW, 256)
    A(f"""
s_lshr_b32 s{sT}, s{sWave}, 2
s_lshl_b32 s{sT}, s{sT}, 12
s_and_b32 s{sT2}, s{sWave}, 3
s_lshl_b32 s{sT2}, s{sT2}, 6
s_add_u32 s{sT}, s{sT}, s{sT2}
v_add_u32 v217, s{sT}, v216
v_add_u32 v218, s{sT2}, v216
""")
    WC = 112
    for j, (reg, off) in enumerate(((217, 0), (217, 32 * 256), (218, 128 * 256))):
        A(f"ds_read_b64_tr_b16 v[{WC+4*j}:{WC+1+4*j}], v{reg} offset:{off}")
        A(f"ds_read_b64_tr_b16 v[{WC+2+4*j}:{WC+3+4*j}], v{reg} offset:{off + 1024}")
    for s_ in range(4):
        A(f"ds_read_b64_tr_b16 v[{D[0]+4*s_}:{D[0]+4*s_+1}], v218 offset:{(64 + 16*s_) * 256}")
        A(f"ds_read_b64_tr_b16 v[{D[0]+4*s_+2}:{D[0]+4*s_+3}], v218 offset:{(64 + 16*s_) * 256 + 1024}")
    A(f"s_mov_b32 s{sT3}, {f2u(SCALE):#x}")
    A("s_waitcnt lgkmcnt(8)")
    for j in range(12):
        A(f"v_lshlrev_b32 v219, 16, v{WC+j}")
        A(f"v_and_b32 v220, 0xffff0000, v{WC+j}")
        A(f"v_mul_f32 v219, s{sT3}, v219")
        A(f"v_mul_f32 v220, s{sT3}, v220")
        A(f"v_cvt_pk_bf16_f32 v{WC+j}, v219, v220")
    A(f"""
v_lshlrev_b32 v219, 4, v{vLane}
s_lshl_b32 s{sT}, s{sWave}, 10
s_add_u32 s{sT}, s{sT}, {L_WST}
v_add_u32 v219, s{sT}, v219
""")
    A(f"ds_write_b128 v219, v[{WC}:{WC+3}]")
    A(f"ds_write_b128 v219, v[{WC+4}:{WC+7}] offset:8192")
    A("s_waitcnt lgkmcnt(2)")
    for s_ in range(4):
        A(f"v_mfma_f32_32x32x16_bf16 v[{D[1]}:{D[1]+15}], v[{X+4*s_}:{X+4*s_+3}], v[{D[0]+4*s_}:{D[0]+4*s_+3}], {'0' if s_ == 0 else f'v[{D[1]}:{D[1]+15}]'}")
    A(f"s_cmp_ge_u32 s{sWave}, 4")
    A("s_cbranch_scc1 B_NOWC")
    A(f"ds_write_b128 v219, v[{WC+8}:{WC+11}] offset:16384")
    A.label("B_NOWC")
    A(f"""
v_lshlrev_b32 v223, 16, v223
v_mul_f32 v223, s{sT3}, v223
v_mul_u32_u24 v224, {QSTR}, v221
s_lshr_b32 s{sT}, s{sWave}, 2
s_lshl_b32 s{sT}, s{sT}, 6
v_lshl_add_u32 v224, v222, 3, v224
v_add_u32 v224, s{sT}, v224
""")
    for j in range(16): A(f"v_fma_f32 v{D[1]+j}, v{D[1]+j}, s{sT3}, v223")
    for g in range(4):
        A(f"v_cvt_pk_bf16_f32 v{X+2*g}, v{D[1]+4*g}, v{D[1]+4*g+1}")
        A(f"v_cvt_pk_bf16_f32 v{X+2*g+1}, v{D[1]+4*g+2}, v{D[1]+4*g+3}")
    for g in range(2):
        A(f"ds_write_b64 v224, v[{X+2*g}:{X+2*g+1}] offset:{L_QT + 16*g}")
    A(f"s_cmp_ge_u32 s{sWave}, 4")
    A(f"s_cbranch_scc1 B_QDONE")
    for g in range(2, 4):
        A(f"ds_write_b64 v224, v[{X+2*g}:{X+2*g+1}] offset:{L_QT + 16*g}")
    A.label("B_QDONE")
    fill_lists(A)
    zero_s(A)
    if OPT["lcearly"]:
        srd(A, SX, pX, N_NODES, stride=128)
        srd(A, SE, pE, N_EDGES, stride=32)
        lane_consts(A)
    A("s_waitcnt lgkmcnt(0)")
    A("s_barrier")
    if OPT["wearly"]:
        A(f"v_lshlrev_b32 v1, 4, v{vLane}")
        A(f"v_add_u32 v1, {L_WST}, v1")
        for u in range(16): A(f"ds_read_b128 v[{W+4*u}:{W+4*u+3}], v1 offset:{1024*u}")
        for c in range(4): A(f"ds_read_b128 v[{We+4*c}:{We+4*c+3}], v1 offset:{1024*(16+c)}")
    for _ in range(OPT["predelay"]): A("s_sleep 8")
    A(f"""
s_lshl_b32 s{sT}, s2, 3
s_add_u32 s{sT}, s{sT}, {WS_TBL}
s_mov_b32 s{sCnt}, 0x400000
s_mov_b32 s{sFirst}, 1
STAMP 6
""")
    if not OPT["ppoll"]:
        A.label("B_POLL")
        A(f"""
buffer_load_dwordx2 v[{vTbl}:{vTbl+1}], v4, s[{SW}:{SW+3}], s{sT} offen sc1
s_waitcnt vmcnt(0)
v_lshrrev_b32 v5, 24, v{vTbl}
v_cmp_ne_u32 vcc, s{sTagLo}, v{vTbl+1}
v_cmp_ne_u32 s[{sEx}:{sEx+1}], s{sTagB}, v5
s_or_b64 vcc, vcc, s[{sEx}:{sEx+1}]
s_and_b64 exec, exec, vcc
s_cbranch_execz B_POLLED
s_sub_u32 s{sCnt}, s{sCnt}, 1
s_cmp_eq_u32 s{sCnt}, 0
s_cbranch_scc1 B_END
s_sleep {OPT["psleep"]}
s_branch B_POLL
""")
    else:
        P = (216, 218)
        A(f"buffer_load_dwordx2 v[{P[0]}:{P[0]+1}], v4, s[{SW}:{SW+3}], s{sT} offen sc1")
        A.label("B_POLL")
        for k in (0, 1):
            a, b = P[k], P[1 - k]
            A(f"""
s_sleep {OPT["psleep"]}
buffer_load_dwordx2 v[{b}:{b+1}], v4, s[{SW}:{SW+3}], s{sT} offen sc1
s_waitcnt vmcnt(1)
v_lshrrev_b32 v5, 24, v{a}
v_cmp_ne_u32 vcc, s{sTagLo}, v{a+1}
v_cmp_ne_u32 s[{sEx}:{sEx+1}], s{sTagB}, v5
s_or_b64 vcc, vcc, s[{sEx}:{sEx+1}]
s_and_b64 s[{sEx2}:{sEx2+1}], exec, vcc
s_andn2_b64 exec, exec, vcc
v_mov_b32 v{vTbl}, v{a}
s_mov_b64 exec, s[{sEx2}:{sEx2+1}]
s_cbranch_execz B_POLLED
""")
        A(f"""
s_sub_u32 s{sCnt}, s{sCnt}, 1
s_cmp_eq_u32 s{sCnt}, 0
s_cbranch_scc1 B_END
s_branch B_POLL
""")
    A.label("B_POLLED")
    A("s_mov_b64 exec, -1")
    A("STAMP 7")
    A.label("B_ROUND")
    A(f"""
v_bfe_u32 v{vLim}, v{vTbl}, 12, 12
v_mov_b32 v245, v{vLim}
v_subrev_u32 v{vLim}, s{sLo}, v{vLim}
v_min_i32 v{vLim}, s{sR}, v{vLim}
v_and_b32 v{vT}, 1, v{vTID}
v_lshlrev_b32 v{vT}, 2, v{vT}
v_sub_u32 v{vLim}, v{vLim}, v{vT}
v_and_b32 v{tmp}, 0xfff, v{vTbl}
v_add3_u32 v{tmp}, v{tmp}, v{vC25}, v{vT}
v_add_u32 v{tmp}, s{sLo}, v{tmp}
v_lshlrev_b32 v{tmp}, 2, v{tmp}
v_mov_b32 v{tmp2+1}, 0x7ffffff0
s_mov_b32 s{sT}, {WS_REC}
""")
    for g in range(4):
        A(f"v_cmp_lt_i32 vcc, {8*g}, v{vLim}")
        A(f"v_cndmask_b32 v{tmp2}, v{tmp2+1}, v{tmp}, vcc")
        A(f"buffer_load_dwordx4 v[{R+4*g}:{R+4*g+3}], v{tmp2}, s[{SW}:{SW+3}], s{sT} offen offset:{32*g} sc1")
    A(f"s_cmp_eq_u32 s{sFirst}, 0")
    A("s_cbranch_scc1 B_NOTFIRST")
    if not OPT["lcearly"]:
        srd(A, SX, pX, N_NODES, stride=128)
        srd(A, SE, pE, N_EDGES, stride=32)
        lane_consts(A)
    A(f"""
v_lshlrev_b32 v1, 4, v{vLane}
v_add_u32 v1, {L_WST}, v1
""")
    if not OPT["wearly"]:
        for u in range(16): A(f"ds_read_b128 v[{W+4*u}:{W+4*u+3}], v1 offset:{1024*u}")
        for c in range(4): A(f"ds_read_b128 v[{We+4*c}:{We+4*c+3}], v1 offset:{1024*(16+c)}")
    A(f"s_mov_b32 s{sFirst}, 0")
    A("s_branch B_COUNT")
    A.label("B_NOTFIRST")
    A("s_waitcnt lgkmcnt(0)")
    A("s_barrier")
    A.label("B_COUNT")
    A(f"""
v_mov_b32 v246, {L_FLAG}
ds_max_u32 v246, v245
v_mov_b32 v{vT}, 1
""")
    def a4(j):
        A(f"v_lshrrev_b32 v{A4+j}, 24, v{R+j}")
        A(f"v_and_b32 v{A4+j}, 0xfc, v{A4+j}")
    A("s_waitcnt vmcnt(2)")
    for j in range(8): a4(j)
    for g in range(4):
        if g >= 2:
            A(f"s_waitcnt vmcnt({3 - g})")
            for i in range(4): a4(4 * g + i)
        for i in range(4):
            A(f"v_cmpx_lt_i32 vcc, {8*g+i}, v{vLim}")
            if i % 2 == 0: A("s_cbranch_execz B_COUNTED")
            A(f"ds_add_rtn_u32 v{RK+4*g+i}, v{A4+4*g+i}, v{vT} offset:{L_CNT}")
    A.label("B_COUNTED")
    A(f"""
s_mov_b64 exec, -1
s_waitcnt vmcnt(0) lgkmcnt(0)
s_barrier
STAMP 8
""")
    A(f"""
v_mov_b32 v{tmp2}, 0
ds_read_b32 v{tmp}, v{vN6} offset:{L_CNT}
ds_read_b32 v{tmp2}, v{tmp2} offset:{L_FLAG}
v_cmp_gt_u32 vcc, s{sNn}, v{vLane}
s_waitcnt lgkmcnt(0)
v_readfirstlane_b32 s{sMax}, v{tmp2}
v_add_u32 v{NT}, 3, v{tmp}
v_lshrrev_b32 v{NT}, 2, v{NT}
v_max_u32 v{NT}, 1, v{NT}
v_cndmask_b32 v{NT}, 0, v{NT}, vcc
v_mov_b32 v{NT+1}, v{NT}
""")
    wave_scan(A, NT + 1)
    es(A, "j")
    A(f"""
v_readlane_b32 s{sTot}, v{NT+1}, 63
v_sub_u32 v{NT+4}, v{NT+1}, v{NT}
v_lshlrev_b32 v{NT+4}, 2, v{NT+4}
v_mov_b32 v{NT+5}, v{vOhp}
v_lshlrev_b32 v{NT+6}, 10, v{vLane}
s_cmp_gt_u32 s{sTot}, {CAPQ}
s_cbranch_scc1 B_OVERFLOW
s_and_saveexec_b64 s[{sEx}:{sEx+1}], vcc
v_add_u32 v{vdeg}, v{vdeg}, v{tmp}
v_lshlrev_b32 v{tmp}, 1, v{vN6}
ds_write_b64 v{tmp}, v[{NT+4}:{NT+5}] offset:{L_NTAB}
s_mov_b64 exec, s[{sEx}:{sEx+1}]
v_mov_b32 v{tmp}, s{sWave}
v_lshl_add_u32 v{tmp2}, v{tmp}, 2, v{NT+4}
B_QFILL:
v_cmpx_lt_u32 vcc, v{tmp}, v{NT}
s_cbranch_execz B_QFILLED
ds_write_b32 v{tmp2}, v{NT+6} offset:{L_QADDR}
v_add_u32 v{tmp}, 8, v{tmp}
v_add_u32 v{tmp2}, 32, v{tmp2}
s_branch B_QFILL
B_QFILLED:
s_mov_b64 exec, -1
v_mov_b32 v{vT}, {L_LIST}
s_mov_b32 s{sT4}, 0x3fff
s_waitcnt lgkmcnt(0)
""")
    def scatter_batch(groups, tag):
        if groups[0] >= 2: A(f"v_cmpx_lt_i32 vcc, {8*groups[0]}, v{vLim}")
        for n, g in enumerate(groups):
            for i in range(4):
                j = 4 * g + i; t = NT + 8 + 4 * (4 * n + i)
                A(f"v_lshlrev_b32 v{tmp}, 1, v{A4+j}")
                A(f"ds_read_b64 v[{t}:{t+1}], v{tmp} offset:{L_NTAB}")
        A("s_waitcnt lgkmcnt(0)")
        def body(g, i):
            j = 4 * g + i; t = NT + 8 + 4 * (4 * groups.index(g) + i)
            A(f"v_add_u32 v{t}, v{t}, v{RK+j}")
            A(f"v_and_or_b32 v{t+2}, v{R+j}, s{sT4}, v{t+1}")
            A(f"v_bfe_u32 v{t+3}, v{R+j}, 14, 12")
            A(f"v_lshl_add_u32 v{t}, v{t}, 3, v{vT}")
            A(f"v_add_u32 v{t+3}, v{vC25}, v{t+3}")
            A(f"ds_write_b64 v{t}, v[{t+2}:{t+3}]")
        sort_slots(A, body, groups, tag)
    scatter_batch([0, 1], "B_SC1")
    A.label("B_SC1")
    A(f"""
s_mov_b64 exec, -1
v_cmp_lt_i32 vcc, 16, v{vLim}
s_cbranch_vccz B_SC3
""")
    scatter_batch([2], "B_SC2")
    A.label("B_SC2")
    A(f"""
s_mov_b64 exec, -1
v_cmp_lt_i32 vcc, 24, v{vLim}
s_cbranch_vccz B_SC3
""")
    scatter_batch([3], "B_SC3")
    A.label("B_SC3")
    A("s_mov_b64 exec, -1")
    A(f"""
s_add_u32 s{sT}, s{sTot}, 7
s_lshr_b32 s{sT}, s{sT}, 3
s_lshr_b32 s{sT2}, s{sT}, 3
s_and_b32 s{sT3}, s{sT}, 7
s_mul_i32 s{sT0}, s{sT2}, s{sWave}
s_min_u32 s{sN}, s{sWave}, s{sT3}
s_add_u32 s{sT0}, s{sT0}, s{sN}
s_cmp_lt_u32 s{sWave}, s{sT3}
s_cselect_b32 s{sN}, 1, 0
s_add_u32 s{sN}, s{sN}, s{sT2}
""")
    if OPT["skew"]:
        k = OPT["skew"]
        A(f"""
s_cmp_lt_u32 s{sT2}, {2*k + 1}
s_cbranch_scc1 B_NOSKEW
s_min_u32 s{sT3}, s{sWave}, 4
s_sub_u32 s{sT4}, s{sWave}, s{sT3}
s_sub_u32 s{sT3}, s{sT3}, s{sT4}
s_mul_i32 s{sT3}, s{sT3}, {k}
s_add_u32 s{sT0}, s{sT0}, s{sT3}
s_cmp_lt_u32 s{sWave}, 4
s_cselect_b32 s{sT3}, {k}, {-k & 0xffffffff}
s_add_u32 s{sN}, s{sN}, s{sT3}
B_NOSKEW:
""")
    A(f"""
s_mul_i32 s{sT}, s{sT0}, {TB}
s_add_u32 s{sT}, s{sT}, {L_LIST}
v_add_u32 v{aX}, s{sT}, v{cX}
v_add_u32 v{aG}, s{sT}, v{cG}
v_add_u32 v{aO}, s{sT}, v{cO}
s_lshl_b32 s{sT}, s{sT0}, 5
s_add_u32 s{sT}, s{sT}, {L_QADDR}
v_mov_b32 v{aN}, s{sT}
v_add_u32 v{aQ}, s{sT}, v{v16h}
s_waitcnt lgkmcnt(0)
s_barrier
""")
    for _ in range(OPT["diagsleep"]): A("s_sleep 36")
    A(f"""
STAMP 12
s_cmp_eq_u32 s{sN}, 0
s_cbranch_scc1 B_NOTILES
s_cmp_lg_u32 s{sMode}, 0
s_cbranch_scc1 B_SAFE
""")
    main_loop(A, True)
    A.label("B_SAFE")
    main_loop(A, False)
    A.label("B_NOTILES")
    load_w2(A)
    if OPT["stagger"]: A("s_barrier")
    if OPT["stagger"] == 2: A("s_barrier")
    A.label("B_LOOPEND")
    A(f"""
s_setprio 0
STAMP 10
CSTAMP 14
s_waitcnt vmcnt(0)
""")
    A(f"""
v_lshrrev_b32 v3, 5, v{vLane}
s_and_b32 s{sT}, s{sWave}, 1
s_lshl_b32 s{sT}, s{sT}, 6
v_lshlrev_b32 v4, 3, v3
v_add_u32 v4, s{sT}, v4
""")
    A(f"""
s_waitcnt vmcnt(0) lgkmcnt(0)
s_barrier
s_add_u32 s{sLo}, s{sLo}, s{sR}
s_cmp_ge_u32 s{sLo}, s{sMax}
s_cbranch_scc1 B_FINISH
""")
    fill_lists(A)
    A("s_branch B_ROUND")
    A.label("B_OVERFLOW")
    A(f"s_mov_b32 s{sR}, 8")
    A.label("B_RESTART")
    A(f"""
s_barrier
s_mov_b32 s{sLo}, 0
v_mov_b32 v{vdeg}, 0
v_mov_b32 v{chk}, 0
v_mov_b32 v{chk+1}, 0
""")
    fill_lists(A)
    zero_s(A)
    A("s_branch B_ROUND")
    A.label("B_FINISH")
    SB = L_LIST
    wf = lambda s_: (216 + 4 * s_) if s_ < 6 else (120 + 4 * (s_ - 6))
    BU = E
    A(f"""
v_lshlrev_b32 v{tmp}, 4, v{vTID}
""")
    for j in range(5):
        A(f"ds_read_b128 v[{E+4*j}:{E+4*j+3}], v{tmp} offset:{L_S + 8192*j}")
    tr_addr(A, 11, L_W2, 128)
    A(f"s_and_b32 s{sT}, s{sWave}, 1")
    A(f"s_lshl_b32 s{sT}, s{sT}, 6")
    A(f"v_add_u32 v11, s{sT}, v11")
    A(f"""
v_mov_b32 v5, 0x71800000
v_cmp_nlt_f32 vcc, v{chk}, v5
v_cmp_nlt_f32 s[{sEx}:{sEx+1}], v{chk+1}, v5
s_or_b64 vcc, vcc, s[{sEx}:{sEx+1}]
v_lshlrev_b32 v6, 2, v{vLane}
ds_write_b32 v6, v{vdeg} offset:{L_DEG}
""")
    for s_ in range(4):
        A(f"ds_read_b64_tr_b16 v[{wf(s_)}:{wf(s_)+1}], v11 offset:{2048*s_}")
        A(f"ds_read_b64_tr_b16 v[{wf(s_)+2}:{wf(s_)+3}], v11 offset:{2048*s_ + 512}")
    A(f"""
v_lshrrev_b32 v7, 6, v{vTID}
v_mul_u32_u24 v7, {SBSTR}, v7
v_and_b32 v8, 63, v{vTID}
v_lshl_add_u32 v7, v8, 2, v7
v_add_u32 v7, {SB}, v7
v_mov_b32 v9, {f2u(1.0 / SCALE):#x}
v_mov_b32 v10, 0
s_waitcnt lgkmcnt(9)
""")
    for j in range(10): A(f"v_cvt_f32_f64 v{D[1]+j}, v[{E+2*j}:{E+2*j+1}]")
    for s_ in range(4, 8):
        A(f"ds_read_b64_tr_b16 v[{wf(s_)}:{wf(s_)+1}], v11 offset:{2048*s_}")
        A(f"ds_read_b64_tr_b16 v[{wf(s_)+2}:{wf(s_)+3}], v11 offset:{2048*s_ + 512}")
    for j in range(10): A(f"v_mul_f32 v{D[1]+j}, v9, v{D[1]+j}")
    for j in range(5):
        A(f"v_cvt_pk_bf16_f32 v{E+j}, v{D[1]+2*j}, v{D[1]+2*j+1}")
        A(f"ds_write_b32 v7, v{E+j} offset:{8*SBSTR*j}")
    for j in range(10): A(f"v_fmac_f32 v10, 0, v{D[1]+j}")
    A(f"v_cmp_u_f32 s[{sEx}:{sEx+1}], v10, v10")
    A(f"s_or_b64 vcc, vcc, s[{sEx}:{sEx+1}]")
    A(f"""
s_cmp_eq_u64 vcc, 0
s_cbranch_scc1 B_NOFLAG
v_mov_b32 v5, {L_FLAG}
v_mov_b32 v6, 1
ds_write_b32 v5, v6 offset:4
""")
    A.label("B_NOFLAG")
    A(f"""
s_lshr_b32 s{sT}, s{sWave}, 1
s_lshl_b32 s{sT}, s{sT}, 5
v_and_b32 v2, 31, v{vLane}
v_add_u32 v2, s{sT}, v2
v_mul_u32_u24 v5, {SBSTR}, v2
v_lshl_add_u32 v5, v3, 4, v5
v_add_u32 v5, {SB}, v5
v_lshlrev_b32 v6, 2, v2
v_add_u32 v8, s{sStart}, v2
v_lshlrev_b32 v8, 7, v8
v_add_u32 v8, v8, v4
v_mov_b32 v9, {L_FLAG}
""")
    B2 = vB2
    for g in range(4):
        A(f"v_lshlrev_b32 v{BU+4*g}, 16, v{B2+2*g}")
        A(f"v_and_b32 v{BU+4*g+1}, 0xffff0000, v{B2+2*g}")
        A(f"v_lshlrev_b32 v{BU+4*g+2}, 16, v{B2+2*g+1}")
        A(f"v_and_b32 v{BU+4*g+3}, 0xffff0000, v{B2+2*g+1}")
    srd(A, SO, pOut, N_NODES * 128)
    A(f"""
s_waitcnt lgkmcnt(0)
s_barrier
ds_read_b32 v10, v9 offset:4
ds_read_b32 v7, v6 offset:{L_DEG}
""")
    for s_ in range(8):
        A(f"ds_read_b128 v[{X+4*s_}:{X+4*s_+3}], v5 offset:{32*s_}")
    A(f"""
s_waitcnt lgkmcnt(9)
v_readfirstlane_b32 s{sT}, v10
s_cmp_lg_u32 s{sMode}, 0
s_cbranch_scc1 B_OUT
s_cmp_eq_u32 s{sT}, 0
s_cbranch_scc1 B_OUT
s_mov_b32 s{sMode}, 1
s_waitcnt lgkmcnt(0)
""")
    lane_consts(A)
    A("s_branch B_RESTART")
    A.label("B_OUT")
    A(f"""
s_cmp_ge_u32 s{sWave}, 4
s_cbranch_scc1 {"B_FLUSH" if OPT["stamps"] else "B_END"}
""")
    d = D[0]
    for s_ in range(8):
        A(f"s_waitcnt lgkmcnt({7 - s_})")
        A(f"v_mfma_f32_32x32x16_bf16 v[{d}:{d+15}], v[{wf(s_)}:{wf(s_)+3}], v[{X+4*s_}:{X+4*s_+3}], {'0' if s_ == 0 else f'v[{d}:{d+15}]'}")
    A(f"""
v_cvt_f32_u32 v7, v7
v_cmp_gt_u32 vcc, s{sNn}, v2
""")
    for j in range(16):
        A(f"v_fma_f32 v{d+j}, v7, v{BU+j}, v{d+j}")
    A(f"s_and_saveexec_b64 s[{sEx}:{sEx+1}], vcc")
    for g in range(4):
        A(f"v_cvt_pk_bf16_f32 v{D[1]+2*g}, v{d+4*g}, v{d+4*g+1}")
        A(f"v_cvt_pk_bf16_f32 v{D[1]+2*g+1}, v{d+4*g+2}, v{d+4*g+3}")
        A(f"buffer_store_dwordx2 v[{D[1]+2*g}:{D[1]+2*g+1}], v8, s[{SO}:{SO+3}], 0 offen offset:{16*g}")
    if OPT["stamps"]:
        A.label("B_FLUSH")
        A("s_waitcnt vmcnt(0)")
        A("STAMP 12" if False else "STAMP 15")
        stamp_flush(A, 16)
    A.label("B_END")
    A("s_endpgm")
    A.pad()
    bad = A.check_loop("B_LOOPS", "s_cbranch_scc0 B_LOOPS")
    assert not bad, bad
    return A

def main(path):
    k = kernel()
    hdr = open("cdna_kernels/" + NAME + ".s.ref").read().split("; Override launch geometry")[0]
    s = hdr
    s += "; One workgroup per CU: workgroup c sorts edge chunk c by destination bucket, then processes bucket c.\n"
    s += f"; @launch grid=({NB},1,1) block=(512,1,1) lds={LDS_B}\n"
    s += '.amdgcn_target "amdgcn-amd-amdhsa--gfx950"\n.text\n'
    s += f".globl {KB}\n.p2align 8\n.type {KB},@function\n" + k.text()
    acc = (NVGPR + 3) // 4 * 4
    s += f""".section .rodata,"a"
.p2align 6
.amdhsa_kernel {KB}
  .amdhsa_next_free_vgpr {NVGPR}
  .amdhsa_next_free_sgpr 102
  .amdhsa_accum_offset {acc}
  .amdhsa_group_segment_fixed_size 0
  .amdhsa_kernarg_size 88
  .amdhsa_user_sgpr_count 2
  .amdhsa_user_sgpr_kernarg_segment_ptr 1
  .amdhsa_system_sgpr_workgroup_id_x 1
.end_amdhsa_kernel
"""
    open(path, "w").write(s)

if __name__ == "__main__":
    main(OPT["out"] or "cdna_kernels/" + NAME + ".s")
```

```python
import sys, struct
from asmlib import Asm

NAME = "gather_scatter__edge_featured_mpnn_mpnn__graph"
KB = NAME + "_kernel"
N_NODES = 10000; N_EDGES = 640000; NB = 256; CH = 2500
WS_TBL = 0; WS_REC = NB * NB * 8; WS_END = WS_REC + N_EDGES * 4 + 4096
BF_ONE = 0x3F80
SCALE = -1.4426950408889634
def f2u(x): return struct.unpack("<I", struct.pack("<f", x))[0]

OPT = dict(prio=True, stamps=False, noadd=False, nodma=False, nomfma=False, novalu=False, xwarm=False, ewarm=False, psched=((2, 1), (1, 0)), estream=0, es=(4, 3, 3), touch=False, sl=((0, 1), (2,), (3,), (4,), (5, 6)), sidelate=True, elast=False, eph=3, edist=1, xph=3, clip=True, ttbl=False, ppoll=False, wearly=False, predelay=0, w0=True, diagsleep=0, lcearly=False, psleep=2, qskip=False, recpol=' sc1', fflush=True, prioflip=False, defer=False, layout='', skew=1, es2='', stagger=1, seqform=True, dmaspread=True, late=False, prime2=True, out=None)
for a in sys.argv[1:]:
    if "=" in a:
        k, v = a.split("=", 1); OPT[k] = eval(v)

L_S = 0; L_CNT = 40960; L_NTAB = 41216; L_DEG = 42240; L_FLAG = 42496; L_QT = 42752
L_QADDR = 57088; L_QEND = 60416; L_OHT = 65024; L_OHZ = 65536; L_XB0 = 65792; XBS = 6144
L_LIST = L_XB0 + 8 * XBS; LIST_BYTES = 25600; L_Z = L_LIST + LIST_BYTES; LDS_B = L_Z + 20480
L_HIST = 0; L_BASE = 1024; L_SORT = 2048; L_WRAW = L_XB0; L_XROW = L_XB0 + 40960; L_WST = L_Z
L_W2 = L_Z
QSTR = 112; CAPQ = 768; SBSTR = 272
TB = 256

vTID = 0
aX, aG, aO, aQ, aN = 1, 2, 3, 4, 5
xr = [6, 7, 8, 9]; eAddr = 10; vQ = 11; qbase = 12; c1 = 13; lanecol = 14; ohaddr = 15
xi = [16, 18, 20, 22]; ei = 24; node0 = 26; tmp = 27; chk = 28; tmp2 = 30
qa = [32, 36]
E = 40; D = [56, 72]; X = 88; Ea = 104; OH = 108; Qx = 112; We = 128; W = 144
vTbl = 208; vdeg = 210; vLane = 211; vN6 = 212; vOhp = 213; vC25 = 214; vLim = 215
TU = [216, 224]; F64 = 232; vT = 240; v16h = 241
cX, cG, cO = 242, 243, 244
EaB = [Ea, 248] if OPT['edist'] == 1 else [Ea, Ea]; EL = [248, 252]
NVGPR = 252 if OPT['edist'] == 1 else 256
R = 40; RK = 56; A4 = 72; NT = 88

SX = 4; SE = 8; SW = 12; SO = 16; SP = 20
sEx = 24; sEx2 = 26; sT = 28; sT2 = 29; sT3 = 30; sT4 = 31
sWave = 32; sStart = 33; sNn = 34; sS6 = 35; sXB = 36; sN = 37; sT0 = 38; sMode = 39
sR = 40; sLo = 41; sMax = 42; sTagLo = 43; sTot = 44; sTagB = 45; sCnt = 46
pX, pE, pSrc, pDst, pW1, pB1, pW2, pB2 = 48, 50, 52, 54, 56, 58, 60, 62
pOut, pDbg, pWs = 96, 98, 100
WS_STAMP = 8 << 20

def srd(A, d, base, size, stride=0):
    A(f"s_mov_b32 s{d}, s{base}")
    A(f"s_and_b32 s{d+1}, s{base+1}, 0xffff")
    if stride: A(f"s_or_b32 s{d+1}, s{d+1}, {stride << 16:#x}")
    A(f"s_mov_b32 s{d+2}, {size}")
    A(f"s_mov_b32 s{d+3}, 0x20000")

def stamp_flush(A, n):
    if not OPT["stamps"]: return
    A("s_waitcnt vmcnt(0) lgkmcnt(0)")
    A("s_mov_b64 exec, -1")
    A(f"s_lshl_b32 s{sT}, s2, 4")
    A(f"s_add_u32 s{sT}, s{sT}, s{sWave}")
    A(f"s_lshl_b32 s{sT}, s{sT}, 6")
    A(f"s_add_u32 s{sT}, s{sT}, {WS_STAMP}")
    A(f"s_add_u32 s{sEx}, s{pWs}, s{sT}")
    A(f"s_addc_u32 s{sEx+1}, s{pWs+1}, 0")
    A("v_mov_b32 v1, 0")
    for i in range(n):
        A(f"v_mov_b32 v2, s{64+2*i}")
        A(f"global_store_dword v1, v2, s[{sEx}:{sEx+1}] offset:{4*i}")
    A("s_waitcnt vmcnt(0)")

def wave_scan(A, v):
    for sh in (1, 2, 4, 8):
        A(f"v_add_u32_dpp v{v}, v{v}, v{v} row_shr:{sh} row_mask:0xf bank_mask:0xf")
    A(f"v_add_u32_dpp v{v}, v{v}, v{v} row_bcast:15 row_mask:0xa bank_mask:0xf")
    A(f"v_add_u32_dpp v{v}, v{v}, v{v} row_bcast:31 row_mask:0xc bank_mask:0xf")

def fill_lists(A):
    A(f"v_lshlrev_b32 v{tmp}, 4, v{vTID}")
    A(f"v_add_u32 v{tmp2}, {L_LIST}, v{tmp}")
    for i in range(4): A(f"v_mov_b32 v{E+i}, -1")
    for i in range(4): A(f"v_mov_b32 v{E+4+i}, 0")
    for j in range(3):
        A(f"ds_write_b128 v{tmp2}, v[{E}:{E+3}] offset:{8192*j}")
    A(f"v_cmp_gt_u32 vcc, {(L_QEND - L_QADDR) // 16}, v{vTID}")
    A(f"s_and_saveexec_b64 s[{sEx}:{sEx+1}], vcc")
    A(f"ds_write_b128 v{tmp}, v[{E+4}:{E+7}] offset:{L_QADDR}")
    A(f"v_cmp_gt_u32 vcc, {(LIST_BYTES - 3 * 8192) // 16}, v{vTID}")
    A(f"s_and_b64 exec, exec, vcc")
    A(f"ds_write_b128 v{tmp2}, v[{E}:{E+3}] offset:{8192*3}")
    A(f"v_cmp_gt_u32 vcc, 16, v{vTID}")
    A(f"s_and_b64 exec, exec, vcc")
    A(f"ds_write_b128 v{tmp}, v[{E+4}:{E+7}] offset:{L_CNT}")
    A(f"s_mov_b64 exec, s[{sEx}:{sEx+1}]")

def zero_s(A):
    for j in range(5):
        A(f"ds_write_b128 v{tmp}, v[{E+4}:{E+7}] offset:{L_S + 8192*j}")

def chain(c, d, par=0):
    q = lambda r: f"v[{r}:{r+3}]"
    dd = f"v[{d}:{d+15}]"
    M = []
    for s in range(4):
        M.append(f"v_mfma_f32_32x32x16_bf16 {dd}, {q(X+4*s)}, {q(W+16*s+4*c)}, {'0' if s == 0 else dd}")
    me = f"v_mfma_f32_32x32x16_bf16 {dd}, {q(EaB[par])}, {q(We+4*c)}, {dd}"
    mo = f"v_mfma_f32_32x32x16_bf16 {dd}, {q(OH)}, {q(Qx+4*c)}, {dd}"
    return M + ([mo, me] if OPT["elast"] else [me, mo])

def dma_x(A):
    for i in range(4):
        A(f"s_add_u32 m0, s{sXB}, {1024*i}")
        A(f"s_nop 0")
        A(f"buffer_load_dwordx4 v[{xi[i]}:{xi[i]+1}], s[{SX}:{SX+3}], 0 idxen offen lds")
def load_e(A, par, land=False):
    r = EL[par] if land else EaB[par]
    A(f"buffer_load_dwordx4 v[{r}:{r+3}], v[{ei}:{ei+1}], s[{SE}:{SE+3}], 0 idxen offen")
def read_xidx(k): return [f"ds_read_u16 v{xi[i]}, v{aX} offset:{TB*k + 8*[0,2,8,10][i]}" for i in range(4)]
def read_eidx(k): return [f"ds_read_b32 v{ei}, v{aG} offset:{TB*k}"]
def read_a(eslot):
    L = [f"ds_read_b128 v[{X+4*s}:{X+4*s+3}], v{xr[s]}" for s in range(4)]
    L.append(f"ds_read_b128 v[{OH}:{OH+3}], v{ohaddr} offset:1")
    return L
def read_q(c): return f"ds_read_b128 v[{Qx+4*c}:{Qx+4*c+3}], v{vQ} offset:{32*QSTR*c}"
def calc_vq():
    return [f"v_add_u32 v{tmp}, v{node0}, v{c1}", f"v_lshrrev_b32 v{tmp}, 14, v{tmp}",
            f"v_lshl_add_u32 v{vQ}, v{tmp}, 5, v{qbase}", f"v_add_u32 v{ohaddr}, v{ohaddr}, v{v16h}"]
def read_meta(k, par):
    return [f"ds_read_b128 v[{qa[par]}:{qa[par]+3}], v{aQ} offset:{32*k}",
            f"ds_read_b32 v{node0}, v{aN} offset:{32*k}",
            f"ds_read_u16 v{ohaddr}, v{aO} offset:{TB*k}"]

def pk_list(d, c):
    e = E; p = lambda r: f"v[{r}:{r+1}]"
    T = TU[c & 1]; U = T + 4; Tp = TU[(c + 1) & 1]; Up = Tp + 4
    L = []
    if OPT["seqform"]:
        oct_ = ((0, 0), (8, 2))
        for o, j in oct_: L.append(f"v_pk_mul_f32 {p(Up+j)}, {p(Up+j)}, {p(Tp+j)}")
        for o, j in oct_: L.append(f"v_pk_fma_f32 {p(d+o)}, {p(d+o)}, {p(e+o+2)}, {p(d+o)}")
        for o, j in oct_: L.append(f"v_pk_add_f32 {p(e+o)}, {p(e+o)}, 1.0 op_sel_hi:[1,0]")
        for k in (1, 2, 3):
            last = k == 3
            if k > 1:
                for o, j in oct_: L.append(f"v_pk_fma_f32 {p(d+o)}, {p(d+o)}, {p(e+o+2*k)}, {p(d+o)}")
            for o, j in oct_: L.append(f"v_pk_fma_f32 {p(U+j) if last else p(d+o)}, {p(d+o+2*k)}, {p(e+o)}, {p(d+o)}")
            for o, j in oct_: L.append(f"v_pk_fma_f32 {p(T+j) if last else p(e+o)}, {p(e+o)}, {p(e+o+2*k)}, {p(e+o)}")
        L.append(f"v_pk_fma_f32 {p(chk)}, {p(T)}, {p(T+2)}, {p(chk)}")
        return L
    for o, j in ((0, 0), (8, 2)):
        L.append(f"v_pk_mul_f32 {p(Up+j)}, {p(Up+j)}, {p(Tp+j)}")
    for o in (0, 8):
        L.append(f"v_pk_add_f32 {p(e+o+2)}, {p(e+o+2)}, 1.0 op_sel_hi:[1,0]")
        L.append(f"v_pk_add_f32 {p(e+o+6)}, {p(e+o+6)}, 1.0 op_sel_hi:[1,0]")
    for o in (0, 8):
        L.append(f"v_pk_fma_f32 {p(d+o)}, {p(d+o)}, {p(e+o+2)}, {p(d+o+2)}")
        L.append(f"v_pk_fma_f32 {p(d+o+4)}, {p(d+o+4)}, {p(e+o+6)}, {p(d+o+6)}")
    for o in (0, 8):
        L.append(f"v_pk_fma_f32 {p(d+o)}, {p(d+o+2)}, {p(e+o)}, {p(d+o)}")
        L.append(f"v_pk_fma_f32 {p(d+o+4)}, {p(d+o+6)}, {p(e+o+4)}, {p(d+o+4)}")
    for o in (0, 8):
        L.append(f"v_pk_fma_f32 {p(e+o)}, {p(e+o)}, {p(e+o+2)}, {p(e+o+2)}")
        L.append(f"v_pk_fma_f32 {p(e+o+4)}, {p(e+o+4)}, {p(e+o+6)}, {p(e+o+6)}")
    for o, j in ((0, 0), (8, 2)):
        L.append(f"v_pk_mul_f32 {p(T+j)}, {p(e+o)}, {p(e+o+4)}")
    for o in (0, 8):
        L.append(f"v_pk_mul_f32 {p(d+o)}, {p(d+o)}, {p(e+o+4)}")
    for o, j in ((0, 0), (8, 2)):
        L.append(f"v_pk_fma_f32 {p(U+j)}, {p(d+o+4)}, {p(e+o)}, {p(d+o)}")
    for j in (0, 2):
        L.append(f"v_pk_add_f32 {p(chk)}, {p(chk)}, {p(T+j)}")
    return L

def flush_q(c, q):
    U = TU[c & 1] + 4
    cv = [f"v_cvt_f64_f32 v[{F64+2*j}:{F64+2*j+1}], v{U+j}" for j in range(4)]
    ad = [f"ds_add_f64 v{q+j}, v[{F64+2*j}:{F64+2*j+1}] offset:{256*(c & 3)}" for j in range(4)]
    return cv, ad

def emit(A, x):
    if isinstance(x, tuple):
        _, sreg, lab, body = x
        A(f"s_cmp_eq_u32 s{sreg}, 0")
        A(f"s_cbranch_scc1 {lab}")
        for y in body: A(y)
        A.label(lab)
    else: A(x)

def flush_block(A, c, q, hflag, lab):
    U = TU[c & 1] + 4
    cv, ad = flush_q(c, q)
    if OPT["noadd"]: ad = [f"ds_read_b32 v{tmp2}, v{tmp2+1}"] * 4
    if not OPT["fflush"]:
        for x in cv + ad: A(x)
        return
    A(f"s_cmp_eq_u32 s{hflag}, 0")
    A(f"s_cbranch_scc1 {lab}a")
    A(f"v_add_f32 v{U}, v{U}, v{U+1}")
    A(f"v_add_f32 v{U+2}, v{U+2}, v{U+3}")
    A(f"v_add_f32 v{U}, v{U}, v{U+2}")
    A(cv[0]); A(ad[0])
    A(f"s_branch {lab}b")
    A.label(f"{lab}a")
    for x in cv + ad: A(x)
    A.label(f"{lab}b")

def tile_body(A, par, hp, hc):
    k = par; p = lambda r: f"v[{r}:{r+1}]"
    W0 = "s_waitcnt lgkmcnt(0)" if OPT["w0"] else None
    for ph in range(4):
        d = D[ph & 1]; dn = D[(ph + 1) & 1]
        M = chain((ph + 1) & 3, dn, par if ph < 3 else 1 - par)
        Tp = TU[(ph + 1) & 1]; Up = Tp + 4
        Tc = TU[ph & 1]; Uc = Tc + 4
        tr = [f"v_exp_f32 v{E+j}, v{d+j}" for j in range(16)]
        hB = hc if ph >= 1 else hp; qB = qa[par] if ph >= 1 else qa[1 - par]
        hD = hc if ph >= 2 else hp; qD = qa[par] if ph >= 2 else qa[1 - par]
        cB = (ph + 3) & 3
        prev_tail = lambda h: 0 if h else 4
        extra = {i: [] for i in range(7)}
        pre = []
        if ph == 0:
            extra[1] += read_meta(k + 1, 1 - par)[1:]
            extra[2] += [f"v_add_u32 v{qa[par]+j}, v{qa[par]+j}, v{lanecol}" for j in range(1 if hc else 4)]
        if ph == 1:
            pre += [f"s_waitcnt lgkmcnt({prev_tail(hp)})"]
            extra[1] += calc_vq() + [read_q(0), read_q(1)]
            extra[2] += read_xidx(k + 2) + read_eidx(k + 1 + OPT["edist"])
        if ph == 2:
            extra[1] += [read_q(2), read_meta(k + 1, 1 - par)[0]]
            extra[5] += [f"s_waitcnt vmcnt({1 if OPT['xph'] == 3 else 0})"] + read_a(1 - par)
        if ph == 3:
            pre += [f"s_waitcnt lgkmcnt({prev_tail(hc)})"]
            extra[1] += [read_q(3)]
            qn = qa[1 - par]
            extra[2] += [f"v_cmp_ne_u32 vcc, v{qn}, v{qn+3}"]
            extra[3] += ["s_cmp_eq_u64 vcc, 0", f"s_cselect_b32 s{sH[0]}, 1, 0"]
        for x in pre: A(x)
        xph = OPT["xph"]
        if ph == 3 and OPT["clip"]:
            A(f"s_cmp_ge_u32 s{sN}, 3")
            if xph == 3: A(f"s_cselect_b32 s{SX+2}, {N_NODES}, 0")
            if OPT["edist"] == 2: A(f"s_cmp_ge_u32 s{sN}, 4")
            A(f"s_cselect_b32 s{SE+2}, {N_EDGES}, 0")
        if ph == 3 and OPT["edist"] == 2:
            for j in range(4): A(f"v_mov_b32 v{Ea+j}, v{EL[1-par]+j}")
        if ph == 0 and xph == 0 and OPT["clip"]:
            A(f"s_cmp_ge_u32 s{sN}, 2")
            A(f"s_cselect_b32 s{SX+2}, {N_NODES}, 0")
        ti = 0
        for m in range(6):
            me_ = 5 if OPT["elast"] else 4
            if ph == 3 and m == me_ and OPT["edist"] == 1: A(f"s_waitcnt vmcnt({4 if xph == 3 else 0})")
            A(M[m])
            if ph == xph and not OPT["nodma"] and m < 4:
                A(f"s_add_u32 m0, s{sXB}, {1024*m}")
                A("s_nop 0")
                A(f"buffer_load_dwordx4 v[{xi[m]}:{xi[m]+1}], s[{SX}:{SX+3}], 0 idxen offen lds")
            if ph == 3 and not OPT["nodma"] and m == me_ and OPT["eph"] == 3:
                if OPT["edist"] == 1: load_e(A, par)
                else: load_e(A, 1 - par, land=True)
            if ph == OPT["eph"] and ph < 3 and m == 1:
                A(f"s_cmp_ge_u32 s{sN}, 2")
                A(f"s_cselect_b32 s{SE+2}, {N_EDGES}, 0")
                load_e(A, 1 - par)
            if m == 5 and ph == 2:
                for x in extra[5]: A(x)
            if m == 0:
                if hB:
                    for x in merged_tail(Tp, qB, cB): A(x)
                else:
                    for j in range(4): A(f"v_rcp_f32 v{Tp+j}, v{Tp+j}")
            else:
                n = 3 if m < 5 else 4
                for x in tr[ti:ti + n]: A(x)
                ti += n
            if not (m == 5 and ph == 2):
                for x in extra[m]: A(x)
        assert ti == 16
        if not hD:
            cv, ad = flush_q(ph + 2, qD)
            for x in cv + ad: A(x)
        pk = pk_list(d, ph)
        if not hB:
            for x in pk[:2]: A(x)
        for x in pk[2:-1]: A(x)
        if hc:
            A(f"v_pk_mul_f32 {p(F64+4)}, {p(Uc)}, {p(Tc+2)}")
            A(f"v_pk_fma_f32 {p(Uc)}, {p(Uc+2)}, {p(Tc)}, {p(F64+4)}")
            A(f"v_pk_mul_f32 {p(Tc)}, {p(Tc)}, {p(Tc+2)}")
        else:
            A(pk[-1])

def merged_tail(Tp, q, c):
    Up = Tp + 4
    return [f"v_mul_f32 v{Tp+2}, v{Tp}, v{Tp+1}",
            f"v_mul_f32 v{Up+2}, v{Up}, v{Tp+1}",
            f"v_fma_f32 v{Up+2}, v{Up+1}, v{Tp}, v{Up+2}",
            f"v_rcp_f32 v{Tp+3}, v{Tp+2}",
            f"v_add_f32 v{chk}, v{chk}, v{Tp+2}",
            f"v_mul_f32 v{Up+2}, v{Up+2}, v{Tp+3}",
            f"v_cvt_f64_f32 v[{F64}:{F64+1}], v{Up+2}",
            f"ds_add_f64 v{q}, v[{F64}:{F64+1}] offset:{256*c}"]

def drain_fast(A, par, hc):
    p = lambda r: f"v[{r}:{r+1}]"
    Tp = TU[1]; Up = Tp + 4
    if hc:
        for x in merged_tail(Tp, qa[par], 3): A(x)
        return
    cv2, ad2 = flush_q(2, qa[par])
    cv3, ad3 = flush_q(3, qa[par])
    for x in ([f"v_rcp_f32 v{Tp+j}, v{Tp+j}" for j in range(4)] + cv2 + ad2 +
              [f"v_pk_mul_f32 {p(Up+j)}, {p(Up+j)}, {p(Tp+j)}" for j in (0, 2)] + cv3 + ad3): A(x)

def fast_loop(A):
    A(f"s_cmp_eq_u32 s{sH[0]}, 0")
    A("s_cbranch_scc0 B_T001")
    order = [(0, 0, 0), (1, 0, 0), (1, 0, 1), (0, 1, 0), (0, 0, 1), (1, 1, 1), (0, 1, 1), (1, 1, 0)]
    for n, (par, hp, hc) in enumerate(order):
        A.label(f"B_T{par}{hp}{hc}")
        tile_body(A, par, hp, hc)
        if par == 1:
            for r in (aX, aG, aO): A(f"v_add_u32 v{r}, {2*TB}, v{r}")
            for r in (aQ, aN): A(f"v_add_u32 v{r}, 64, v{r}")
        A(f"s_sub_u32 s{sN}, s{sN}, 1")
        A(f"s_cmp_eq_u32 s{sN}, 1")
        A(f"s_cbranch_scc0 B_W2T{par}{hp}{hc}")
        load_w2(A)
        A.label(f"B_W2T{par}{hp}{hc}")
        if OPT["prio"]:
            for rem, pr in OPT["psched"]:
                A(f"s_cmp_eq_u32 s{sN}, {rem}")
                A(f"s_cbranch_scc0 B_PT{par}{hp}{hc}{rem}")
                A(f"s_setprio {pr}")
                A.label(f"B_PT{par}{hp}{hc}{rem}")
        A(f"s_cmp_eq_u32 s{sN}, 0")
        A(f"s_cbranch_scc1 B_DRAIN{par}{hc}")
        A(f"s_cmp_eq_u32 s{sH[0]}, 0")
        nxt0 = (1 - par, hc, 0); nxt1 = (1 - par, hc, 1)
        follow = order[n + 1] if n + 1 < len(order) else None
        name = lambda t: f"B_T{t[0]}{t[1]}{t[2]}"
        if follow == nxt0:
            A(f"s_cbranch_scc0 {name(nxt1)}")
        elif follow == nxt1:
            A(f"s_cbranch_scc1 {name(nxt0)}")
        else:
            A(f"s_cbranch_scc0 {name(nxt1)}")
            A(f"s_branch {name(nxt0)}")
    for par in (0, 1):
        for hc in (0, 1):
            A.label(f"B_DRAIN{par}{hc}")
            drain_fast(A, par, hc)
            A("s_branch B_LOOPEND")

def tile_iter_safe(A, par):
    k = par; e = E; p = lambda r: f"v[{r}:{r+1}]"
    for ph in range(4):
        d = D[ph & 1]; dn = D[(ph + 1) & 1]
        if ph == 0:
            for x in read_meta(k + 1, 1 - par): A(x)
        if ph == 1:
            A("s_waitcnt lgkmcnt(4)")
            for x in calc_vq(): A(x)
            for j in range(4): A(f"v_add_u32 v{qa[1-par]+j}, v{qa[1-par]+j}, v{lanecol}")
            for x in [read_q(0), read_q(1)] + read_xidx(k + 2) + read_eidx(k + 2): A(x)
        if ph == 2: A(read_q(2))
        if ph == 3:
            A("s_waitcnt lgkmcnt(4)")
            dma_x(A)
            A("s_waitcnt vmcnt(4)")
            load_e(A, par)
            A(read_q(3))
        for m in chain((ph + 1) & 3, dn, par if ph < 3 else 1 - par): A(m)
        if ph == 2:
            A("s_waitcnt vmcnt(1)")
            for x in read_a(1 - par): A(x)
        for j in range(16): A(f"v_exp_f32 v{e+j}, v{d+j}")
        for j in range(0, 16, 2): A(f"v_pk_add_f32 {p(e+j)}, {p(e+j)}, 1.0 op_sel_hi:[1,0]")
        for j in range(16): A(f"v_rcp_f32 v{e+j}, v{e+j}")
        for j in range(0, 16, 2): A(f"v_pk_mul_f32 {p(d+j)}, {p(d+j)}, {p(e+j)}")
        for o in (0, 8):
            A(f"v_pk_add_f32 {p(d+o)}, {p(d+o)}, {p(d+o+2)}")
            A(f"v_pk_add_f32 {p(d+o+4)}, {p(d+o+4)}, {p(d+o+6)}")
        for o in (0, 8): A(f"v_pk_add_f32 {p(d+o)}, {p(d+o)}, {p(d+o+4)}")
        cvt = ((d, F64), (d + 1, F64 + 2), (d + 8, F64 + 4), (d + 9, F64 + 6))
        for r, t in cvt: A(f"v_cvt_f64_f32 v[{t}:{t+1}], v{r}")
        for j, (r, t) in enumerate(cvt): A(f"ds_add_f64 v{qa[par]+j}, v[{t}:{t+1}] offset:{256*ph}")

def load_w2(A, keep=False):
    a, b = sEx, sEx + 1
    srd(A, SO, pW2, 128 * 64 * 2)
    A(f"v_lshlrev_b32 v247, 4, v{vLane}")
    A(f"s_lshl_b32 s{a}, s{sWave}, 11")
    for j in range(2):
        A(f"s_add_u32 m0, s{a}, {L_W2 + 1024*j}")
        A(f"s_add_u32 s{b}, s{a}, {1024*j}")
        A(f"buffer_load_dwordx4 v247, s[{SO}:{SO+3}], s{b} offen lds")
    srd(A, SO, pB2, 128)
    A(f"s_mov_b32 m0, {L_W2 + 16384}")
    A("s_nop 0")
    A(f"buffer_load_dwordx4 v247, s[{SO}:{SO+3}], 0 offen lds")

def main_loop(A, fast):
    tag = "F" if fast else "S"
    if OPT["prio"]: A("s_setprio 3")
    if OPT["stagger"]:
        A(f"s_cmp_lt_u32 s{sWave}, 4")
        A(f"s_cbranch_scc1 B_STG0{tag}")
        A("s_barrier")
        A.label(f"B_STG0{tag}")
    for x in read_xidx(0) + read_eidx(0): A(x)
    for x in read_meta(0, 0): A(x)
    A(f"s_mov_b32 s{SX+2}, {N_NODES}")
    A(f"s_mov_b32 s{SE+2}, {N_EDGES}")
    A("s_waitcnt lgkmcnt(0)")
    dma_x(A); load_e(A, 0)
    for x in read_eidx(1): A(x)
    for x in calc_vq(): A(x)
    if not fast:
        for j in range(4): A(f"v_add_u32 v{qa[0]+j}, v{qa[0]+j}, v{lanecol}")
    for c in range(4): A(read_q(c))
    for x in read_xidx(1): A(x)
    if fast:
        for t in TU:
            for j in range(4):
                A(f"v_mov_b32 v{t+j}, 1.0")
                A(f"v_mov_b32 v{t+4+j}, 0")
        for j in range(4): A(f"v_mov_b32 v{qa[1]+j}, v{lanecol}")
        A(f"v_cmp_ne_u32 vcc, v{qa[0]}, v{qa[0]+3}")
        A(f"s_mov_b32 s{sH[1]}, 0")
        A("s_cmp_eq_u64 vcc, 0")
        A(f"s_cselect_b32 s{sH[0]}, 1, 0")
    A("s_waitcnt vmcnt(0)")
    if OPT["stagger"]:
        A(f"s_cmp_ge_u32 s{sWave}, 4")
        A(f"s_cbranch_scc1 B_STG1{tag}")
        A("s_barrier")
        A.label(f"B_STG1{tag}")
    for x in read_a(0): A(x)
    A("s_waitcnt lgkmcnt(0)")
    A(f"s_cmp_ge_u32 s{sN}, 2")
    A(f"s_cselect_b32 s{SX+2}, {N_NODES}, 0")
    A(f"s_cselect_b32 s{SE+2}, {N_EDGES}, 0")
    if OPT["edist"] == 2 and fast:
        load_e(A, 1, land=True)
        for x in read_eidx(2): A(x)
        dma_x(A)
        A(f"s_cmp_ge_u32 s{sN}, 3")
        A(f"s_cselect_b32 s{SE+2}, {N_EDGES}, 0")
        A("s_waitcnt lgkmcnt(0)")
        load_e(A, 0, land=True)
    else:
        if OPT["xph"] == 3 or not fast: dma_x(A)
        if OPT["eph"] == 3 or not fast: load_e(A, 1)
    for m in chain(0, D[0], 0): A(m)
    A(f"s_cmp_eq_u32 s{sN}, 1")
    A(f"s_cbranch_scc0 B_W2P{tag}")
    load_w2(A, keep=True)
    A.label(f"B_W2P{tag}")
    if OPT["prio"]: A("s_setprio 2")
    A("s_nop 7")
    A("s_nop 3")
    if fast: A("STAMP 9"); A("CSTAMP 13")
    if fast:
        fast_loop(A)
        return
    A.label(f"B_LOOP{tag}")
    for par in (0, 1):
        tile_iter_safe(A, par)
        if par == 1:
            for r in (aX, aG, aO): A(f"v_add_u32 v{r}, {2*TB}, v{r}")
            for r in (aQ, aN): A(f"v_add_u32 v{r}, 64, v{r}")
        A(f"s_sub_u32 s{sN}, s{sN}, 1")
        A(f"s_cmp_eq_u32 s{sN}, 1")
        A(f"s_cbranch_scc0 B_W2{tag}{par}")
        load_w2(A, keep=True)
        A.label(f"B_W2{tag}{par}")
        A(f"s_cmp_eq_u32 s{sN}, 0")
        if par == 0: A(f"s_cbranch_scc1 B_LOOPEND")
        else: A(f"s_cbranch_scc0 B_LOOP{tag}")
    A("s_branch B_LOOPEND")

def sort_slots(A, body, groups, tag, wait=False):
    for g in groups:
        if wait: A(f"s_waitcnt vmcnt({3 - g})")
        for i in range(4):
            A(f"v_cmpx_lt_i32 vcc, {8*g+i}, v{vLim}")
            if i % 2 == 0: A(f"s_cbranch_execz {tag}")
            body(g, i)

def estream(A, first, n, vaddr):
    srd(A, SP, pE, N_EDGES * 32)
    A(f"s_mul_i32 s{sT}, s2, {CH * 32}")
    A(f"s_mul_i32 s{sT2}, s{sWave}, 10240")
    A(f"s_add_u32 s{sT}, s{sT}, s{sT2}")
    A(f"s_add_u32 s{sT}, s{sT}, {1024 * first}")
    A(f"v_lshlrev_b32 v{vaddr}, 4, v{vLane}")
    for j in range(n):
        A(f"buffer_load_dwordx4 v[{F64}:{F64+3}], v{vaddr}, s[{SP}:{SP+3}], s{sT} offen offset:{1024*j}")

sDef = 3; sFirst = 47; sES = 47; sQch = 28; sH = [29, 30]; SES = 4
def es_init(A):
    if not OPT["es2"]: return
    srd(A, SE, pE, N_EDGES * 32)
    A(f"s_mul_i32 s{sES}, s2, {CH * 32}")
    A(f"s_mul_i32 s{sT4}, s{sWave}, 10240")
    A(f"s_add_u32 s{sES}, s{sES}, s{sT4}")
    A(f"v_lshlrev_b32 v247, 4, v{vLane}")
def es(A, tag):
    if tag not in OPT["es2"]: return
    A(f"buffer_load_dwordx4 v[{F64}:{F64+3}], v247, s[{SRDE[0]}:{SRDE[0]+3}], s{sES} offen")
    A(f"s_add_u32 s{sES}, s{sES}, 1024")
SRDE = [SE]

def tr_addr(A, dst, base, rowbytes):
    A(f"v_lshrrev_b32 v{tmp}, 5, v{vLane}")
    A(f"v_bfe_u32 v{tmp2}, v{vLane}, 2, 2")
    A(f"v_lshl_add_u32 v{tmp}, v{tmp}, 3, v{tmp2}")
    A(f"v_mul_u32_u24 v{dst}, {rowbytes}, v{tmp}")
    A(f"v_bfe_u32 v{tmp}, v{vLane}, 4, 1")
    A(f"v_lshl_add_u32 v{dst}, v{tmp}, 5, v{dst}")
    A(f"v_and_b32 v{tmp}, 3, v{vLane}")
    A(f"v_lshl_add_u32 v{dst}, v{tmp}, 3, v{dst}")
    A(f"v_add_u32 v{dst}, {base}, v{dst}")

def lane_consts(A):
    A(f"""
v_add_u32 v{vN6}, s{sS6}, v{vLane}
v_and_b32 v{vN6}, 63, v{vN6}
v_lshlrev_b32 v{vN6}, 2, v{vN6}
v_and_b32 v119, 15, v{vLane}
v_lshlrev_b32 v119, 5, v119
v_add_u32 v119, {L_OHT - 1}, v119
v_lshlrev_b32 v{vOhp}, 16, v119
v_and_b32 v112, 31, v{vLane}
v_lshrrev_b32 v113, 5, v{vLane}
v_bfe_u32 v114, v{vLane}, 1, 3
v_lshlrev_b32 v115, 7, v112
v_add_u32 v115, s{sXB}, v115
""")
    for s in range(4):
        A(f"v_or_b32 v116, {2*s}, v113")
        A(f"v_xor_b32 v116, v116, v114")
        A(f"v_lshl_add_u32 v{xr[s]}, v116, 4, v115")
    A(f"""
v_lshlrev_b32 v{eAddr}, 4, v{vLane}
v_add_u32 v{eAddr}, s{sXB}, v{eAddr}
v_add_u32 v{eAddr}, 0x1000, v{eAddr}
v_mul_u32_u24 v{qbase}, {QSTR}, v112
v_lshl_add_u32 v{qbase}, v113, 4, v{qbase}
v_add_u32 v{qbase}, {L_QT}, v{qbase}
v_xor_b32 v{c1}, 1, v113
v_lshlrev_b32 v{c1}, 13, v{c1}
v_lshlrev_b32 v{lanecol}, 3, v112
v_lshlrev_b32 v{v16h}, 4, v113
v_and_b32 v116, 7, v{vLane}
v_lshrrev_b32 v117, 4, v{vLane}
v_xor_b32 v118, v116, v117
v_lshlrev_b32 v{xi[0]+1}, 4, v118
v_mov_b32 v{xi[2]+1}, v{xi[0]+1}
v_xor_b32 v118, 4, v118
v_lshlrev_b32 v{xi[1]+1}, 4, v118
v_mov_b32 v{xi[3]+1}, v{xi[1]+1}
v_lshlrev_b32 v{ei+1}, 4, v113
v_bfe_u32 v116, v{vLane}, 3, 1
v_bfe_u32 v117, v{vLane}, 4, 1
v_lshlrev_b32 v118, 4, v113
v_lshl_add_u32 v118, v116, 2, v118
v_add_u32 v118, v118, v117
v_lshlrev_b32 v{cX}, 3, v118
v_bfe_u32 v116, v{vLane}, 2, 1
v_lshlrev_b32 v118, 4, v116
v_bfe_u32 v116, v{vLane}, 4, 1
v_lshl_add_u32 v118, v116, 3, v118
v_and_b32 v116, 1, v{vLane}
v_lshl_add_u32 v118, v116, 2, v118
v_bfe_u32 v116, v{vLane}, 3, 1
v_lshl_add_u32 v118, v116, 1, v118
v_bfe_u32 v116, v{vLane}, 1, 1
v_add_u32 v118, v118, v116
v_lshlrev_b32 v{cO}, 3, v118
v_add_u32 v{cG}, 4, v{cO}
v_add_u32 v{cO}, 2, v{cO}
""")

def kernel():
    A = Asm(OPT["stamps"])
    A.label(KB)
    A(f"""
s_cmp_ge_u32 s2, {NB}
s_cbranch_scc1 B_END
STAMP 0
CSTAMP 11
s_load_dwordx16 s[48:63], s[0:1], 0
s_load_dwordx4 s[96:99], s[0:1], 64
s_load_dwordx2 s[100:101], s[0:1], 80
s_memrealtime s[{sEx2}:{sEx2+1}]
v_lshrrev_b32 v1, 6, v0
v_and_b32 v{vLane}, 63, v0
v_readfirstlane_b32 s{sWave}, v1
s_mul_i32 s{sStart}, s2, 625
s_add_u32 s{sT}, s{sStart}, {625 + 15}
s_add_u32 s{sStart}, s{sStart}, 15
s_lshr_b32 s{sStart}, s{sStart}, 4
s_lshr_b32 s{sT}, s{sT}, 4
s_sub_u32 s{sNn}, s{sT}, s{sStart}
s_and_b32 s{sS6}, s{sStart}, 63
s_mul_i32 s{sXB}, s{sWave}, {XBS}
s_add_u32 s{sXB}, s{sXB}, {L_XB0}
s_mov_b32 s{sMode}, 0
s_mov_b32 s{sR}, 32
s_mov_b32 s{sLo}, 0
s_mov_b32 s{sCnt}, 0x400000
v_mov_b32 v{vdeg}, 0
v_mov_b32 v{chk}, 0
v_mov_b32 v{chk+1}, 0
v_mov_b32 v40, 0
v_mov_b32 v41, 0
v_mov_b32 v42, 0
v_mov_b32 v43, 0
v_lshlrev_b32 v2, 4, v{vTID}
v_cmp_gt_u32 vcc, 64, v{vTID}
s_and_saveexec_b64 s[{sEx}:{sEx+1}], vcc
ds_write_b128 v2, v[40:43] offset:{L_HIST}
s_mov_b64 exec, s[{sEx}:{sEx+1}]
v_cmp_gt_u32 vcc, 0x88, v{vTID}
s_and_saveexec_b64 s[{sEx}:{sEx+1}], vcc
v_lshrrev_b32 v3, 3, v{vTID}
v_and_b32 v4, 7, v{vTID}
v_lshrrev_b32 v5, 1, v3
v_and_b32 v6, 1, v3
v_lshlrev_b32 v6, 4, v6
v_mov_b32 v7, {BF_ONE:#x}
v_lshlrev_b32 v7, v6, v7
v_cmp_eq_u32 vcc, v4, v5
v_lshlrev_b32 v8, 2, v{vTID}
v_cndmask_b32 v7, 0, v7, vcc
v_add_u32 v8, {L_OHT}, v8
ds_write_b32 v8, v7
s_mov_b64 exec, s[{sEx}:{sEx+1}]
v_cmp_gt_u32 vcc, 16, v{vTID}
s_and_saveexec_b64 s[{sEx}:{sEx+1}], vcc
ds_write_b128 v2, v[40:43] offset:{L_FLAG}
s_mov_b64 exec, s[{sEx}:{sEx+1}]
s_waitcnt lgkmcnt(0)
STAMP 1
""")
    A(f"""
s_cmp_lg_u32 s2, 0
s_cbranch_scc1 A_NONONCE
s_cmp_lg_u32 s{sWave}, 0
s_cbranch_scc1 A_NONONCE
s_and_b32 s{sEx2+1}, s{sEx2+1}, 0xff
s_or_b32 s{sEx2+1}, s{sEx2+1}, 0x80000000
v_mov_b32 v4, s{sEx2}
v_mov_b32 v5, s{sEx2+1}
v_mov_b32 v3, 0
s_mov_b64 exec, 1
global_store_dwordx2 v3, v[4:5], s[{pDbg}:{pDbg+1}] sc1
s_mov_b64 exec, -1
""")
    A.label("A_NONONCE")
    if OPT["touch"]:
        ptrs = [pW1, pX, pB1, pWs, pE, pW2, pOut, pB2]
        A("v_mov_b32 v3, 0")
        for w, p in enumerate(ptrs):
            A(f"s_cmp_lg_u32 s{sWave}, {w}")
            A(f"s_cbranch_scc1 A_T{w}")
            A(f"global_load_dword v{F64+5}, v3, s[{p}:{p+1}]")
            A.label(f"A_T{w}")
    srd(A, SO, pDst, N_EDGES * 4)
    srd(A, SP, pSrc, N_EDGES * 4)
    A(f"""
s_mul_i32 s{sT}, s2, {CH * 4}
v_add_u32 v3, 0x2000, v2
v_mov_b32 v4, 0x7ffffff0
v_cmp_gt_u32 vcc, {CH // 4 - 512}, v{vTID}
v_lshlrev_b32 v18, 2, v{vTID}
v_add_u32 v18, 0x2000, v18
v_cndmask_b32 v3, v4, v3, vcc
v_cmp_gt_u32 vcc, {CH - 2048}, v{vTID}
s_mov_b64 s[{sEx2}:{sEx2+1}], vcc
v_cndmask_b32 v18, v4, v18, vcc
buffer_load_dwordx4 v[40:43], v2, s[{SO}:{SO+3}], s{sT} offen
buffer_load_dword v48, v18, s[{SO}:{SO+3}], s{sT} offen
buffer_load_dwordx4 v[44:47], v2, s[{SP}:{SP+3}], s{sT} offen
buffer_load_dword v52, v18, s[{SP}:{SP+3}], s{sT} offen
""")
    def side(i):
        if i == 0:
            srd(A, SO, pW1, 144 * 128 * 2)
            srd(A, SP, pX, N_NODES * 128)
            A(f"v_lshlrev_b32 v1, 4, v{vLane}")
            A(f"s_lshl_b32 s{sT4}, s{sWave}, 10")
        if i < 5:
            A(f"s_add_u32 m0, s{sT4}, {L_WRAW + 8192*i}")
            A(f"s_add_u32 s{sT3}, s{sT4}, {8192*i}")
            A(f"buffer_load_dwordx4 v1, s[{SO}:{SO+3}], s{sT3} offen lds")
        if i == 5:
            A(f"""
s_lshl_b32 s{sT3}, s{sWave}, 3
v_lshrrev_b32 v5, 3, v{vLane}
v_add_u32 v5, s{sT3}, v5
v_bfe_u32 v6, v5, 1, 3
v_and_b32 v7, 7, v{vLane}
v_xor_b32 v6, v6, v7
v_add_u32 v5, s{sStart}, v5
v_lshlrev_b32 v5, 7, v5
v_lshl_add_u32 v5, v6, 4, v5
s_add_u32 m0, s{sT4}, {L_XROW}
s_and_b32 s{sT3}, s{sWave}, 3
buffer_load_dwordx4 v5, s[{SP}:{SP+3}], 0 offen lds
""")
        if i == 6:
            A(f"""
s_lshl_b32 s{sT3}, s{sT3}, 5
v_and_b32 v5, 31, v{vLane}
v_lshrrev_b32 v222, 5, v{vLane}
v_add_u32 v221, s{sT3}, v5
v_lshlrev_b32 v9, 1, v221
global_load_ushort v223, v9, s[{pB1}:{pB1+1}]
""")
    late = OPT["sidelate"]
    if not late:
        for i in range(7): side(i)
    A("s_barrier")
    A(f"""
v_lshlrev_b32 v11, 16, v{vTID}
v_lshlrev_b32 v12, 14, v{vTID}
v_add_u32 v12, {2048 << 14:#x}, v12
s_mov_b32 s{sT2}, 429497
STAMP 2
s_waitcnt vmcnt({2 if OPT["sidelate"] else 9})
STAMP 3
""")
    es_init(A)
    es(A, "a")
    def hist(base, dst, n=4):
        for i in range(n): A(f"v_mul_u32_u24 v{base+i}, s{sT2}, v{dst+i}")
        for i in range(n): A(f"v_lshrrev_b32 v{base+i}, 22, v{base+i}")
        for i in range(n):
            A(f"v_and_b32 v{base+i}, 0x3fc, v{base+i}")
            A(f"ds_add_rtn_u32 v{base+8+i}, v{base+i}, v13 offset:{L_HIST}")
    def recs(dst, src, eid, n=4):
        for i in range(n):
            A(f"v_lshl_or_b32 v{dst+i}, v{dst+i}, 26, v{src+i}")
            A(f"v_add_u32 v{dst+i}, v{dst+i}, v{eid}")
            if i: A(f"v_add_u32 v{dst+i}, {i << 14:#x}, v{dst+i}")
    A("v_mov_b32 v13, 1")
    hist(56, 40)
    A(f"s_mov_b64 exec, s[{sEx2}:{sEx2+1}]")
    hist(60, 48, 1)
    A("s_mov_b64 exec, -1")
    A(f"s_waitcnt vmcnt({0 if late else 7})")
    recs(40, 44, 11)
    recs(48, 52, 12, 1)
    A.label("A_H1")
    A(f"""
s_waitcnt lgkmcnt(0)
s_barrier
v_lshlrev_b32 v14, 4, v{vLane}
ds_read_b128 v[72:75], v14 offset:{L_HIST}
v_mov_b32 v15, 0
s_cmp_lg_u32 s{sWave}, 0
s_cbranch_scc1 A_NOTAG0
global_load_dwordx2 v[16:17], v15, s[{pDbg}:{pDbg+1}] sc1
A_NOTAG0:
""")
    if late:
        for i in OPT['sl'][0]: side(i)
    A(f"""
s_waitcnt lgkmcnt(0)
v_add_u32 v76, v72, v73
v_add_u32 v77, v76, v74
v_add_u32 v78, v77, v75
v_mov_b32 v79, v78
""")
    if late:
        for i in OPT['sl'][1]: side(i)
    es(A, "c")
    wave_scan(A, 79)
    A(f"""
v_sub_u32 v80, v79, v78
v_add_u32 v81, v80, v72
v_add_u32 v82, v80, v76
v_add_u32 v83, v80, v77
ds_write_b128 v14, v[80:83] offset:{L_BASE}
""")
    if late:
        for i in OPT['sl'][2]: side(i)
    A("s_waitcnt lgkmcnt(0)")
    for i in range(5): A(f"ds_read_b32 v{56+i}, v{56+i} offset:{L_BASE}")
    if late:
        for i in OPT['sl'][3]: side(i)
    for i in range(4):
        A(f"s_waitcnt lgkmcnt({4-i})")
        A(f"v_add_lshl_u32 v{56+i}, v{56+i}, v{64+i}, 2")
        A(f"ds_write_b32 v{56+i}, v{40+i} offset:{L_SORT}")
    A(f"s_mov_b64 exec, s[{sEx2}:{sEx2+1}]")
    A("s_waitcnt lgkmcnt(4)")
    A(f"v_add_lshl_u32 v60, v60, v68, 2")
    A(f"ds_write_b32 v60, v48 offset:{L_SORT}")
    A("s_mov_b64 exec, -1")
    if late:
        for i in OPT['sl'][4]: side(i)
    A.label("A_H2")
    srd(A, SW, pWs, WS_END)
    A(f"""
s_waitcnt lgkmcnt(0)
s_barrier
STAMP 4
ds_read_b128 v[40:43], v2 offset:{L_SORT}
ds_read_b128 v[44:47], v2 offset:{L_SORT + 8192}
s_mul_i32 s{sT}, s2, {CH * 4}
s_add_u32 s{sT}, s{sT}, {WS_REC}
s_waitcnt lgkmcnt(1)
buffer_store_dwordx4 v[40:43], v2, s[{SW}:{SW+3}], s{sT} offen sc1
s_waitcnt lgkmcnt(0)
buffer_store_dwordx4 v[44:47], v3, s[{SW}:{SW+3}], s{sT} offen sc1
""")
    A(f"""
s_cmp_lg_u32 s{sWave}, 0
s_cbranch_scc1 A_DRAIN
""")
    A.label("A_NONCE")
    A(f"""
s_waitcnt vmcnt(0)
v_readfirstlane_b32 s{sTagLo}, v16
v_readfirstlane_b32 s{sTagB}, v17
s_cmp_lt_i32 s{sTagB}, 0
s_cbranch_scc1 A_HAVETAG
A_NONCE2:
s_sub_u32 s{sCnt}, s{sCnt}, 1
s_cmp_eq_u32 s{sCnt}, 0
s_cbranch_scc1 B_END
s_sleep 1
global_load_dwordx2 v[16:17], v15, s[{pDbg}:{pDbg+1}] sc1
s_waitcnt vmcnt(0)
v_readfirstlane_b32 s{sTagLo}, v16
v_readfirstlane_b32 s{sTagB}, v17
s_cmp_lt_i32 s{sTagB}, 0
s_cbranch_scc0 A_NONCE2
""")
    A.label("A_HAVETAG")
    A(f"""
v_and_b32 v17, 0xff, v17
v_mov_b32 v15, {L_FLAG}
ds_write_b64 v15, v[16:17] offset:16
s_and_b32 s{sTagB}, s{sTagB}, 0xff
""")
    A.label("A_DRAIN")
    A(f"""
s_waitcnt vmcnt(0) lgkmcnt(0)
s_barrier
s_cmp_lg_u32 s{sWave}, 0
s_cbranch_scc1 A_PUBLISHED
s_lshl_b32 s{sT}, s{sTagB}, 24
v_mov_b32 v41, s{sTagLo}
v_mov_b32 v43, s{sTagLo}
v_mov_b32 v45, s{sTagLo}
v_mov_b32 v47, s{sTagLo}
v_lshl_or_b32 v40, v72, 12, v80
v_lshl_or_b32 v42, v73, 12, v81
v_lshl_or_b32 v44, v74, 12, v82
v_lshl_or_b32 v46, v75, 12, v83
v_or_b32 v40, s{sT}, v40
v_or_b32 v42, s{sT}, v42
v_or_b32 v44, s{sT}, v44
v_or_b32 v46, s{sT}, v46
""")
    if not OPT["ttbl"]:
        A(f"""
v_lshlrev_b32 v14, 5, v{vLane}
s_lshl_b32 s{sT}, s2, 11
s_add_u32 s{sT}, s{sT}, {WS_TBL}
buffer_store_dwordx4 v[40:43], v14, s[{SW}:{SW+3}], s{sT} offen sc1
buffer_store_dwordx4 v[44:47], v14, s[{SW}:{SW+3}], s{sT} offen offset:16 sc1
""")
    else:
        A(f"""
v_lshlrev_b32 v14, 13, v{vLane}
v_add_u32 v15, 0x1000, v14
s_lshl_b32 s{sT}, s2, 3
s_add_u32 s{sT}, s{sT}, {WS_TBL}
buffer_store_dwordx2 v[40:41], v14, s[{SW}:{SW+3}], s{sT} offen sc1
buffer_store_dwordx2 v[42:43], v14, s[{SW}:{SW+3}], s{sT} offen offset:2048 sc1
buffer_store_dwordx2 v[44:45], v15, s[{SW}:{SW+3}], s{sT} offen sc1
buffer_store_dwordx2 v[46:47], v15, s[{SW}:{SW+3}], s{sT} offen offset:2048 sc1
""")
    A.label("A_PUBLISHED")
    A("STAMP 5")
    A(f"v_mov_b32 v15, {L_FLAG}")
    A("ds_read_b64 v[16:17], v15 offset:16")
    A(f"""
v_lshrrev_b32 v4, 1, v{vTID}
v_mul_u32_u24 v{vC25}, {CH}, v4
v_lshlrev_b32 v4, {3 if OPT["ttbl"] else 11}, v4
s_waitcnt lgkmcnt(0)
v_readfirstlane_b32 s{sTagLo}, v16
v_readfirstlane_b32 s{sTagB}, v17
""")
    A(f"""
s_lshr_b32 s{sT}, s{sWave}, 2
s_lshl_b32 s{sT}, s{sT}, 12
s_add_u32 s{sT}, s{sT}, {L_XROW}
v_and_b32 v216, 31, v{vLane}
v_bfe_u32 v217, v{vLane}, 1, 3
v_lshlrev_b32 v216, 7, v216
v_add_u32 v216, s{sT}, v216
""")
    for s_ in range(4):
        A(f"v_or_b32 v218, {2*s_}, v222")
        A(f"v_xor_b32 v218, v218, v217")
        A(f"v_lshl_add_u32 v218, v218, 4, v216")
        A(f"ds_read_b128 v[{X+4*s_}:{X+4*s_+3}], v218")
    tr_addr(A, 216, L_WRAW, 256)
    A(f"""
s_lshr_b32 s{sT}, s{sWave}, 2
s_lshl_b32 s{sT}, s{sT}, 12
s_and_b32 s{sT2}, s{sWave}, 3
s_lshl_b32 s{sT2}, s{sT2}, 6
s_add_u32 s{sT}, s{sT}, s{sT2}
v_add_u32 v217, s{sT}, v216
v_add_u32 v218, s{sT2}, v216
""")
    WC = 112
    for j, (reg, off) in enumerate(((217, 0), (217, 32 * 256), (218, 128 * 256))):
        A(f"ds_read_b64_tr_b16 v[{WC+4*j}:{WC+1+4*j}], v{reg} offset:{off}")
        A(f"ds_read_b64_tr_b16 v[{WC+2+4*j}:{WC+3+4*j}], v{reg} offset:{off + 1024}")
    for s_ in range(4):
        A(f"ds_read_b64_tr_b16 v[{D[0]+4*s_}:{D[0]+4*s_+1}], v218 offset:{(64 + 16*s_) * 256}")
        A(f"ds_read_b64_tr_b16 v[{D[0]+4*s_+2}:{D[0]+4*s_+3}], v218 offset:{(64 + 16*s_) * 256 + 1024}")
    A(f"s_mov_b32 s{sT3}, {f2u(SCALE):#x}")
    A("s_waitcnt lgkmcnt(8)")
    for j in range(12):
        A(f"v_lshlrev_b32 v219, 16, v{WC+j}")
        A(f"v_and_b32 v220, 0xffff0000, v{WC+j}")
        A(f"v_mul_f32 v219, s{sT3}, v219")
        A(f"v_mul_f32 v220, s{sT3}, v220")
        A(f"v_cvt_pk_bf16_f32 v{WC+j}, v219, v220")
    A(f"""
v_lshlrev_b32 v219, 4, v{vLane}
s_lshl_b32 s{sT}, s{sWave}, 10
s_add_u32 s{sT}, s{sT}, {L_WST}
v_add_u32 v219, s{sT}, v219
""")
    A(f"ds_write_b128 v219, v[{WC}:{WC+3}]")
    A(f"ds_write_b128 v219, v[{WC+4}:{WC+7}] offset:8192")
    A("s_waitcnt lgkmcnt(2)")
    for s_ in range(4):
        A(f"v_mfma_f32_32x32x16_bf16 v[{D[1]}:{D[1]+15}], v[{X+4*s_}:{X+4*s_+3}], v[{D[0]+4*s_}:{D[0]+4*s_+3}], {'0' if s_ == 0 else f'v[{D[1]}:{D[1]+15}]'}")
    A(f"s_cmp_ge_u32 s{sWave}, 4")
    A("s_cbranch_scc1 B_NOWC")
    A(f"ds_write_b128 v219, v[{WC+8}:{WC+11}] offset:16384")
    A.label("B_NOWC")
    A(f"""
v_lshlrev_b32 v223, 16, v223
v_mul_f32 v223, s{sT3}, v223
v_mul_u32_u24 v224, {QSTR}, v221
s_lshr_b32 s{sT}, s{sWave}, 2
s_lshl_b32 s{sT}, s{sT}, 6
v_lshl_add_u32 v224, v222, 3, v224
v_add_u32 v224, s{sT}, v224
""")
    for j in range(16): A(f"v_fma_f32 v{D[1]+j}, v{D[1]+j}, s{sT3}, v223")
    for g in range(4):
        A(f"v_cvt_pk_bf16_f32 v{X+2*g}, v{D[1]+4*g}, v{D[1]+4*g+1}")
        A(f"v_cvt_pk_bf16_f32 v{X+2*g+1}, v{D[1]+4*g+2}, v{D[1]+4*g+3}")
    for g in range(2):
        A(f"ds_write_b64 v224, v[{X+2*g}:{X+2*g+1}] offset:{L_QT + 16*g}")
    A(f"s_cmp_ge_u32 s{sWave}, 4")
    A(f"s_cbranch_scc1 B_QDONE")
    for g in range(2, 4):
        A(f"ds_write_b64 v224, v[{X+2*g}:{X+2*g+1}] offset:{L_QT + 16*g}")
    A.label("B_QDONE")
    fill_lists(A)
    zero_s(A)
    if OPT["lcearly"]:
        srd(A, SX, pX, N_NODES, stride=128)
        srd(A, SE, pE, N_EDGES, stride=32)
        lane_consts(A)
    A("s_waitcnt lgkmcnt(0)")
    A("s_barrier")
    if OPT["wearly"]:
        A(f"v_lshlrev_b32 v1, 4, v{vLane}")
        A(f"v_add_u32 v1, {L_WST}, v1")
        for u in range(16): A(f"ds_read_b128 v[{W+4*u}:{W+4*u+3}], v1 offset:{1024*u}")
        for c in range(4): A(f"ds_read_b128 v[{We+4*c}:{We+4*c+3}], v1 offset:{1024*(16+c)}")
    for _ in range(OPT["predelay"]): A("s_sleep 8")
    A(f"""
s_lshl_b32 s{sT}, s2, {11 if OPT["ttbl"] else 3}
s_add_u32 s{sT}, s{sT}, {WS_TBL}
s_mov_b32 s{sCnt}, 0x400000
s_mov_b32 s{sFirst}, 1
STAMP 6
""")
    if not OPT["ppoll"]:
        A.label("B_POLL")
        A(f"""
buffer_load_dwordx2 v[{vTbl}:{vTbl+1}], v4, s[{SW}:{SW+3}], s{sT} offen sc1
s_waitcnt vmcnt(0)
v_lshrrev_b32 v5, 24, v{vTbl}
v_cmp_ne_u32 vcc, s{sTagLo}, v{vTbl+1}
v_cmp_ne_u32 s[{sEx}:{sEx+1}], s{sTagB}, v5
s_or_b64 vcc, vcc, s[{sEx}:{sEx+1}]
s_and_b64 exec, exec, vcc
s_cbranch_execz B_POLLED
s_sub_u32 s{sCnt}, s{sCnt}, 1
s_cmp_eq_u32 s{sCnt}, 0
s_cbranch_scc1 B_END
s_sleep {OPT["psleep"]}
s_branch B_POLL
""")
    else:
        P = (216, 218)
        A(f"buffer_load_dwordx2 v[{P[0]}:{P[0]+1}], v4, s[{SW}:{SW+3}], s{sT} offen sc1")
        A.label("B_POLL")
        for k in (0, 1):
            a, b = P[k], P[1 - k]
            A(f"""
s_sleep {OPT["psleep"]}
buffer_load_dwordx2 v[{b}:{b+1}], v4, s[{SW}:{SW+3}], s{sT} offen sc1
s_waitcnt vmcnt(1)
v_lshrrev_b32 v5, 24, v{a}
v_cmp_ne_u32 vcc, s{sTagLo}, v{a+1}
v_cmp_ne_u32 s[{sEx}:{sEx+1}], s{sTagB}, v5
s_or_b64 vcc, vcc, s[{sEx}:{sEx+1}]
s_and_b64 s[{sEx2}:{sEx2+1}], exec, vcc
s_andn2_b64 exec, exec, vcc
v_mov_b32 v{vTbl}, v{a}
s_mov_b64 exec, s[{sEx2}:{sEx2+1}]
s_cbranch_execz B_POLLED
""")
        A(f"""
s_sub_u32 s{sCnt}, s{sCnt}, 1
s_cmp_eq_u32 s{sCnt}, 0
s_cbranch_scc1 B_END
s_branch B_POLL
""")
    A.label("B_POLLED")
    A("s_mov_b64 exec, -1")
    A("STAMP 7")
    A.label("B_ROUND")
    A(f"""
v_bfe_u32 v{vLim}, v{vTbl}, 12, 12
v_mov_b32 v245, v{vLim}
v_subrev_u32 v{vLim}, s{sLo}, v{vLim}
v_min_i32 v{vLim}, s{sR}, v{vLim}
v_and_b32 v{vT}, 1, v{vTID}
v_lshlrev_b32 v{vT}, 2, v{vT}
v_sub_u32 v{vLim}, v{vLim}, v{vT}
v_and_b32 v{tmp}, 0xfff, v{vTbl}
v_add3_u32 v{tmp}, v{tmp}, v{vC25}, v{vT}
v_add_u32 v{tmp}, s{sLo}, v{tmp}
v_lshlrev_b32 v{tmp}, 2, v{tmp}
v_mov_b32 v{tmp2+1}, 0x7ffffff0
s_mov_b32 s{sT}, {WS_REC}
""")
    for g in range(4):
        A(f"v_cmp_lt_i32 vcc, {8*g}, v{vLim}")
        A(f"v_cndmask_b32 v{tmp2}, v{tmp2+1}, v{tmp}, vcc")
        A(f"buffer_load_dwordx4 v[{R+4*g}:{R+4*g+3}], v{tmp2}, s[{SW}:{SW+3}], s{sT} offen offset:{32*g} sc1")
    A(f"s_cmp_eq_u32 s{sFirst}, 0")
    A("s_cbranch_scc1 B_NOTFIRST")
    if not OPT["lcearly"]:
        srd(A, SX, pX, N_NODES, stride=128)
        srd(A, SE, pE, N_EDGES, stride=32)
        lane_consts(A)
    A(f"""
v_lshlrev_b32 v1, 4, v{vLane}
v_add_u32 v1, {L_WST}, v1
""")
    if not OPT["wearly"]:
        for u in range(16): A(f"ds_read_b128 v[{W+4*u}:{W+4*u+3}], v1 offset:{1024*u}")
        for c in range(4): A(f"ds_read_b128 v[{We+4*c}:{We+4*c+3}], v1 offset:{1024*(16+c)}")
    A(f"s_mov_b32 s{sFirst}, 0")
    A("s_branch B_COUNT")
    A.label("B_NOTFIRST")
    A("s_waitcnt lgkmcnt(0)")
    A("s_barrier")
    A.label("B_COUNT")
    A(f"""
v_mov_b32 v246, {L_FLAG}
ds_max_u32 v246, v245
v_mov_b32 v{vT}, 1
""")
    def a4(j):
        A(f"v_lshrrev_b32 v{A4+j}, 24, v{R+j}")
        A(f"v_and_b32 v{A4+j}, 0xfc, v{A4+j}")
    A("s_waitcnt vmcnt(2)")
    for j in range(8): a4(j)
    for g in range(4):
        if g >= 2:
            A(f"s_waitcnt vmcnt({3 - g})")
            for i in range(4): a4(4 * g + i)
        for i in range(4):
            A(f"v_cmpx_lt_i32 vcc, {8*g+i}, v{vLim}")
            if i % 2 == 0: A("s_cbranch_execz B_COUNTED")
            A(f"ds_add_rtn_u32 v{RK+4*g+i}, v{A4+4*g+i}, v{vT} offset:{L_CNT}")
    A.label("B_COUNTED")
    A(f"""
s_mov_b64 exec, -1
s_waitcnt vmcnt(0) lgkmcnt(0)
s_barrier
STAMP 8
""")
    A(f"""
v_mov_b32 v{tmp2}, 0
ds_read_b32 v{tmp}, v{vN6} offset:{L_CNT}
ds_read_b32 v{tmp2}, v{tmp2} offset:{L_FLAG}
v_cmp_gt_u32 vcc, s{sNn}, v{vLane}
s_waitcnt lgkmcnt(0)
v_readfirstlane_b32 s{sMax}, v{tmp2}
v_add_u32 v{NT}, 3, v{tmp}
v_lshrrev_b32 v{NT}, 2, v{NT}
v_max_u32 v{NT}, 1, v{NT}
v_cndmask_b32 v{NT}, 0, v{NT}, vcc
v_mov_b32 v{NT+1}, v{NT}
""")
    wave_scan(A, NT + 1)
    es(A, "j")
    A(f"""
v_readlane_b32 s{sTot}, v{NT+1}, 63
v_sub_u32 v{NT+4}, v{NT+1}, v{NT}
v_lshlrev_b32 v{NT+4}, 2, v{NT+4}
v_mov_b32 v{NT+5}, v{vOhp}
v_lshlrev_b32 v{NT+6}, 10, v{vLane}
s_cmp_gt_u32 s{sTot}, {CAPQ}
s_cbranch_scc1 B_OVERFLOW
s_and_saveexec_b64 s[{sEx}:{sEx+1}], vcc
v_add_u32 v{vdeg}, v{vdeg}, v{tmp}
v_lshlrev_b32 v{tmp}, 1, v{vN6}
ds_write_b64 v{tmp}, v[{NT+4}:{NT+5}] offset:{L_NTAB}
s_mov_b64 exec, s[{sEx}:{sEx+1}]
v_mov_b32 v{tmp}, s{sWave}
v_lshl_add_u32 v{tmp2}, v{tmp}, 2, v{NT+4}
B_QFILL:
v_cmpx_lt_u32 vcc, v{tmp}, v{NT}
s_cbranch_execz B_QFILLED
ds_write_b32 v{tmp2}, v{NT+6} offset:{L_QADDR}
v_add_u32 v{tmp}, 8, v{tmp}
v_add_u32 v{tmp2}, 32, v{tmp2}
s_branch B_QFILL
B_QFILLED:
s_mov_b64 exec, -1
v_mov_b32 v{vT}, {L_LIST}
s_mov_b32 s{sT4}, 0x3fff
s_waitcnt lgkmcnt(0)
""")
    def scatter_batch(groups, tag):
        if groups[0] >= 2: A(f"v_cmpx_lt_i32 vcc, {8*groups[0]}, v{vLim}")
        for n, g in enumerate(groups):
            for i in range(4):
                j = 4 * g + i; t = NT + 8 + 4 * (4 * n + i)
                A(f"v_lshlrev_b32 v{tmp}, 1, v{A4+j}")
                A(f"ds_read_b64 v[{t}:{t+1}], v{tmp} offset:{L_NTAB}")
        A("s_waitcnt lgkmcnt(0)")
        def body(g, i):
            j = 4 * g + i; t = NT + 8 + 4 * (4 * groups.index(g) + i)
            A(f"v_add_u32 v{t}, v{t}, v{RK+j}")
            A(f"v_and_or_b32 v{t+2}, v{R+j}, s{sT4}, v{t+1}")
            A(f"v_bfe_u32 v{t+3}, v{R+j}, 14, 12")
            A(f"v_lshl_add_u32 v{t}, v{t}, 3, v{vT}")
            A(f"v_add_u32 v{t+3}, v{vC25}, v{t+3}")
            A(f"ds_write_b64 v{t}, v[{t+2}:{t+3}]")
        sort_slots(A, body, groups, tag)
    scatter_batch([0, 1], "B_SC1")
    A.label("B_SC1")
    A(f"""
s_mov_b64 exec, -1
v_cmp_lt_i32 vcc, 16, v{vLim}
s_cbranch_vccz B_SC3
""")
    scatter_batch([2], "B_SC2")
    A.label("B_SC2")
    A(f"""
s_mov_b64 exec, -1
v_cmp_lt_i32 vcc, 24, v{vLim}
s_cbranch_vccz B_SC3
""")
    scatter_batch([3], "B_SC3")
    A.label("B_SC3")
    A("s_mov_b64 exec, -1")
    A(f"""
s_add_u32 s{sT}, s{sTot}, 7
s_lshr_b32 s{sT}, s{sT}, 3
s_lshr_b32 s{sT2}, s{sT}, 3
s_and_b32 s{sT3}, s{sT}, 7
s_mul_i32 s{sT0}, s{sT2}, s{sWave}
s_min_u32 s{sN}, s{sWave}, s{sT3}
s_add_u32 s{sT0}, s{sT0}, s{sN}
s_cmp_lt_u32 s{sWave}, s{sT3}
s_cselect_b32 s{sN}, 1, 0
s_add_u32 s{sN}, s{sN}, s{sT2}
""")
    if OPT["skew"]:
        k = OPT["skew"]
        A(f"""
s_cmp_lt_u32 s{sT2}, {2*k + 1}
s_cbranch_scc1 B_NOSKEW
s_min_u32 s{sT3}, s{sWave}, 4
s_sub_u32 s{sT4}, s{sWave}, s{sT3}
s_sub_u32 s{sT3}, s{sT3}, s{sT4}
s_mul_i32 s{sT3}, s{sT3}, {k}
s_add_u32 s{sT0}, s{sT0}, s{sT3}
s_cmp_lt_u32 s{sWave}, 4
s_cselect_b32 s{sT3}, {k}, {-k & 0xffffffff}
s_add_u32 s{sN}, s{sN}, s{sT3}
B_NOSKEW:
""")
    A(f"""
s_mul_i32 s{sT}, s{sT0}, {TB}
s_add_u32 s{sT}, s{sT}, {L_LIST}
v_add_u32 v{aX}, s{sT}, v{cX}
v_add_u32 v{aG}, s{sT}, v{cG}
v_add_u32 v{aO}, s{sT}, v{cO}
s_lshl_b32 s{sT}, s{sT0}, 5
s_add_u32 s{sT}, s{sT}, {L_QADDR}
v_mov_b32 v{aN}, s{sT}
v_add_u32 v{aQ}, s{sT}, v{v16h}
s_waitcnt lgkmcnt(0)
s_barrier
""")
    for _ in range(OPT["diagsleep"]): A("s_sleep 36")
    A(f"""
STAMP 12
s_cmp_eq_u32 s{sN}, 0
s_cbranch_scc1 B_NOTILES
s_cmp_lg_u32 s{sMode}, 0
s_cbranch_scc1 B_SAFE
""")
    main_loop(A, True)
    A.label("B_SAFE")
    main_loop(A, False)
    A.label("B_NOTILES")
    load_w2(A)
    if OPT["stagger"]: A("s_barrier")
    if OPT["stagger"] == 2: A("s_barrier")
    A.label("B_LOOPEND")
    A(f"""
s_setprio 0
STAMP 10
CSTAMP 14
s_waitcnt vmcnt(0)
""")
    A(f"""
v_lshrrev_b32 v3, 5, v{vLane}
s_and_b32 s{sT}, s{sWave}, 1
s_lshl_b32 s{sT}, s{sT}, 6
v_lshlrev_b32 v4, 3, v3
v_add_u32 v4, s{sT}, v4
""")
    A(f"""
s_waitcnt vmcnt(0) lgkmcnt(0)
s_barrier
s_add_u32 s{sLo}, s{sLo}, s{sR}
s_cmp_ge_u32 s{sLo}, s{sMax}
s_cbranch_scc1 B_FINISH
""")
    fill_lists(A)
    A("s_branch B_ROUND")
    A.label("B_OVERFLOW")
    A(f"s_mov_b32 s{sR}, 8")
    A.label("B_RESTART")
    A(f"""
s_barrier
s_mov_b32 s{sLo}, 0
v_mov_b32 v{vdeg}, 0
v_mov_b32 v{chk}, 0
v_mov_b32 v{chk+1}, 0
""")
    fill_lists(A)
    zero_s(A)
    A("s_branch B_ROUND")
    A.label("B_FINISH")
    SB = L_LIST
    wf = lambda s_: (216 + 4 * s_) if s_ < 6 else (120 + 4 * (s_ - 6))
    BU = E
    A(f"""
v_lshlrev_b32 v{tmp}, 4, v{vTID}
""")
    for j in range(5):
        A(f"ds_read_b128 v[{E+4*j}:{E+4*j+3}], v{tmp} offset:{L_S + 8192*j}")
    tr_addr(A, 11, L_W2, 128)
    A(f"s_and_b32 s{sT}, s{sWave}, 1")
    A(f"s_lshl_b32 s{sT}, s{sT}, 6")
    A(f"v_add_u32 v11, s{sT}, v11")
    A(f"""
v_mov_b32 v5, 0x71800000
v_cmp_nlt_f32 vcc, v{chk}, v5
v_cmp_nlt_f32 s[{sEx}:{sEx+1}], v{chk+1}, v5
s_or_b64 vcc, vcc, s[{sEx}:{sEx+1}]
v_lshlrev_b32 v6, 2, v{vLane}
ds_write_b32 v6, v{vdeg} offset:{L_DEG}
""")
    A(f"v_add_u32 v6, {L_W2 + 16384}, v4")
    for g in range(4): A(f"ds_read_b64 v[{104+2*g}:{105+2*g}], v6 offset:{16*g}")
    for s_ in range(4):
        A(f"ds_read_b64_tr_b16 v[{wf(s_)}:{wf(s_)+1}], v11 offset:{2048*s_}")
        A(f"ds_read_b64_tr_b16 v[{wf(s_)+2}:{wf(s_)+3}], v11 offset:{2048*s_ + 512}")
    A(f"""
v_lshrrev_b32 v7, 6, v{vTID}
v_mul_u32_u24 v7, {SBSTR}, v7
v_and_b32 v8, 63, v{vTID}
v_lshl_add_u32 v7, v8, 2, v7
v_add_u32 v7, {SB}, v7
v_mov_b32 v9, {f2u(1.0 / SCALE):#x}
v_mov_b32 v10, 0
s_waitcnt lgkmcnt(13)
""")
    for j in range(10): A(f"v_cvt_f32_f64 v{D[1]+j}, v[{E+2*j}:{E+2*j+1}]")
    for s_ in range(4, 8):
        A(f"ds_read_b64_tr_b16 v[{wf(s_)}:{wf(s_)+1}], v11 offset:{2048*s_}")
        A(f"ds_read_b64_tr_b16 v[{wf(s_)+2}:{wf(s_)+3}], v11 offset:{2048*s_ + 512}")
    for j in range(10): A(f"v_mul_f32 v{D[1]+j}, v9, v{D[1]+j}")
    for j in range(5):
        A(f"v_cvt_pk_bf16_f32 v{E+j}, v{D[1]+2*j}, v{D[1]+2*j+1}")
        A(f"ds_write_b32 v7, v{E+j} offset:{8*SBSTR*j}")
    for j in range(10): A(f"v_fmac_f32 v10, 0, v{D[1]+j}")
    A(f"v_cmp_u_f32 s[{sEx}:{sEx+1}], v10, v10")
    A(f"s_or_b64 vcc, vcc, s[{sEx}:{sEx+1}]")
    A(f"""
s_cmp_eq_u64 vcc, 0
s_cbranch_scc1 B_NOFLAG
v_mov_b32 v5, {L_FLAG}
v_mov_b32 v6, 1
ds_write_b32 v5, v6 offset:4
""")
    A.label("B_NOFLAG")
    A(f"""
s_lshr_b32 s{sT}, s{sWave}, 1
s_lshl_b32 s{sT}, s{sT}, 5
v_and_b32 v2, 31, v{vLane}
v_add_u32 v2, s{sT}, v2
v_mul_u32_u24 v5, {SBSTR}, v2
v_lshl_add_u32 v5, v3, 4, v5
v_add_u32 v5, {SB}, v5
v_lshlrev_b32 v6, 2, v2
v_add_u32 v8, s{sStart}, v2
v_lshlrev_b32 v8, 7, v8
v_add_u32 v8, v8, v4
v_mov_b32 v9, {L_FLAG}
""")
    B2 = 104
    A("s_waitcnt lgkmcnt(12)")
    for g in range(4):
        A(f"v_lshlrev_b32 v{BU+4*g}, 16, v{B2+2*g}")
        A(f"v_and_b32 v{BU+4*g+1}, 0xffff0000, v{B2+2*g}")
        A(f"v_lshlrev_b32 v{BU+4*g+2}, 16, v{B2+2*g+1}")
        A(f"v_and_b32 v{BU+4*g+3}, 0xffff0000, v{B2+2*g+1}")
    srd(A, SO, pOut, N_NODES * 128)
    A(f"""
s_waitcnt lgkmcnt(0)
s_barrier
ds_read_b32 v10, v9 offset:4
ds_read_b32 v7, v6 offset:{L_DEG}
""")
    for s_ in range(8):
        A(f"ds_read_b128 v[{X+4*s_}:{X+4*s_+3}], v5 offset:{32*s_}")
    A(f"""
s_waitcnt lgkmcnt(9)
v_readfirstlane_b32 s{sT}, v10
s_cmp_lg_u32 s{sMode}, 0
s_cbranch_scc1 B_OUT
s_cmp_eq_u32 s{sT}, 0
s_cbranch_scc1 B_OUT
s_mov_b32 s{sMode}, 1
s_waitcnt lgkmcnt(0)
""")
    lane_consts(A)
    A("s_branch B_RESTART")
    A.label("B_OUT")
    A(f"""
s_cmp_ge_u32 s{sWave}, 4
s_cbranch_scc1 {"B_FLUSH" if OPT["stamps"] else "B_END"}
""")
    d = D[0]
    for s_ in range(8):
        A(f"s_waitcnt lgkmcnt({7 - s_})")
        A(f"v_mfma_f32_32x32x16_bf16 v[{d}:{d+15}], v[{wf(s_)}:{wf(s_)+3}], v[{X+4*s_}:{X+4*s_+3}], {'0' if s_ == 0 else f'v[{d}:{d+15}]'}")
    A(f"""
v_cvt_f32_u32 v7, v7
v_cmp_gt_u32 vcc, s{sNn}, v2
""")
    for j in range(16):
        A(f"v_fma_f32 v{d+j}, v7, v{BU+j}, v{d+j}")
    A(f"s_and_saveexec_b64 s[{sEx}:{sEx+1}], vcc")
    for g in range(4):
        A(f"v_cvt_pk_bf16_f32 v{D[1]+2*g}, v{d+4*g}, v{d+4*g+1}")
        A(f"v_cvt_pk_bf16_f32 v{D[1]+2*g+1}, v{d+4*g+2}, v{d+4*g+3}")
        A(f"buffer_store_dwordx2 v[{D[1]+2*g}:{D[1]+2*g+1}], v8, s[{SO}:{SO+3}], 0 offen offset:{16*g}")
    if OPT["stamps"]:
        A.label("B_FLUSH")
        A("s_waitcnt vmcnt(0)")
        A("STAMP 12" if False else "STAMP 15")
        stamp_flush(A, 16)
    A.label("B_END")
    A("s_endpgm")
    A.pad()
    bad = A.check_loop("B_LOOPS", "s_cbranch_scc0 B_LOOPS")
    assert not bad, bad
    return A

def main(path):
    k = kernel()
    hdr = open("cdna_kernels/" + NAME + ".s.ref").read().split("; Override launch geometry")[0]
    s = hdr
    s += "; One workgroup per CU: workgroup c sorts edge chunk c by destination bucket, then processes bucket c.\n"
    s += f"; @launch grid=({NB},1,1) block=(512,1,1) lds={LDS_B}\n"
    s += '.amdgcn_target "amdgcn-amd-amdhsa--gfx950"\n.text\n'
    s += f".globl {KB}\n.p2align 8\n.type {KB},@function\n" + k.text()
    acc = (NVGPR + 3) // 4 * 4
    s += f""".section .rodata,"a"
.p2align 6
.amdhsa_kernel {KB}
  .amdhsa_next_free_vgpr {NVGPR}
  .amdhsa_next_free_sgpr 102
  .amdhsa_accum_offset {acc}
  .amdhsa_group_segment_fixed_size 0
  .amdhsa_kernarg_size 88
  .amdhsa_user_sgpr_count 2
  .amdhsa_user_sgpr_kernarg_segment_ptr 1
  .amdhsa_system_sgpr_workgroup_id_x 1
.end_amdhsa_kernel
"""
    open(path, "w").write(s)

if __name__ == "__main__":
    main(OPT["out"] or "cdna_kernels/" + NAME + ".s")
```

```python
import sys, struct
from asmlib import Asm

NAME = "gather_scatter__edge_featured_mpnn_mpnn__graph"
KB = NAME + "_kernel"
N_NODES = 10000; N_EDGES = 640000; NB = 256; CH = 2500
WS_TBL = 0; WS_REC = NB * NB * 8; WS_END = WS_REC + N_EDGES * 4 + 4096
BF_ONE = 0x3F80
SCALE = -1.4426950408889634
def f2u(x): return struct.unpack("<I", struct.pack("<f", x))[0]

OPT = dict(prio=True, stamps=False, noadd=False, nodma=False, nomfma=False, novalu=False, xwarm=False, ewarm=False, psched=((2, 1), (1, 0)), estream=0, es=(4, 3, 3), touch=False, epre=False, cpre=0, cpin=3, cpg=2, etouch=False, roll=0, rollskip=True, xpre=False, sidepost=False, w2at=1, rot=False, sl=((0, 1), (2,), (3,), (4,), (5, 6)), sidelate=True, elast=False, eph=3, edist=1, xph=3, clip=True, ttbl=False, ppoll=False, wearly=False, predelay=0, w0=True, diagsleep=0, lcearly=False, psleep=2, qskip=False, recpol=' sc1', fflush=True, prioflip=False, defer=False, layout='', skew=1, es2='', stagger=0, seqform=True, dmaspread=True, late=False, prime2=True, out=None)
for a in sys.argv[1:]:
    if "=" in a:
        k, v = a.split("=", 1); OPT[k] = eval(v)

L_S = 0; L_CNT = 40960; L_NTAB = 41216; L_DEG = 42240; L_FLAG = 42496; L_QT = 42752
L_QADDR = 57088; L_QEND = 60416; L_OHT = 65024; L_OHZ = 65536; L_XB0 = 65792; XBS = 6144
L_LIST = L_XB0 + 8 * XBS; LIST_BYTES = 25600; L_Z = L_LIST + LIST_BYTES; LDS_B = L_Z + 20480
L_HIST = 0; L_BASE = 1024; L_SORT = 2048; L_WRAW = L_XB0; L_XROW = L_XB0 + 40960; L_WST = L_Z
L_W2 = L_Z
QSTR = 112; CAPQ = 768; SBSTR = 272
TB = 256

vTID = 0
aX, aG, aO, aQ, aN = 1, 2, 3, 4, 5
xr = [6, 7, 8, 9]; eAddr = 10; vQ = 11; qbase = 12; c1 = 13; lanecol = 14; ohaddr = 15
xi = [16, 18, 20, 22]; ei = 24; node0 = 26; tmp = 27; chk = 28; tmp2 = 30
qa = [32, 36]
E = 40; D = [56, 72]; X = 88; Ea = 104; OH = 108; Qx = 112; We = 128; W = 144
vTbl = 208; vdeg = 210; vLane = 211; vN6 = 212; vOhp = 213; vC25 = 214; vLim = 215
TU = [216, 224]; F64 = 232; vT = 240; v16h = 241
cX, cG, cO = 242, 243, 244
EaB = [Ea, 248] if OPT['edist'] == 1 else [Ea, Ea]; EL = [248, 252]
vDummy = 252
NVGPR = 256
R = 40; RK = 56; A4 = 72; NT = 88

SX = 4; SE = 8; SW = 12; SO = 16; SP = 20
sEx = 24; sEx2 = 26; sT = 28; sT2 = 29; sT3 = 30; sT4 = 31
sWave = 32; sStart = 33; sNn = 34; sS6 = 35; sXB = 36; sN = 37; sT0 = 38; sMode = 39
sR = 40; sLo = 41; sMax = 42; sTagLo = 43; sTot = 44; sTagB = 45; sCnt = 46
pX, pE, pSrc, pDst, pW1, pB1, pW2, pB2 = 48, 50, 52, 54, 56, 58, 60, 62
pOut, pDbg, pWs = 96, 98, 100
WS_STAMP = 8 << 20

def srd(A, d, base, size, stride=0):
    A(f"s_mov_b32 s{d}, s{base}")
    A(f"s_and_b32 s{d+1}, s{base+1}, 0xffff")
    if stride: A(f"s_or_b32 s{d+1}, s{d+1}, {stride << 16:#x}")
    A(f"s_mov_b32 s{d+2}, {size}")
    A(f"s_mov_b32 s{d+3}, 0x20000")

def stamp_flush(A, n):
    if not OPT["stamps"]: return
    A("s_waitcnt vmcnt(0) lgkmcnt(0)")
    A("s_mov_b64 exec, -1")
    A(f"s_lshl_b32 s{sT}, s2, 4")
    A(f"s_add_u32 s{sT}, s{sT}, s{sWave}")
    A(f"s_lshl_b32 s{sT}, s{sT}, 6")
    A(f"s_add_u32 s{sT}, s{sT}, {WS_STAMP}")
    A(f"s_add_u32 s{sEx}, s{pWs}, s{sT}")
    A(f"s_addc_u32 s{sEx+1}, s{pWs+1}, 0")
    A("v_mov_b32 v1, 0")
    for i in range(n):
        A(f"v_mov_b32 v2, s{64+2*i}")
        A(f"global_store_dword v1, v2, s[{sEx}:{sEx+1}] offset:{4*i}")
    A("s_waitcnt vmcnt(0)")

def wave_scan(A, v):
    for sh in (1, 2, 4, 8):
        A(f"v_add_u32_dpp v{v}, v{v}, v{v} row_shr:{sh} row_mask:0xf bank_mask:0xf")
    A(f"v_add_u32_dpp v{v}, v{v}, v{v} row_bcast:15 row_mask:0xa bank_mask:0xf")
    A(f"v_add_u32_dpp v{v}, v{v}, v{v} row_bcast:31 row_mask:0xc bank_mask:0xf")

def fill_lists(A):
    A(f"v_lshlrev_b32 v{tmp}, 4, v{vTID}")
    A(f"v_add_u32 v{tmp2}, {L_LIST}, v{tmp}")
    for i in range(4): A(f"v_mov_b32 v{E+i}, -1")
    for i in range(4): A(f"v_mov_b32 v{E+4+i}, 0")
    for j in range(3):
        A(f"ds_write_b128 v{tmp2}, v[{E}:{E+3}] offset:{8192*j}")
    A(f"v_cmp_gt_u32 vcc, {(L_QEND - L_QADDR) // 16}, v{vTID}")
    A(f"s_and_saveexec_b64 s[{sEx}:{sEx+1}], vcc")
    A(f"ds_write_b128 v{tmp}, v[{E+4}:{E+7}] offset:{L_QADDR}")
    A(f"v_cmp_gt_u32 vcc, {(LIST_BYTES - 3 * 8192) // 16}, v{vTID}")
    A(f"s_and_b64 exec, exec, vcc")
    A(f"ds_write_b128 v{tmp2}, v[{E}:{E+3}] offset:{8192*3}")
    A(f"v_cmp_gt_u32 vcc, 16, v{vTID}")
    A(f"s_and_b64 exec, exec, vcc")
    A(f"ds_write_b128 v{tmp}, v[{E+4}:{E+7}] offset:{L_CNT}")
    A(f"s_mov_b64 exec, s[{sEx}:{sEx+1}]")

def zero_s(A):
    for j in range(5):
        A(f"ds_write_b128 v{tmp}, v[{E+4}:{E+7}] offset:{L_S + 8192*j}")

def chain(c, d, par=0):
    q = lambda r: f"v[{r}:{r+3}]"
    dd = f"v[{d}:{d+15}]"
    M = []
    for s in range(4):
        M.append(f"v_mfma_f32_32x32x16_bf16 {dd}, {q(X+4*s)}, {q(W+16*s+4*c)}, {'0' if s == 0 else dd}")
    me = f"v_mfma_f32_32x32x16_bf16 {dd}, {q(EaB[par])}, {q(We+4*c)}, {dd}"
    mo = f"v_mfma_f32_32x32x16_bf16 {dd}, {q(OH)}, {q(Qx+4*c)}, {dd}"
    return M + ([mo, me] if OPT["elast"] else [me, mo])

def dma_x(A):
    for i in range(4):
        A(f"s_add_u32 m0, s{sXB}, {1024*i}")
        A(f"s_nop 0")
        A(f"buffer_load_dwordx4 v[{xi[i]}:{xi[i]+1}], s[{SX}:{SX+3}], 0 idxen offen lds")
def load_e(A, par, land=False):
    r = EL[par] if land else EaB[par]
    A(f"buffer_load_dwordx4 v[{r}:{r+3}], v[{ei}:{ei+1}], s[{SE}:{SE+3}], 0 idxen offen")
def read_xidx(k): return [f"ds_read_u16 v{xi[i]}, v{aX} offset:{TB*k + 8*[0,2,8,10][i]}" for i in range(4)]
def read_eidx(k): return [f"ds_read_b32 v{ei}, v{aG} offset:{TB*k}"]
def read_a(eslot):
    L = [f"ds_read_b128 v[{X+4*s}:{X+4*s+3}], v{xr[s]}" for s in range(4)]
    L.append(f"ds_read_b128 v[{OH}:{OH+3}], v{ohaddr} offset:1")
    return L
def read_q(c): return f"ds_read_b128 v[{Qx+4*c}:{Qx+4*c+3}], v{vQ} offset:{32*QSTR*c}"
def calc_vq():
    return [f"v_add_u32 v{tmp}, v{node0}, v{c1}", f"v_lshrrev_b32 v{tmp}, 14, v{tmp}",
            f"v_lshl_add_u32 v{vQ}, v{tmp}, 5, v{qbase}", f"v_add_u32 v{ohaddr}, v{ohaddr}, v{v16h}"]
def read_meta(k, par):
    return [f"ds_read_b128 v[{qa[par]}:{qa[par]+3}], v{aQ} offset:{32*k}",
            f"ds_read_b32 v{node0}, v{aN} offset:{32*k}",
            f"ds_read_u16 v{ohaddr}, v{aO} offset:{TB*k}"]

def pk_list(d, c):
    e = E; p = lambda r: f"v[{r}:{r+1}]"
    T = TU[c & 1]; U = T + 4; Tp = TU[(c + 1) & 1]; Up = Tp + 4
    L = []
    if OPT["seqform"]:
        oct_ = ((0, 0), (8, 2))
        for o, j in oct_: L.append(f"v_pk_mul_f32 {p(Up+j)}, {p(Up+j)}, {p(Tp+j)}")
        for o, j in oct_: L.append(f"v_pk_fma_f32 {p(d+o)}, {p(d+o)}, {p(e+o+2)}, {p(d+o)}")
        for o, j in oct_: L.append(f"v_pk_add_f32 {p(e+o)}, {p(e+o)}, 1.0 op_sel_hi:[1,0]")
        for k in (1, 2, 3):
            last = k == 3
            if k > 1:
                for o, j in oct_: L.append(f"v_pk_fma_f32 {p(d+o)}, {p(d+o)}, {p(e+o+2*k)}, {p(d+o)}")
            for o, j in oct_: L.append(f"v_pk_fma_f32 {p(U+j) if last else p(d+o)}, {p(d+o+2*k)}, {p(e+o)}, {p(d+o)}")
            for o, j in oct_: L.append(f"v_pk_fma_f32 {p(T+j) if last else p(e+o)}, {p(e+o)}, {p(e+o+2*k)}, {p(e+o)}")
        L.append(f"v_pk_fma_f32 {p(chk)}, {p(T)}, {p(T+2)}, {p(chk)}")
        return L
    for o, j in ((0, 0), (8, 2)):
        L.append(f"v_pk_mul_f32 {p(Up+j)}, {p(Up+j)}, {p(Tp+j)}")
    for o in (0, 8):
        L.append(f"v_pk_add_f32 {p(e+o+2)}, {p(e+o+2)}, 1.0 op_sel_hi:[1,0]")
        L.append(f"v_pk_add_f32 {p(e+o+6)}, {p(e+o+6)}, 1.0 op_sel_hi:[1,0]")
    for o in (0, 8):
        L.append(f"v_pk_fma_f32 {p(d+o)}, {p(d+o)}, {p(e+o+2)}, {p(d+o+2)}")
        L.append(f"v_pk_fma_f32 {p(d+o+4)}, {p(d+o+4)}, {p(e+o+6)}, {p(d+o+6)}")
    for o in (0, 8):
        L.append(f"v_pk_fma_f32 {p(d+o)}, {p(d+o+2)}, {p(e+o)}, {p(d+o)}")
        L.append(f"v_pk_fma_f32 {p(d+o+4)}, {p(d+o+6)}, {p(e+o+4)}, {p(d+o+4)}")
    for o in (0, 8):
        L.append(f"v_pk_fma_f32 {p(e+o)}, {p(e+o)}, {p(e+o+2)}, {p(e+o+2)}")
        L.append(f"v_pk_fma_f32 {p(e+o+4)}, {p(e+o+4)}, {p(e+o+6)}, {p(e+o+6)}")
    for o, j in ((0, 0), (8, 2)):
        L.append(f"v_pk_mul_f32 {p(T+j)}, {p(e+o)}, {p(e+o+4)}")
    for o in (0, 8):
        L.append(f"v_pk_mul_f32 {p(d+o)}, {p(d+o)}, {p(e+o+4)}")
    for o, j in ((0, 0), (8, 2)):
        L.append(f"v_pk_fma_f32 {p(U+j)}, {p(d+o+4)}, {p(e+o)}, {p(d+o)}")
    for j in (0, 2):
        L.append(f"v_pk_add_f32 {p(chk)}, {p(chk)}, {p(T+j)}")
    return L

def flush_q(c, q):
    U = TU[c & 1] + 4
    cv = [f"v_cvt_f64_f32 v[{F64+2*j}:{F64+2*j+1}], v{U+j}" for j in range(4)]
    ad = [f"ds_add_f64 v{q+j}, v[{F64+2*j}:{F64+2*j+1}] offset:{256*(c & 3)}" for j in range(4)]
    return cv, ad

def emit(A, x):
    if isinstance(x, tuple):
        _, sreg, lab, body = x
        A(f"s_cmp_eq_u32 s{sreg}, 0")
        A(f"s_cbranch_scc1 {lab}")
        for y in body: A(y)
        A.label(lab)
    else: A(x)

def flush_block(A, c, q, hflag, lab):
    U = TU[c & 1] + 4
    cv, ad = flush_q(c, q)
    if OPT["noadd"]: ad = [f"ds_read_b32 v{tmp2}, v{tmp2+1}"] * 4
    if not OPT["fflush"]:
        for x in cv + ad: A(x)
        return
    A(f"s_cmp_eq_u32 s{hflag}, 0")
    A(f"s_cbranch_scc1 {lab}a")
    A(f"v_add_f32 v{U}, v{U}, v{U+1}")
    A(f"v_add_f32 v{U+2}, v{U+2}, v{U+3}")
    A(f"v_add_f32 v{U}, v{U}, v{U+2}")
    A(cv[0]); A(ad[0])
    A(f"s_branch {lab}b")
    A.label(f"{lab}a")
    for x in cv + ad: A(x)
    A.label(f"{lab}b")

def tile_body(A, par, hp, hc):
    k = par; p = lambda r: f"v[{r}:{r+1}]"
    W0 = "s_waitcnt lgkmcnt(0)" if OPT["w0"] else None
    for ph in range(4):
        d = D[ph & 1]; dn = D[(ph + 1) & 1]
        M = chain((ph + 1) & 3, dn, par if ph < 3 else 1 - par)
        Tp = TU[(ph + 1) & 1]; Up = Tp + 4
        Tc = TU[ph & 1]; Uc = Tc + 4
        tr = [f"v_exp_f32 v{E+j}, v{d+j}" for j in range(16)]
        hB = hc if ph >= 1 else hp; qB = qa[par] if ph >= 1 else qa[1 - par]
        hD = hc if ph >= 2 else hp; qD = qa[par] if ph >= 2 else qa[1 - par]
        cB = (ph + 3) & 3
        prev_tail = lambda h: 0 if h else 4
        extra = {i: [] for i in range(7)}
        pre = []
        if ph == 0:
            extra[1] += read_meta(k + 1, 1 - par)[1:]
            extra[2] += [f"v_add_u32 v{qa[par]+j}, v{qa[par]+j}, v{lanecol}" for j in range(1 if hc else 4)]
        if ph == 1:
            pre += [f"s_waitcnt lgkmcnt({prev_tail(hp)})"]
            extra[1] += calc_vq() + [read_q(0), read_q(1)]
            extra[2] += read_xidx(k + 2) + read_eidx(k + 1 + OPT["edist"])
            if OPT["roll"]: extra[2] += [f"ds_read_b32 v253, v{aG} offset:{TB*(k + OPT['roll'])}"]
        if ph == 2:
            extra[1] += [read_q(2), read_meta(k + 1, 1 - par)[0]]
            if OPT["roll"]:
                extra[1] += [f"s_cmp_ge_u32 s{sN}, {OPT['roll'] + 1}", f"s_cselect_b32 s{SP+2}, s{sRol}, 0",
                             "s_waitcnt lgkmcnt(2)", f"buffer_load_dword v252, v253, s[{SP}:{SP+3}], 0 idxen", f"s_mov_b32 s{sRol}, {N_EDGES}"]
            extra[5] += [f"s_waitcnt vmcnt({(2 if OPT['roll'] else 1) if OPT['xph'] == 3 else 0})"] + read_a(1 - par)
        if ph == 3:
            pre += [f"s_waitcnt lgkmcnt({prev_tail(hc)})"]
            extra[1] += [read_q(3)]
            qn = qa[1 - par]
            extra[2] += [f"v_cmp_ne_u32 vcc, v{qn}, v{qn+3}"]
            extra[3] += ["s_cmp_eq_u64 vcc, 0", f"s_cselect_b32 s{sH[0]}, 1, 0"]
        for x in pre: A(x)
        xph = OPT["xph"]
        if ph == 3 and OPT["clip"]:
            A(f"s_cmp_ge_u32 s{sN}, 3")
            if xph == 3: A(f"s_cselect_b32 s{SX+2}, {N_NODES}, 0")
            if OPT["edist"] == 2: A(f"s_cmp_ge_u32 s{sN}, 4")
            A(f"s_cselect_b32 s{SE+2}, {N_EDGES}, 0")
        if ph == 3 and OPT["edist"] == 2:
            for j in range(4): A(f"v_mov_b32 v{Ea+j}, v{EL[1-par]+j}")
        if ph == 0 and xph == 0 and OPT["clip"]:
            A(f"s_cmp_ge_u32 s{sN}, 2")
            A(f"s_cselect_b32 s{SX+2}, {N_NODES}, 0")
        ti = 0
        for m in range(6):
            me_ = 5 if OPT["elast"] else 4
            if ph == 3 and m == me_ and OPT["edist"] == 1: A(f"s_waitcnt vmcnt({(5 if OPT['roll'] else 4) if xph == 3 else 0})")
            A(M[m])
            if ph == xph and not OPT["nodma"] and m < 4:
                A(f"s_add_u32 m0, s{sXB}, {1024*m}")
                A("s_nop 0")
                A(f"buffer_load_dwordx4 v[{xi[m]}:{xi[m]+1}], s[{SX}:{SX+3}], 0 idxen offen lds")
            if ph == 3 and not OPT["nodma"] and m == me_ and OPT["eph"] == 3:
                if OPT["edist"] == 1: load_e(A, par)
                else: load_e(A, 1 - par, land=True)
            if ph == OPT["eph"] and ph < 3 and m == 1:
                A(f"s_cmp_ge_u32 s{sN}, 2")
                A(f"s_cselect_b32 s{SE+2}, {N_EDGES}, 0")
                load_e(A, 1 - par)
            if m == 5 and ph == 2:
                for x in extra[5]: A(x)
            if m == 0:
                if hB:
                    for x in merged_tail(Tp, qB, cB): A(x)
                else:
                    for j in range(4): A(f"v_rcp_f32 v{Tp+j}, v{Tp+j}")
            else:
                n = 3 if m < 5 else 4
                for x in tr[ti:ti + n]: A(x)
                ti += n
            if not (m == 5 and ph == 2):
                for x in extra[m]: A(x)
        assert ti == 16
        if not hD:
            cv, ad = flush_q(ph + 2, qD)
            for x in cv + ad: A(x)
        pk = pk_list(d, ph)
        if not hB:
            for x in pk[:2]: A(x)
        for x in pk[2:-1]: A(x)
        if hc:
            A(f"v_pk_mul_f32 {p(F64+4)}, {p(Uc)}, {p(Tc+2)}")
            A(f"v_pk_fma_f32 {p(Uc)}, {p(Uc+2)}, {p(Tc)}, {p(F64+4)}")
            A(f"v_pk_mul_f32 {p(Tc)}, {p(Tc)}, {p(Tc+2)}")
        else:
            A(pk[-1])

def merged_tail(Tp, q, c):
    Up = Tp + 4
    return [f"v_mul_f32 v{Tp+2}, v{Tp}, v{Tp+1}",
            f"v_mul_f32 v{Up+2}, v{Up}, v{Tp+1}",
            f"v_fma_f32 v{Up+2}, v{Up+1}, v{Tp}, v{Up+2}",
            f"v_rcp_f32 v{Tp+3}, v{Tp+2}",
            f"v_add_f32 v{chk}, v{chk}, v{Tp+2}",
            f"v_mul_f32 v{Up+2}, v{Up+2}, v{Tp+3}",
            f"v_cvt_f64_f32 v[{F64}:{F64+1}], v{Up+2}",
            f"ds_add_f64 v{q}, v[{F64}:{F64+1}] offset:{256*c}"]

def drain_fast(A, par, hc):
    p = lambda r: f"v[{r}:{r+1}]"
    Tp = TU[1]; Up = Tp + 4
    if hc:
        for x in merged_tail(Tp, qa[par], 3): A(x)
        return
    cv2, ad2 = flush_q(2, qa[par])
    cv3, ad3 = flush_q(3, qa[par])
    for x in ([f"v_rcp_f32 v{Tp+j}, v{Tp+j}" for j in range(4)] + cv2 + ad2 +
              [f"v_pk_mul_f32 {p(Up+j)}, {p(Up+j)}, {p(Tp+j)}" for j in (0, 2)] + cv3 + ad3): A(x)

def fast_loop(A):
    A(f"s_cmp_eq_u32 s{sH[0]}, 0")
    A("s_cbranch_scc0 B_T001")
    order = [(0, 0, 0), (1, 0, 0), (1, 0, 1), (0, 1, 0), (0, 0, 1), (1, 1, 1), (0, 1, 1), (1, 1, 0)]
    for n, (par, hp, hc) in enumerate(order):
        A.label(f"B_T{par}{hp}{hc}")
        tile_body(A, par, hp, hc)
        if par == 1:
            for r in (aX, aG, aO): A(f"v_add_u32 v{r}, {2*TB}, v{r}")
            for r in (aQ, aN): A(f"v_add_u32 v{r}, 64, v{r}")
        A(f"s_sub_u32 s{sN}, s{sN}, 1")
        A(f"s_cmp_eq_u32 s{sN}, {OPT['w2at']}")
        A(f"s_cbranch_scc0 B_W2T{par}{hp}{hc}")
        load_w2(A)
        A.label(f"B_W2T{par}{hp}{hc}")
        if OPT["prio"]:
            for rem, pr in OPT["psched"]:
                A(f"s_cmp_eq_u32 s{sN}, {rem}")
                A(f"s_cbranch_scc0 B_PT{par}{hp}{hc}{rem}")
                A(f"s_setprio {pr}")
                A.label(f"B_PT{par}{hp}{hc}{rem}")
        A(f"s_cmp_eq_u32 s{sN}, 0")
        A(f"s_cbranch_scc1 B_DRAIN{par}{hc}")
        A(f"s_cmp_eq_u32 s{sH[0]}, 0")
        nxt0 = (1 - par, hc, 0); nxt1 = (1 - par, hc, 1)
        follow = order[n + 1] if n + 1 < len(order) else None
        name = lambda t: f"B_T{t[0]}{t[1]}{t[2]}"
        if follow == nxt0:
            A(f"s_cbranch_scc0 {name(nxt1)}")
        elif follow == nxt1:
            A(f"s_cbranch_scc1 {name(nxt0)}")
        else:
            A(f"s_cbranch_scc0 {name(nxt1)}")
            A(f"s_branch {name(nxt0)}")
    for par in (0, 1):
        for hc in (0, 1):
            A.label(f"B_DRAIN{par}{hc}")
            drain_fast(A, par, hc)
            A("s_branch B_LOOPEND")

def tile_iter_safe(A, par):
    k = par; e = E; p = lambda r: f"v[{r}:{r+1}]"
    for ph in range(4):
        d = D[ph & 1]; dn = D[(ph + 1) & 1]
        if ph == 0:
            for x in read_meta(k + 1, 1 - par): A(x)
        if ph == 1:
            A("s_waitcnt lgkmcnt(4)")
            for x in calc_vq(): A(x)
            for j in range(4): A(f"v_add_u32 v{qa[1-par]+j}, v{qa[1-par]+j}, v{lanecol}")
            for x in [read_q(0), read_q(1)] + read_xidx(k + 2) + read_eidx(k + 2): A(x)
        if ph == 2: A(read_q(2))
        if ph == 3:
            A("s_waitcnt lgkmcnt(4)")
            dma_x(A)
            A("s_waitcnt vmcnt(4)")
            load_e(A, par)
            A(read_q(3))
        for m in chain((ph + 1) & 3, dn, par if ph < 3 else 1 - par): A(m)
        if ph == 2:
            A("s_waitcnt vmcnt(1)")
            for x in read_a(1 - par): A(x)
        for j in range(16): A(f"v_exp_f32 v{e+j}, v{d+j}")
        for j in range(0, 16, 2): A(f"v_pk_add_f32 {p(e+j)}, {p(e+j)}, 1.0 op_sel_hi:[1,0]")
        for j in range(16): A(f"v_rcp_f32 v{e+j}, v{e+j}")
        for j in range(0, 16, 2): A(f"v_pk_mul_f32 {p(d+j)}, {p(d+j)}, {p(e+j)}")
        for o in (0, 8):
            A(f"v_pk_add_f32 {p(d+o)}, {p(d+o)}, {p(d+o+2)}")
            A(f"v_pk_add_f32 {p(d+o+4)}, {p(d+o+4)}, {p(d+o+6)}")
        for o in (0, 8): A(f"v_pk_add_f32 {p(d+o)}, {p(d+o)}, {p(d+o+4)}")
        cvt = ((d, F64), (d + 1, F64 + 2), (d + 8, F64 + 4), (d + 9, F64 + 6))
        for r, t in cvt: A(f"v_cvt_f64_f32 v[{t}:{t+1}], v{r}")
        for j, (r, t) in enumerate(cvt): A(f"ds_add_f64 v{qa[par]+j}, v[{t}:{t+1}] offset:{256*ph}")

def load_w2(A, keep=False):
    a, b = sEx, sEx + 1
    srd(A, SO, pW2, 128 * 64 * 2)
    A(f"v_lshlrev_b32 v247, 4, v{vLane}")
    A(f"s_lshl_b32 s{a}, s{sWave}, 11")
    for j in range(2):
        A(f"s_add_u32 m0, s{a}, {L_W2 + 1024*j}")
        A(f"s_add_u32 s{b}, s{a}, {1024*j}")
        A(f"buffer_load_dwordx4 v247, s[{SO}:{SO+3}], s{b} offen lds")
    srd(A, SO, pB2, 128)
    A(f"s_mov_b32 m0, {L_W2 + 16384}")
    A("s_nop 0")
    A(f"buffer_load_dwordx4 v247, s[{SO}:{SO+3}], 0 offen lds")

def main_loop(A, fast):
    tag = "F" if fast else "S"
    if OPT["prio"]: A("s_setprio 3")
    if OPT["stagger"]:
        A(f"s_cmp_lt_u32 s{sWave}, 4")
        A(f"s_cbranch_scc1 B_STG0{tag}")
        A("s_barrier")
        A.label(f"B_STG0{tag}")
    if fast and OPT["roll"]:
        srd(A, SP, pE, N_EDGES, stride=32)
        A(f"s_mov_b32 s{sRol}, {0 if OPT['rollskip'] else N_EDGES}")
    for x in read_xidx(0) + read_eidx(0): A(x)
    for x in read_meta(0, 0): A(x)
    A(f"s_mul_i32 s{sEx}, s{sDel}, {TB}")
    A(f"s_lshl_b32 s{sEx+1}, s{sDel}, 5")
    for r in (aX, aG, aO): A(f"v_add_u32 v{r}, s{sEx}, v{r}")
    for r in (aQ, aN): A(f"v_add_u32 v{r}, s{sEx+1}, v{r}")
    A(f"s_mov_b32 s{SX+2}, {N_NODES}")
    A(f"s_mov_b32 s{SE+2}, {N_EDGES}")
    A("s_waitcnt lgkmcnt(0)")
    dma_x(A); load_e(A, 0)
    for x in read_eidx(1): A(x)
    for x in calc_vq(): A(x)
    if not fast:
        for j in range(4): A(f"v_add_u32 v{qa[0]+j}, v{qa[0]+j}, v{lanecol}")
    for c in range(4): A(read_q(c))
    for x in read_xidx(1): A(x)
    if fast:
        for t in TU:
            for j in range(4):
                A(f"v_mov_b32 v{t+j}, 1.0")
                A(f"v_mov_b32 v{t+4+j}, 0")
        for j in range(4): A(f"v_mov_b32 v{qa[1]+j}, v{lanecol}")
        A(f"v_cmp_ne_u32 vcc, v{qa[0]}, v{qa[0]+3}")
        A(f"s_mov_b32 s{sH[1]}, 0")
        A("s_cmp_eq_u64 vcc, 0")
        A(f"s_cselect_b32 s{sH[0]}, 1, 0")
    A("s_waitcnt vmcnt(0)")
    if OPT["stagger"]:
        A(f"s_cmp_ge_u32 s{sWave}, 4")
        A(f"s_cbranch_scc1 B_STG1{tag}")
        A("s_barrier")
        A.label(f"B_STG1{tag}")
    for x in read_a(0): A(x)
    A("s_waitcnt lgkmcnt(0)")
    A(f"s_cmp_ge_u32 s{sN}, 2")
    A(f"s_cselect_b32 s{SX+2}, {N_NODES}, 0")
    A(f"s_cselect_b32 s{SE+2}, {N_EDGES}, 0")
    if OPT["edist"] == 2 and fast:
        load_e(A, 1, land=True)
        for x in read_eidx(2): A(x)
        dma_x(A)
        A(f"s_cmp_ge_u32 s{sN}, 3")
        A(f"s_cselect_b32 s{SE+2}, {N_EDGES}, 0")
        A("s_waitcnt lgkmcnt(0)")
        load_e(A, 0, land=True)
    else:
        if OPT["xph"] == 3 or not fast: dma_x(A)
        if OPT["eph"] == 3 or not fast: load_e(A, 1)
    for m in chain(0, D[0], 0): A(m)
    A(f"s_cmp_le_u32 s{sN}, {OPT['w2at']}")
    A(f"s_cbranch_scc0 B_W2P{tag}")
    load_w2(A, keep=True)
    A.label(f"B_W2P{tag}")
    if OPT["prio"]: A("s_setprio 2")
    A("s_nop 7")
    A("s_nop 3")
    if fast: A("STAMP 9"); A("CSTAMP 13")
    if fast:
        fast_loop(A)
        return
    A.label(f"B_LOOP{tag}")
    for par in (0, 1):
        tile_iter_safe(A, par)
        if par == 1:
            for r in (aX, aG, aO): A(f"v_add_u32 v{r}, {2*TB}, v{r}")
            for r in (aQ, aN): A(f"v_add_u32 v{r}, 64, v{r}")
        A(f"s_sub_u32 s{sN}, s{sN}, 1")
        A(f"s_cmp_eq_u32 s{sN}, {OPT['w2at']}")
        A(f"s_cbranch_scc0 B_W2{tag}{par}")
        load_w2(A, keep=True)
        A.label(f"B_W2{tag}{par}")
        A(f"s_cmp_eq_u32 s{sN}, 0")
        if par == 0: A(f"s_cbranch_scc1 B_LOOPEND")
        else: A(f"s_cbranch_scc0 B_LOOP{tag}")
    A("s_branch B_LOOPEND")

def sort_slots(A, body, groups, tag, wait=False):
    for g in groups:
        if wait: A(f"s_waitcnt vmcnt({3 - g})")
        for i in range(4):
            A(f"v_cmpx_lt_i32 vcc, {8*g+i}, v{vLim}")
            if i % 2 == 0: A(f"s_cbranch_execz {tag}")
            body(g, i)

def estream(A, first, n, vaddr):
    srd(A, SP, pE, N_EDGES * 32)
    A(f"s_mul_i32 s{sT}, s2, {CH * 32}")
    A(f"s_mul_i32 s{sT2}, s{sWave}, 10240")
    A(f"s_add_u32 s{sT}, s{sT}, s{sT2}")
    A(f"s_add_u32 s{sT}, s{sT}, {1024 * first}")
    A(f"v_lshlrev_b32 v{vaddr}, 4, v{vLane}")
    for j in range(n):
        A(f"buffer_load_dwordx4 v[{F64}:{F64+3}], v{vaddr}, s[{SP}:{SP+3}], s{sT} offen offset:{1024*j}")

sDef = 3; sDel = 3; sRol = 31; sFirst = 47; sES = 47; sQch = 28; sH = [29, 30]; SES = 4
def es_init(A):
    if not OPT["es2"]: return
    srd(A, SE, pE, N_EDGES * 32)
    A(f"s_mul_i32 s{sES}, s2, {CH * 32}")
    A(f"s_mul_i32 s{sT4}, s{sWave}, 10240")
    A(f"s_add_u32 s{sES}, s{sES}, s{sT4}")
    A(f"v_lshlrev_b32 v247, 4, v{vLane}")
def es(A, tag):
    if tag not in OPT["es2"]: return
    A(f"buffer_load_dwordx4 v[{F64}:{F64+3}], v247, s[{SRDE[0]}:{SRDE[0]+3}], s{sES} offen")
    A(f"s_add_u32 s{sES}, s{sES}, 1024")
SRDE = [SE]

def tr_addr(A, dst, base, rowbytes):
    A(f"v_lshrrev_b32 v{tmp}, 5, v{vLane}")
    A(f"v_bfe_u32 v{tmp2}, v{vLane}, 2, 2")
    A(f"v_lshl_add_u32 v{tmp}, v{tmp}, 3, v{tmp2}")
    A(f"v_mul_u32_u24 v{dst}, {rowbytes}, v{tmp}")
    A(f"v_bfe_u32 v{tmp}, v{vLane}, 4, 1")
    A(f"v_lshl_add_u32 v{dst}, v{tmp}, 5, v{dst}")
    A(f"v_and_b32 v{tmp}, 3, v{vLane}")
    A(f"v_lshl_add_u32 v{dst}, v{tmp}, 3, v{dst}")
    A(f"v_add_u32 v{dst}, {base}, v{dst}")

def lane_consts(A):
    A(f"""
v_add_u32 v{vN6}, s{sS6}, v{vLane}
v_and_b32 v{vN6}, 63, v{vN6}
v_lshlrev_b32 v{vN6}, 2, v{vN6}
v_and_b32 v119, 15, v{vLane}
v_lshlrev_b32 v119, 5, v119
v_add_u32 v119, {L_OHT - 1}, v119
v_lshlrev_b32 v{vOhp}, 16, v119
v_and_b32 v112, 31, v{vLane}
v_lshrrev_b32 v113, 5, v{vLane}
v_bfe_u32 v114, v{vLane}, 1, 3
v_lshlrev_b32 v115, 7, v112
v_add_u32 v115, s{sXB}, v115
""")
    for s in range(4):
        A(f"v_or_b32 v116, {2*s}, v113")
        A(f"v_xor_b32 v116, v116, v114")
        A(f"v_lshl_add_u32 v{xr[s]}, v116, 4, v115")
    A(f"""
v_lshlrev_b32 v{eAddr}, 4, v{vLane}
v_add_u32 v{eAddr}, s{sXB}, v{eAddr}
v_add_u32 v{eAddr}, 0x1000, v{eAddr}
v_mul_u32_u24 v{qbase}, {QSTR}, v112
v_lshl_add_u32 v{qbase}, v113, 4, v{qbase}
v_add_u32 v{qbase}, {L_QT}, v{qbase}
v_xor_b32 v{c1}, 1, v113
v_lshlrev_b32 v{c1}, 13, v{c1}
v_lshlrev_b32 v{lanecol}, 3, v112
v_lshlrev_b32 v{v16h}, 4, v113
v_and_b32 v116, 7, v{vLane}
v_lshrrev_b32 v117, 4, v{vLane}
v_xor_b32 v118, v116, v117
v_lshlrev_b32 v{xi[0]+1}, 4, v118
v_mov_b32 v{xi[2]+1}, v{xi[0]+1}
v_xor_b32 v118, 4, v118
v_lshlrev_b32 v{xi[1]+1}, 4, v118
v_mov_b32 v{xi[3]+1}, v{xi[1]+1}
v_lshlrev_b32 v{ei+1}, 4, v113
v_bfe_u32 v116, v{vLane}, 3, 1
v_bfe_u32 v117, v{vLane}, 4, 1
v_lshlrev_b32 v118, 4, v113
v_lshl_add_u32 v118, v116, 2, v118
v_add_u32 v118, v118, v117
v_lshlrev_b32 v{cX}, 3, v118
v_bfe_u32 v116, v{vLane}, 2, 1
v_lshlrev_b32 v118, 4, v116
v_bfe_u32 v116, v{vLane}, 4, 1
v_lshl_add_u32 v118, v116, 3, v118
v_and_b32 v116, 1, v{vLane}
v_lshl_add_u32 v118, v116, 2, v118
v_bfe_u32 v116, v{vLane}, 3, 1
v_lshl_add_u32 v118, v116, 1, v118
v_bfe_u32 v116, v{vLane}, 1, 1
v_add_u32 v118, v118, v116
v_lshlrev_b32 v{cO}, 3, v118
v_add_u32 v{cG}, 4, v{cO}
v_add_u32 v{cO}, 2, v{cO}
""")

def kernel():
    A = Asm(OPT["stamps"])
    A.label(KB)
    A(f"""
s_cmp_ge_u32 s2, {NB}
s_cbranch_scc1 B_END
STAMP 0
CSTAMP 11
s_load_dwordx16 s[48:63], s[0:1], 0
s_load_dwordx4 s[96:99], s[0:1], 64
s_load_dwordx2 s[100:101], s[0:1], 80
s_memrealtime s[{sEx2}:{sEx2+1}]
v_lshrrev_b32 v1, 6, v0
v_and_b32 v{vLane}, 63, v0
v_readfirstlane_b32 s{sWave}, v1
s_mul_i32 s{sStart}, s2, 625
s_add_u32 s{sT}, s{sStart}, {625 + 15}
s_add_u32 s{sStart}, s{sStart}, 15
s_lshr_b32 s{sStart}, s{sStart}, 4
s_lshr_b32 s{sT}, s{sT}, 4
s_sub_u32 s{sNn}, s{sT}, s{sStart}
s_and_b32 s{sS6}, s{sStart}, 63
s_mul_i32 s{sXB}, s{sWave}, {XBS}
s_add_u32 s{sXB}, s{sXB}, {L_XB0}
s_mov_b32 s{sMode}, 0
s_mov_b32 s{sR}, 32
s_mov_b32 s{sLo}, 0
s_mov_b32 s{sCnt}, 0x400000
v_mov_b32 v{vdeg}, 0
v_mov_b32 v{chk}, 0
v_mov_b32 v{chk+1}, 0
v_mov_b32 v40, 0
v_mov_b32 v41, 0
v_mov_b32 v42, 0
v_mov_b32 v43, 0
v_lshlrev_b32 v2, 4, v{vTID}
v_cmp_gt_u32 vcc, 64, v{vTID}
s_and_saveexec_b64 s[{sEx}:{sEx+1}], vcc
ds_write_b128 v2, v[40:43] offset:{L_HIST}
s_mov_b64 exec, s[{sEx}:{sEx+1}]
v_cmp_gt_u32 vcc, 0x88, v{vTID}
s_and_saveexec_b64 s[{sEx}:{sEx+1}], vcc
v_lshrrev_b32 v3, 3, v{vTID}
v_and_b32 v4, 7, v{vTID}
v_lshrrev_b32 v5, 1, v3
v_and_b32 v6, 1, v3
v_lshlrev_b32 v6, 4, v6
v_mov_b32 v7, {BF_ONE:#x}
v_lshlrev_b32 v7, v6, v7
v_cmp_eq_u32 vcc, v4, v5
v_lshlrev_b32 v8, 2, v{vTID}
v_cndmask_b32 v7, 0, v7, vcc
v_add_u32 v8, {L_OHT}, v8
ds_write_b32 v8, v7
s_mov_b64 exec, s[{sEx}:{sEx+1}]
v_cmp_gt_u32 vcc, 16, v{vTID}
s_and_saveexec_b64 s[{sEx}:{sEx+1}], vcc
ds_write_b128 v2, v[40:43] offset:{L_FLAG}
s_mov_b64 exec, s[{sEx}:{sEx+1}]
s_waitcnt lgkmcnt(0)
STAMP 1
""")
    A(f"""
s_cmp_lg_u32 s2, 0
s_cbranch_scc1 A_NONONCE
s_cmp_lg_u32 s{sWave}, 0
s_cbranch_scc1 A_NONONCE
s_and_b32 s{sEx2+1}, s{sEx2+1}, 0xff
s_or_b32 s{sEx2+1}, s{sEx2+1}, 0x80000000
v_mov_b32 v4, s{sEx2}
v_mov_b32 v5, s{sEx2+1}
v_mov_b32 v3, 0
s_mov_b64 exec, 1
global_store_dwordx2 v3, v[4:5], s[{pDbg}:{pDbg+1}] sc1
s_mov_b64 exec, -1
""")
    A.label("A_NONONCE")
    if OPT["touch"]:
        ptrs = [pW1, pX, pB1, pWs, pE, pW2, pOut, pB2]
        A("v_mov_b32 v3, 0")
        for w, p in enumerate(ptrs):
            A(f"s_cmp_lg_u32 s{sWave}, {w}")
            A(f"s_cbranch_scc1 A_T{w}")
            A(f"global_load_dword v{F64+5}, v3, s[{p}:{p+1}]")
            A.label(f"A_T{w}")
    srd(A, SO, pDst, N_EDGES * 4)
    srd(A, SP, pSrc, N_EDGES * 4)
    A(f"""
s_mul_i32 s{sT}, s2, {CH * 4}
v_add_u32 v3, 0x2000, v2
v_mov_b32 v4, 0x7ffffff0
v_cmp_gt_u32 vcc, {CH // 4 - 512}, v{vTID}
v_lshlrev_b32 v18, 2, v{vTID}
v_add_u32 v18, 0x2000, v18
v_cndmask_b32 v3, v4, v3, vcc
v_cmp_gt_u32 vcc, {CH - 2048}, v{vTID}
s_mov_b64 s[{sEx2}:{sEx2+1}], vcc
v_cndmask_b32 v18, v4, v18, vcc
buffer_load_dwordx4 v[40:43], v2, s[{SO}:{SO+3}], s{sT} offen
buffer_load_dword v48, v18, s[{SO}:{SO+3}], s{sT} offen
buffer_load_dwordx4 v[44:47], v2, s[{SP}:{SP+3}], s{sT} offen
buffer_load_dword v52, v18, s[{SP}:{SP+3}], s{sT} offen
""")
    def side(i):
        if i == 0:
            srd(A, SO, pW1, 144 * 128 * 2)
            srd(A, SP, pX, N_NODES * 128)
            A(f"v_lshlrev_b32 v1, 4, v{vLane}")
            A(f"s_lshl_b32 s{sT4}, s{sWave}, 10")
        if i == 0 and OPT["rot"]:
            A(f"s_lshr_b32 s{sT}, s2, 3")
            A(f"s_mul_i32 s{sT2}, s{sT}, 52429")
            A(f"s_lshr_b32 s{sT2}, s{sT2}, 18")
            A(f"s_mul_i32 s{sT2}, s{sT2}, 5")
            A(f"s_sub_u32 s{sT}, s{sT}, s{sT2}")
            A(f"s_lshl_b32 s{sT}, s{sT}, 13")
        if i < 5 and OPT["rot"]:
            A(f"s_add_u32 s{sT3}, s{sT4}, s{sT}")
            A(f"s_add_u32 m0, s{sT3}, {L_WRAW}")
            A(f"s_add_u32 s{sT}, s{sT}, 8192")
            A(f"buffer_load_dwordx4 v1, s[{SO}:{SO+3}], s{sT3} offen lds")
            A(f"s_cmp_ge_u32 s{sT}, {5 * 8192}")
            A(f"s_cselect_b32 s{sT2}, {5 * 8192}, 0")
            A(f"s_sub_u32 s{sT}, s{sT}, s{sT2}")
        elif i < 5:
            A(f"s_add_u32 m0, s{sT4}, {L_WRAW + 8192*i}")
            A(f"s_add_u32 s{sT3}, s{sT4}, {8192*i}")
            A(f"buffer_load_dwordx4 v1, s[{SO}:{SO+3}], s{sT3} offen lds")
        if i == 5:
            A(f"""
s_lshl_b32 s{sT3}, s{sWave}, 3
v_lshrrev_b32 v5, 3, v{vLane}
v_add_u32 v5, s{sT3}, v5
v_bfe_u32 v6, v5, 1, 3
v_and_b32 v7, 7, v{vLane}
v_xor_b32 v6, v6, v7
v_add_u32 v5, s{sStart}, v5
v_lshlrev_b32 v5, 7, v5
v_lshl_add_u32 v5, v6, 4, v5
s_add_u32 m0, s{sT4}, {L_XROW}
s_and_b32 s{sT3}, s{sWave}, 3
buffer_load_dwordx4 v5, s[{SP}:{SP+3}], 0 offen lds
""")
        if i == 6:
            A(f"""
s_lshl_b32 s{sT3}, s{sT3}, 5
v_and_b32 v5, 31, v{vLane}
v_lshrrev_b32 v222, 5, v{vLane}
v_add_u32 v221, s{sT3}, v5
v_lshlrev_b32 v9, 1, v221
global_load_ushort v223, v9, s[{pB1}:{pB1+1}]
""")
    late = OPT["sidelate"]
    if OPT["sidepost"]: OPT["sl"] = ((), (), (), (), ())
    if not late:
        for i in range(7): side(i)
    A("s_barrier")
    A(f"""
v_lshlrev_b32 v11, 16, v{vTID}
v_lshlrev_b32 v12, 14, v{vTID}
v_add_u32 v12, {2048 << 14:#x}, v12
s_mov_b32 s{sT2}, 429497
STAMP 2
s_waitcnt vmcnt({2 if OPT["sidelate"] else 9})
STAMP 3
""")
    es_init(A)
    es(A, "a")
    def hist(base, dst, n=4):
        for i in range(n): A(f"v_mul_u32_u24 v{base+i}, s{sT2}, v{dst+i}")
        for i in range(n): A(f"v_lshrrev_b32 v{base+i}, 22, v{base+i}")
        for i in range(n):
            A(f"v_and_b32 v{base+i}, 0x3fc, v{base+i}")
            A(f"ds_add_rtn_u32 v{base+8+i}, v{base+i}, v13 offset:{L_HIST}")
    def recs(dst, src, eid, n=4):
        for i in range(n):
            A(f"v_lshl_or_b32 v{dst+i}, v{dst+i}, 26, v{src+i}")
            A(f"v_add_u32 v{dst+i}, v{dst+i}, v{eid}")
            if i: A(f"v_add_u32 v{dst+i}, {i << 14:#x}, v{dst+i}")
    A("v_mov_b32 v13, 1")
    hist(56, 40)
    A(f"s_mov_b64 exec, s[{sEx2}:{sEx2+1}]")
    hist(60, 48, 1)
    A("s_mov_b64 exec, -1")
    A(f"s_waitcnt vmcnt({0 if late else 7})")
    recs(40, 44, 11)
    recs(48, 52, 12, 1)
    A.label("A_H1")
    A(f"""
s_waitcnt lgkmcnt(0)
s_barrier
v_lshlrev_b32 v14, 4, v{vLane}
ds_read_b128 v[72:75], v14 offset:{L_HIST}
v_mov_b32 v15, 0
s_cmp_lg_u32 s{sWave}, 0
s_cbranch_scc1 A_NOTAG0
global_load_dwordx2 v[16:17], v15, s[{pDbg}:{pDbg+1}] sc1
A_NOTAG0:
""")
    if late:
        for i in OPT['sl'][0]: side(i)
    A(f"""
s_waitcnt lgkmcnt(0)
v_add_u32 v76, v72, v73
v_add_u32 v77, v76, v74
v_add_u32 v78, v77, v75
v_mov_b32 v79, v78
""")
    if late:
        for i in OPT['sl'][1]: side(i)
    es(A, "c")
    wave_scan(A, 79)
    A(f"""
v_sub_u32 v80, v79, v78
v_add_u32 v81, v80, v72
v_add_u32 v82, v80, v76
v_add_u32 v83, v80, v77
ds_write_b128 v14, v[80:83] offset:{L_BASE}
""")
    if late:
        for i in OPT['sl'][2]: side(i)
    A("s_waitcnt lgkmcnt(0)")
    for i in range(5): A(f"ds_read_b32 v{56+i}, v{56+i} offset:{L_BASE}")
    if late:
        for i in OPT['sl'][3]: side(i)
    for i in range(4):
        A(f"s_waitcnt lgkmcnt({4-i})")
        A(f"v_add_lshl_u32 v{56+i}, v{56+i}, v{64+i}, 2")
        A(f"ds_write_b32 v{56+i}, v{40+i} offset:{L_SORT}")
    A(f"s_mov_b64 exec, s[{sEx2}:{sEx2+1}]")
    A("s_waitcnt lgkmcnt(4)")
    A(f"v_add_lshl_u32 v60, v60, v68, 2")
    A(f"ds_write_b32 v60, v48 offset:{L_SORT}")
    A("s_mov_b64 exec, -1")
    if late:
        for i in OPT['sl'][4]: side(i)
    A.label("A_H2")
    srd(A, SW, pWs, WS_END)
    A(f"""
s_waitcnt lgkmcnt(0)
s_barrier
STAMP 4
ds_read_b128 v[40:43], v2 offset:{L_SORT}
ds_read_b128 v[44:47], v2 offset:{L_SORT + 8192}
s_mul_i32 s{sT}, s2, {CH * 4}
s_add_u32 s{sT}, s{sT}, {WS_REC}
s_waitcnt lgkmcnt(1)
buffer_store_dwordx4 v[40:43], v2, s[{SW}:{SW+3}], s{sT} offen sc1
s_waitcnt lgkmcnt(0)
buffer_store_dwordx4 v[44:47], v3, s[{SW}:{SW+3}], s{sT} offen sc1
""")
    A(f"""
s_cmp_lg_u32 s{sWave}, 0
s_cbranch_scc1 A_DRAIN
""")
    A.label("A_NONCE")
    A(f"""
s_waitcnt vmcnt(0)
v_readfirstlane_b32 s{sTagLo}, v16
v_readfirstlane_b32 s{sTagB}, v17
s_cmp_lt_i32 s{sTagB}, 0
s_cbranch_scc1 A_HAVETAG
A_NONCE2:
s_sub_u32 s{sCnt}, s{sCnt}, 1
s_cmp_eq_u32 s{sCnt}, 0
s_cbranch_scc1 B_END
s_sleep 1
global_load_dwordx2 v[16:17], v15, s[{pDbg}:{pDbg+1}] sc1
s_waitcnt vmcnt(0)
v_readfirstlane_b32 s{sTagLo}, v16
v_readfirstlane_b32 s{sTagB}, v17
s_cmp_lt_i32 s{sTagB}, 0
s_cbranch_scc0 A_NONCE2
""")
    A.label("A_HAVETAG")
    A(f"""
v_and_b32 v17, 0xff, v17
v_mov_b32 v15, {L_FLAG}
ds_write_b64 v15, v[16:17] offset:16
s_and_b32 s{sTagB}, s{sTagB}, 0xff
""")
    A.label("A_DRAIN")
    A(f"""
s_waitcnt vmcnt(0) lgkmcnt(0)
s_barrier
s_cmp_lg_u32 s{sWave}, 0
s_cbranch_scc1 A_PUBLISHED
s_lshl_b32 s{sT}, s{sTagB}, 24
v_mov_b32 v41, s{sTagLo}
v_mov_b32 v43, s{sTagLo}
v_mov_b32 v45, s{sTagLo}
v_mov_b32 v47, s{sTagLo}
v_lshl_or_b32 v40, v72, 12, v80
v_lshl_or_b32 v42, v73, 12, v81
v_lshl_or_b32 v44, v74, 12, v82
v_lshl_or_b32 v46, v75, 12, v83
v_or_b32 v40, s{sT}, v40
v_or_b32 v42, s{sT}, v42
v_or_b32 v44, s{sT}, v44
v_or_b32 v46, s{sT}, v46
""")
    if not OPT["ttbl"]:
        A(f"""
v_lshlrev_b32 v14, 5, v{vLane}
s_lshl_b32 s{sT}, s2, 11
s_add_u32 s{sT}, s{sT}, {WS_TBL}
buffer_store_dwordx4 v[40:43], v14, s[{SW}:{SW+3}], s{sT} offen sc1
buffer_store_dwordx4 v[44:47], v14, s[{SW}:{SW+3}], s{sT} offen offset:16 sc1
""")
    else:
        A(f"""
v_lshlrev_b32 v14, 13, v{vLane}
v_add_u32 v15, 0x1000, v14
s_lshl_b32 s{sT}, s2, 3
s_add_u32 s{sT}, s{sT}, {WS_TBL}
buffer_store_dwordx2 v[40:41], v14, s[{SW}:{SW+3}], s{sT} offen sc1
buffer_store_dwordx2 v[42:43], v14, s[{SW}:{SW+3}], s{sT} offen offset:2048 sc1
buffer_store_dwordx2 v[44:45], v15, s[{SW}:{SW+3}], s{sT} offen sc1
buffer_store_dwordx2 v[46:47], v15, s[{SW}:{SW+3}], s{sT} offen offset:2048 sc1
""")
    A.label("A_PUBLISHED")
    A("STAMP 5")
    if OPT["etouch"]:
        srd(A, SE, pE, N_EDGES, stride=32)
        A(f"v_mul_u32_u24 v247, {N_EDGES // 512}, v{vTID}")
        A(f"buffer_load_dword v{vDummy}, v247, s[{SE}:{SE+3}], 0 idxen")
    if OPT["sidepost"]:
        for i in range(7): side(i)
    A(f"v_mov_b32 v15, {L_FLAG}")
    A("ds_read_b64 v[16:17], v15 offset:16")
    A(f"""
v_lshrrev_b32 v4, 1, v{vTID}
v_mul_u32_u24 v{vC25}, {CH}, v4
v_lshlrev_b32 v4, {3 if OPT["ttbl"] else 11}, v4
s_waitcnt lgkmcnt(0)
v_readfirstlane_b32 s{sTagLo}, v16
v_readfirstlane_b32 s{sTagB}, v17
""")
    if OPT["sidepost"]:
        fill_lists(A)
        zero_s(A)
        A("s_waitcnt vmcnt(0)")
        A("s_barrier")
    A(f"""
s_lshr_b32 s{sT}, s{sWave}, 2
s_lshl_b32 s{sT}, s{sT}, 12
s_add_u32 s{sT}, s{sT}, {L_XROW}
v_and_b32 v216, 31, v{vLane}
v_bfe_u32 v217, v{vLane}, 1, 3
v_lshlrev_b32 v216, 7, v216
v_add_u32 v216, s{sT}, v216
""")
    for s_ in range(4):
        A(f"v_or_b32 v218, {2*s_}, v222")
        A(f"v_xor_b32 v218, v218, v217")
        A(f"v_lshl_add_u32 v218, v218, 4, v216")
        A(f"ds_read_b128 v[{X+4*s_}:{X+4*s_+3}], v218")
    tr_addr(A, 216, L_WRAW, 256)
    A(f"""
s_lshr_b32 s{sT}, s{sWave}, 2
s_lshl_b32 s{sT}, s{sT}, 12
s_and_b32 s{sT2}, s{sWave}, 3
s_lshl_b32 s{sT2}, s{sT2}, 6
s_add_u32 s{sT}, s{sT}, s{sT2}
v_add_u32 v217, s{sT}, v216
v_add_u32 v218, s{sT2}, v216
""")
    WC = 112
    for j, (reg, off) in enumerate(((217, 0), (217, 32 * 256), (218, 128 * 256))):
        A(f"ds_read_b64_tr_b16 v[{WC+4*j}:{WC+1+4*j}], v{reg} offset:{off}")
        A(f"ds_read_b64_tr_b16 v[{WC+2+4*j}:{WC+3+4*j}], v{reg} offset:{off + 1024}")
    for s_ in range(4):
        A(f"ds_read_b64_tr_b16 v[{D[0]+4*s_}:{D[0]+4*s_+1}], v218 offset:{(64 + 16*s_) * 256}")
        A(f"ds_read_b64_tr_b16 v[{D[0]+4*s_+2}:{D[0]+4*s_+3}], v218 offset:{(64 + 16*s_) * 256 + 1024}")
    A(f"s_mov_b32 s{sT3}, {f2u(SCALE):#x}")
    A("s_waitcnt lgkmcnt(8)")
    for j in range(12):
        A(f"v_lshlrev_b32 v219, 16, v{WC+j}")
        A(f"v_and_b32 v220, 0xffff0000, v{WC+j}")
        A(f"v_mul_f32 v219, s{sT3}, v219")
        A(f"v_mul_f32 v220, s{sT3}, v220")
        A(f"v_cvt_pk_bf16_f32 v{WC+j}, v219, v220")
    A(f"""
v_lshlrev_b32 v219, 4, v{vLane}
s_lshl_b32 s{sT}, s{sWave}, 10
s_add_u32 s{sT}, s{sT}, {L_WST}
v_add_u32 v219, s{sT}, v219
""")
    A(f"ds_write_b128 v219, v[{WC}:{WC+3}]")
    A(f"ds_write_b128 v219, v[{WC+4}:{WC+7}] offset:8192")
    A("s_waitcnt lgkmcnt(2)")
    for s_ in range(4):
        A(f"v_mfma_f32_32x32x16_bf16 v[{D[1]}:{D[1]+15}], v[{X+4*s_}:{X+4*s_+3}], v[{D[0]+4*s_}:{D[0]+4*s_+3}], {'0' if s_ == 0 else f'v[{D[1]}:{D[1]+15}]'}")
    A(f"s_cmp_ge_u32 s{sWave}, 4")
    A("s_cbranch_scc1 B_NOWC")
    A(f"ds_write_b128 v219, v[{WC+8}:{WC+11}] offset:16384")
    A.label("B_NOWC")
    A(f"""
v_lshlrev_b32 v223, 16, v223
v_mul_f32 v223, s{sT3}, v223
v_mul_u32_u24 v224, {QSTR}, v221
s_lshr_b32 s{sT}, s{sWave}, 2
s_lshl_b32 s{sT}, s{sT}, 6
v_lshl_add_u32 v224, v222, 3, v224
v_add_u32 v224, s{sT}, v224
""")
    for j in range(16): A(f"v_fma_f32 v{D[1]+j}, v{D[1]+j}, s{sT3}, v223")
    for g in range(4):
        A(f"v_cvt_pk_bf16_f32 v{X+2*g}, v{D[1]+4*g}, v{D[1]+4*g+1}")
        A(f"v_cvt_pk_bf16_f32 v{X+2*g+1}, v{D[1]+4*g+2}, v{D[1]+4*g+3}")
    for g in range(2):
        A(f"ds_write_b64 v224, v[{X+2*g}:{X+2*g+1}] offset:{L_QT + 16*g}")
    A(f"s_cmp_ge_u32 s{sWave}, 4")
    A(f"s_cbranch_scc1 B_QDONE")
    for g in range(2, 4):
        A(f"ds_write_b64 v224, v[{X+2*g}:{X+2*g+1}] offset:{L_QT + 16*g}")
    A.label("B_QDONE")
    if not OPT["sidepost"]:
        fill_lists(A)
        zero_s(A)
    if OPT["lcearly"]:
        srd(A, SX, pX, N_NODES, stride=128)
        srd(A, SE, pE, N_EDGES, stride=32)
        lane_consts(A)
    A("s_waitcnt lgkmcnt(0)")
    A("s_barrier")
    if OPT["wearly"]:
        A(f"v_lshlrev_b32 v1, 4, v{vLane}")
        A(f"v_add_u32 v1, {L_WST}, v1")
        for u in range(16): A(f"ds_read_b128 v[{W+4*u}:{W+4*u+3}], v1 offset:{1024*u}")
        for c in range(4): A(f"ds_read_b128 v[{We+4*c}:{We+4*c+3}], v1 offset:{1024*(16+c)}")
    for _ in range(OPT["predelay"]): A("s_sleep 8")
    A(f"""
s_lshl_b32 s{sT}, s2, {11 if OPT["ttbl"] else 3}
s_add_u32 s{sT}, s{sT}, {WS_TBL}
s_mov_b32 s{sCnt}, 0x400000
s_mov_b32 s{sFirst}, 1
STAMP 6
""")
    if not OPT["ppoll"]:
        A.label("B_POLL")
        A(f"""
buffer_load_dwordx2 v[{vTbl}:{vTbl+1}], v4, s[{SW}:{SW+3}], s{sT} offen sc1
s_waitcnt vmcnt(0)
v_lshrrev_b32 v5, 24, v{vTbl}
v_cmp_ne_u32 vcc, s{sTagLo}, v{vTbl+1}
v_cmp_ne_u32 s[{sEx}:{sEx+1}], s{sTagB}, v5
s_or_b64 vcc, vcc, s[{sEx}:{sEx+1}]
s_and_b64 exec, exec, vcc
s_cbranch_execz B_POLLED
s_sub_u32 s{sCnt}, s{sCnt}, 1
s_cmp_eq_u32 s{sCnt}, 0
s_cbranch_scc1 B_END
s_sleep {OPT["psleep"]}
s_branch B_POLL
""")
    else:
        P = (216, 218)
        A(f"buffer_load_dwordx2 v[{P[0]}:{P[0]+1}], v4, s[{SW}:{SW+3}], s{sT} offen sc1")
        A.label("B_POLL")
        for k in (0, 1):
            a, b = P[k], P[1 - k]
            A(f"""
s_sleep {OPT["psleep"]}
buffer_load_dwordx2 v[{b}:{b+1}], v4, s[{SW}:{SW+3}], s{sT} offen sc1
s_waitcnt vmcnt(1)
v_lshrrev_b32 v5, 24, v{a}
v_cmp_ne_u32 vcc, s{sTagLo}, v{a+1}
v_cmp_ne_u32 s[{sEx}:{sEx+1}], s{sTagB}, v5
s_or_b64 vcc, vcc, s[{sEx}:{sEx+1}]
s_and_b64 s[{sEx2}:{sEx2+1}], exec, vcc
s_andn2_b64 exec, exec, vcc
v_mov_b32 v{vTbl}, v{a}
s_mov_b64 exec, s[{sEx2}:{sEx2+1}]
s_cbranch_execz B_POLLED
""")
        A(f"""
s_sub_u32 s{sCnt}, s{sCnt}, 1
s_cmp_eq_u32 s{sCnt}, 0
s_cbranch_scc1 B_END
s_branch B_POLL
""")
    A.label("B_POLLED")
    A("s_mov_b64 exec, -1")
    A("STAMP 7")
    A.label("B_ROUND")
    A(f"""
v_bfe_u32 v{vLim}, v{vTbl}, 12, 12
v_mov_b32 v245, v{vLim}
v_subrev_u32 v{vLim}, s{sLo}, v{vLim}
v_min_i32 v{vLim}, s{sR}, v{vLim}
v_and_b32 v{vT}, 1, v{vTID}
v_lshlrev_b32 v{vT}, 2, v{vT}
v_sub_u32 v{vLim}, v{vLim}, v{vT}
v_and_b32 v{tmp}, 0xfff, v{vTbl}
v_add3_u32 v{tmp}, v{tmp}, v{vC25}, v{vT}
v_add_u32 v{tmp}, s{sLo}, v{tmp}
v_lshlrev_b32 v{tmp}, 2, v{tmp}
v_mov_b32 v{tmp2+1}, 0x7ffffff0
s_mov_b32 s{sT}, {WS_REC}
""")
    for g in range(4):
        A(f"v_cmp_lt_i32 vcc, {8*g}, v{vLim}")
        A(f"v_cndmask_b32 v{tmp2}, v{tmp2+1}, v{tmp}, vcc")
        A(f"buffer_load_dwordx4 v[{R+4*g}:{R+4*g+3}], v{tmp2}, s[{SW}:{SW+3}], s{sT} offen offset:{32*g}{OPT['recpol']}")
    A(f"s_cmp_eq_u32 s{sFirst}, 0")
    A("s_cbranch_scc1 B_NOTFIRST")
    if not OPT["lcearly"]:
        srd(A, SX, pX, N_NODES, stride=128)
        srd(A, SE, pE, N_EDGES, stride=32)
        lane_consts(A)
    A(f"""
v_lshlrev_b32 v1, 4, v{vLane}
v_add_u32 v1, {L_WST}, v1
""")
    if not OPT["wearly"]:
        for u in range(16): A(f"ds_read_b128 v[{W+4*u}:{W+4*u+3}], v1 offset:{1024*u}")
        for c in range(4): A(f"ds_read_b128 v[{We+4*c}:{We+4*c+3}], v1 offset:{1024*(16+c)}")
    A(f"s_mov_b32 s{sFirst}, 0")
    A("s_branch B_COUNT")
    A.label("B_NOTFIRST")
    A("s_waitcnt lgkmcnt(0)")
    A("s_barrier")
    A.label("B_COUNT")
    A(f"""
v_mov_b32 v246, {L_FLAG}
ds_max_u32 v246, v245
v_mov_b32 v{vT}, 1
""")
    def a4(j):
        A(f"v_lshrrev_b32 v{A4+j}, 24, v{R+j}")
        A(f"v_and_b32 v{A4+j}, 0xfc, v{A4+j}")
    if OPT["cpin"]:
        A(f"s_lshl_b32 s{sT}, s{sS6}, 2")
        A(f"s_mov_b32 s{SE+2}, {N_EDGES}")
    A("s_waitcnt vmcnt(0)" if OPT["cpin"] else "s_waitcnt vmcnt(2)")
    for j in range(8): a4(j)
    for g in range(4):
        if g >= 2:
            if not OPT["cpin"]: A(f"s_waitcnt vmcnt({3 - g})")
            for i in range(4): a4(4 * g + i)
        for i in range(4):
            A(f"v_cmpx_lt_i32 vcc, {8*g+i}, v{vLim}")
            if i % 2 == 0: A("s_cbranch_execz B_COUNTED")
            A(f"ds_add_rtn_u32 v{RK+4*g+i}, v{A4+4*g+i}, v{vT} offset:{L_CNT}")
            if OPT["cpin"] and g < OPT["cpg"]:
                j = 4 * g + i
                A(f"v_subrev_u32 v246, s{sT}, v{A4+j}")
                A(f"v_bfe_u32 v247, v{R+j}, 14, 12")
                A(f"v_cmp_gt_u32 vcc, {4 * OPT['cpin']}, v246")
                A(f"v_add_u32 v247, v{vC25}, v247")
                A(f"s_and_saveexec_b64 s[{sEx}:{sEx+1}], vcc")
                A(f"buffer_load_dword v{vDummy}, v247, s[{SE}:{SE+3}], 0 idxen")
                A(f"s_mov_b64 exec, s[{sEx}:{sEx+1}]")
    A.label("B_COUNTED")
    if OPT["cpre"]:
        A("s_mov_b64 exec, -1")
        A("s_waitcnt vmcnt(0)")
        A(f"s_lshl_b32 s{sT}, s{sS6}, 2")
        A(f"s_mov_b32 s{SE+2}, {N_EDGES}")
        for j in range(8):
            A(f"v_subrev_u32 v246, s{sT}, v{A4+j}")
            A(f"v_bfe_u32 v247, v{R+j}, 14, 12")
            A(f"v_cmpx_gt_u32 vcc, {4 * OPT['cpre']}, v246")
            A(f"v_add_u32 v247, v{vC25}, v247")
            A(f"buffer_load_dword v{vDummy}, v247, s[{SE}:{SE+3}], 0 idxen")
            A("s_mov_b64 exec, -1")
        A("s_waitcnt lgkmcnt(0)")
        A("s_barrier")
        A("STAMP 8")
    else:
      A(f"""
s_mov_b64 exec, -1
s_waitcnt {"" if OPT["cpin"] else "vmcnt(0) "}lgkmcnt(0)
s_barrier
STAMP 8
""")
    A(f"""
v_mov_b32 v{tmp2}, 0
ds_read_b32 v{tmp}, v{vN6} offset:{L_CNT}
ds_read_b32 v{tmp2}, v{tmp2} offset:{L_FLAG}
v_cmp_gt_u32 vcc, s{sNn}, v{vLane}
s_waitcnt lgkmcnt(0)
v_readfirstlane_b32 s{sMax}, v{tmp2}
v_add_u32 v{NT}, 3, v{tmp}
v_lshrrev_b32 v{NT}, 2, v{NT}
v_max_u32 v{NT}, 1, v{NT}
v_cndmask_b32 v{NT}, 0, v{NT}, vcc
v_mov_b32 v{NT+1}, v{NT}
""")
    wave_scan(A, NT + 1)
    es(A, "j")
    A(f"""
v_readlane_b32 s{sTot}, v{NT+1}, 63
v_sub_u32 v{NT+4}, v{NT+1}, v{NT}
v_lshlrev_b32 v{NT+4}, 2, v{NT+4}
v_mov_b32 v{NT+5}, v{vOhp}
v_lshlrev_b32 v{NT+6}, 10, v{vLane}
s_cmp_gt_u32 s{sTot}, {CAPQ}
s_cbranch_scc1 B_OVERFLOW
s_and_saveexec_b64 s[{sEx}:{sEx+1}], vcc
v_add_u32 v{vdeg}, v{vdeg}, v{tmp}
v_lshlrev_b32 v{tmp}, 1, v{vN6}
ds_write_b64 v{tmp}, v[{NT+4}:{NT+5}] offset:{L_NTAB}
s_mov_b64 exec, s[{sEx}:{sEx+1}]
v_mov_b32 v{tmp}, s{sWave}
v_lshl_add_u32 v{tmp2}, v{tmp}, 2, v{NT+4}
B_QFILL:
v_cmpx_lt_u32 vcc, v{tmp}, v{NT}
s_cbranch_execz B_QFILLED
ds_write_b32 v{tmp2}, v{NT+6} offset:{L_QADDR}
v_add_u32 v{tmp}, 8, v{tmp}
v_add_u32 v{tmp2}, 32, v{tmp2}
s_branch B_QFILL
B_QFILLED:
s_mov_b64 exec, -1
v_mov_b32 v{vT}, {L_LIST}
s_mov_b32 s{sT3}, {L_LIST + 1024}
s_mov_b32 s{SE+2}, {N_EDGES}
s_mov_b32 s{sT4}, 0x3fff
s_waitcnt lgkmcnt(0)
""")
    def scatter_batch(groups, tag):
        if groups[0] >= 2: A(f"v_cmpx_lt_i32 vcc, {8*groups[0]}, v{vLim}")
        for n, g in enumerate(groups):
            for i in range(4):
                j = 4 * g + i; t = NT + 8 + 4 * (4 * n + i)
                A(f"v_lshlrev_b32 v{tmp}, 1, v{A4+j}")
                A(f"ds_read_b64 v[{t}:{t+1}], v{tmp} offset:{L_NTAB}")
        A("s_waitcnt lgkmcnt(0)")
        def body(g, i):
            j = 4 * g + i; t = NT + 8 + 4 * (4 * groups.index(g) + i)
            A(f"v_add_u32 v{t}, v{t}, v{RK+j}")
            A(f"v_and_or_b32 v{t+2}, v{R+j}, s{sT4}, v{t+1}")
            A(f"v_bfe_u32 v{t+3}, v{R+j}, 14, 12")
            A(f"v_lshl_add_u32 v{t}, v{t}, 3, v{vT}")
            A(f"v_add_u32 v{t+3}, v{vC25}, v{t+3}")
            A(f"ds_write_b64 v{t}, v[{t+2}:{t+3}]")
            if OPT["epre"]:
                A(f"v_cmp_gt_u32 vcc, s{sT3}, v{t}")
                A(f"s_and_saveexec_b64 s[{sEx}:{sEx+1}], vcc")
                A(f"buffer_load_dword v{vDummy}, v{t+3}, s[{SE}:{SE+3}], 0 idxen")
                A(f"s_mov_b64 exec, s[{sEx}:{sEx+1}]")
        sort_slots(A, body, groups, tag)
    scatter_batch([0, 1], "B_SC1")
    A.label("B_SC1")
    A(f"""
s_mov_b64 exec, -1
v_cmp_lt_i32 vcc, 16, v{vLim}
s_cbranch_vccz B_SC3
""")
    scatter_batch([2], "B_SC2")
    A.label("B_SC2")
    A(f"""
s_mov_b64 exec, -1
v_cmp_lt_i32 vcc, 24, v{vLim}
s_cbranch_vccz B_SC3
""")
    scatter_batch([3], "B_SC3")
    A.label("B_SC3")
    A("s_mov_b64 exec, -1")
    A(f"""
s_add_u32 s{sT}, s{sTot}, 7
s_lshr_b32 s{sT}, s{sT}, 3
s_lshr_b32 s{sT2}, s{sT}, 3
s_and_b32 s{sT3}, s{sT}, 7
s_mul_i32 s{sT0}, s{sT2}, s{sWave}
s_min_u32 s{sN}, s{sWave}, s{sT3}
s_add_u32 s{sT0}, s{sT0}, s{sN}
s_cmp_lt_u32 s{sWave}, s{sT3}
s_cselect_b32 s{sN}, 1, 0
s_add_u32 s{sN}, s{sN}, s{sT2}
""")
    if OPT["skew"]:
        k = OPT["skew"]
        A(f"""
s_cmp_lt_u32 s{sT2}, {2*k + 1}
s_cbranch_scc1 B_NOSKEW
s_min_u32 s{sT3}, s{sWave}, 4
s_sub_u32 s{sT4}, s{sWave}, s{sT3}
s_sub_u32 s{sT3}, s{sT3}, s{sT4}
s_mul_i32 s{sT3}, s{sT3}, {k}
s_add_u32 s{sT0}, s{sT0}, s{sT3}
s_cmp_lt_u32 s{sWave}, 4
s_cselect_b32 s{sT3}, {k}, {-k & 0xffffffff}
s_add_u32 s{sN}, s{sN}, s{sT3}
B_NOSKEW:
""")
    A(f"""
s_add_u32 s{sT3}, s{sTot}, 7
s_lshr_b32 s{sT3}, s{sT3}, 6
s_add_u32 s{sT2}, s{sT0}, 7
s_sub_u32 s{sT2}, s{sT2}, s{sWave}
s_sub_u32 s{sT2}, s{sT2}, s{sWave}
s_cmp_ge_u32 s{sT3}, 3
s_cselect_b32 s{sDel}, s{sT2}, 0
s_cselect_b32 s{sT0}, s{sWave}, s{sT0}
""")
    A(f"""
s_mul_i32 s{sT}, s{sT0}, {TB}
s_add_u32 s{sT}, s{sT}, {L_LIST}
v_add_u32 v{aX}, s{sT}, v{cX}
v_add_u32 v{aG}, s{sT}, v{cG}
v_add_u32 v{aO}, s{sT}, v{cO}
s_lshl_b32 s{sT}, s{sT0}, 5
s_add_u32 s{sT}, s{sT}, {L_QADDR}
v_mov_b32 v{aN}, s{sT}
v_add_u32 v{aQ}, s{sT}, v{v16h}
s_waitcnt lgkmcnt(0)
s_barrier
""")
    for _ in range(OPT["diagsleep"]): A("s_sleep 36")
    A(f"""
STAMP 12
s_cmp_eq_u32 s{sN}, 0
s_cbranch_scc1 B_NOTILES
s_cmp_lg_u32 s{sMode}, 0
s_cbranch_scc1 B_SAFE
""")
    main_loop(A, True)
    A.label("B_SAFE")
    main_loop(A, False)
    A.label("B_NOTILES")
    load_w2(A)
    if OPT["stagger"]: A("s_barrier")
    if OPT["stagger"] == 2: A("s_barrier")
    A.label("B_LOOPEND")
    A(f"""
s_setprio 0
STAMP 10
CSTAMP 14
s_waitcnt vmcnt(0)
""")
    A(f"""
v_lshrrev_b32 v3, 5, v{vLane}
s_and_b32 s{sT}, s{sWave}, 1
s_lshl_b32 s{sT}, s{sT}, 6
v_lshlrev_b32 v4, 3, v3
v_add_u32 v4, s{sT}, v4
""")
    A(f"""
s_waitcnt vmcnt(0) lgkmcnt(0)
s_barrier
s_add_u32 s{sLo}, s{sLo}, s{sR}
s_cmp_ge_u32 s{sLo}, s{sMax}
s_cbranch_scc1 B_FINISH
""")
    fill_lists(A)
    A("s_branch B_ROUND")
    A.label("B_OVERFLOW")
    A(f"s_mov_b32 s{sR}, 8")
    A.label("B_RESTART")
    A(f"""
s_barrier
s_mov_b32 s{sLo}, 0
v_mov_b32 v{vdeg}, 0
v_mov_b32 v{chk}, 0
v_mov_b32 v{chk+1}, 0
""")
    fill_lists(A)
    zero_s(A)
    A("s_branch B_ROUND")
    A.label("B_FINISH")
    SB = L_LIST
    wf = lambda s_: (216 + 4 * s_) if s_ < 6 else (120 + 4 * (s_ - 6))
    BU = E
    A(f"""
v_lshlrev_b32 v{tmp}, 4, v{vTID}
""")
    for j in range(5):
        A(f"ds_read_b128 v[{E+4*j}:{E+4*j+3}], v{tmp} offset:{L_S + 8192*j}")
    tr_addr(A, 11, L_W2, 128)
    A(f"s_and_b32 s{sT}, s{sWave}, 1")
    A(f"s_lshl_b32 s{sT}, s{sT}, 6")
    A(f"v_add_u32 v11, s{sT}, v11")
    A(f"""
v_mov_b32 v5, 0x71800000
v_cmp_nlt_f32 vcc, v{chk}, v5
v_cmp_nlt_f32 s[{sEx}:{sEx+1}], v{chk+1}, v5
s_or_b64 vcc, vcc, s[{sEx}:{sEx+1}]
v_lshlrev_b32 v6, 2, v{vLane}
ds_write_b32 v6, v{vdeg} offset:{L_DEG}
""")
    A(f"v_add_u32 v6, {L_W2 + 16384}, v4")
    for g in range(4): A(f"ds_read_b64 v[{104+2*g}:{105+2*g}], v6 offset:{16*g}")
    for s_ in range(4):
        A(f"ds_read_b64_tr_b16 v[{wf(s_)}:{wf(s_)+1}], v11 offset:{2048*s_}")
        A(f"ds_read_b64_tr_b16 v[{wf(s_)+2}:{wf(s_)+3}], v11 offset:{2048*s_ + 512}")
    A(f"""
v_lshrrev_b32 v7, 6, v{vTID}
v_mul_u32_u24 v7, {SBSTR}, v7
v_and_b32 v8, 63, v{vTID}
v_lshl_add_u32 v7, v8, 2, v7
v_add_u32 v7, {SB}, v7
v_mov_b32 v9, {f2u(1.0 / SCALE):#x}
v_mov_b32 v10, 0
s_waitcnt lgkmcnt(13)
""")
    for j in range(10): A(f"v_cvt_f32_f64 v{D[1]+j}, v[{E+2*j}:{E+2*j+1}]")
    for s_ in range(4, 8):
        A(f"ds_read_b64_tr_b16 v[{wf(s_)}:{wf(s_)+1}], v11 offset:{2048*s_}")
        A(f"ds_read_b64_tr_b16 v[{wf(s_)+2}:{wf(s_)+3}], v11 offset:{2048*s_ + 512}")
    for j in range(10): A(f"v_mul_f32 v{D[1]+j}, v9, v{D[1]+j}")
    for j in range(5):
        A(f"v_cvt_pk_bf16_f32 v{E+j}, v{D[1]+2*j}, v{D[1]+2*j+1}")
        A(f"ds_write_b32 v7, v{E+j} offset:{8*SBSTR*j}")
    for j in range(10): A(f"v_fmac_f32 v10, 0, v{D[1]+j}")
    A(f"v_cmp_u_f32 s[{sEx}:{sEx+1}], v10, v10")
    A(f"s_or_b64 vcc, vcc, s[{sEx}:{sEx+1}]")
    A(f"""
s_cmp_eq_u64 vcc, 0
s_cbranch_scc1 B_NOFLAG
v_mov_b32 v5, {L_FLAG}
v_mov_b32 v6, 1
ds_write_b32 v5, v6 offset:4
""")
    A.label("B_NOFLAG")
    A(f"""
s_lshr_b32 s{sT}, s{sWave}, 1
s_lshl_b32 s{sT}, s{sT}, 5
v_and_b32 v2, 31, v{vLane}
v_add_u32 v2, s{sT}, v2
v_mul_u32_u24 v5, {SBSTR}, v2
v_lshl_add_u32 v5, v3, 4, v5
v_add_u32 v5, {SB}, v5
v_lshlrev_b32 v6, 2, v2
v_add_u32 v8, s{sStart}, v2
v_lshlrev_b32 v8, 7, v8
v_add_u32 v8, v8, v4
v_mov_b32 v9, {L_FLAG}
""")
    B2 = 104
    A("s_waitcnt lgkmcnt(12)")
    for g in range(4):
        A(f"v_lshlrev_b32 v{BU+4*g}, 16, v{B2+2*g}")
        A(f"v_and_b32 v{BU+4*g+1}, 0xffff0000, v{B2+2*g}")
        A(f"v_lshlrev_b32 v{BU+4*g+2}, 16, v{B2+2*g+1}")
        A(f"v_and_b32 v{BU+4*g+3}, 0xffff0000, v{B2+2*g+1}")
    srd(A, SO, pOut, N_NODES * 128)
    A(f"""
s_waitcnt lgkmcnt(0)
s_barrier
ds_read_b32 v10, v9 offset:4
ds_read_b32 v7, v6 offset:{L_DEG}
""")
    for s_ in range(8):
        A(f"ds_read_b128 v[{X+4*s_}:{X+4*s_+3}], v5 offset:{32*s_}")
    A(f"""
s_waitcnt lgkmcnt(9)
v_readfirstlane_b32 s{sT}, v10
s_cmp_lg_u32 s{sMode}, 0
s_cbranch_scc1 B_OUT
s_cmp_eq_u32 s{sT}, 0
s_cbranch_scc1 B_OUT
s_mov_b32 s{sMode}, 1
s_waitcnt lgkmcnt(0)
""")
    lane_consts(A)
    A("s_branch B_RESTART")
    A.label("B_OUT")
    A(f"""
s_cmp_ge_u32 s{sWave}, 4
s_cbranch_scc1 {"B_FLUSH" if OPT["stamps"] else "B_END"}
""")
    d = D[0]
    for s_ in range(8):
        A(f"s_waitcnt lgkmcnt({7 - s_})")
        A(f"v_mfma_f32_32x32x16_bf16 v[{d}:{d+15}], v[{wf(s_)}:{wf(s_)+3}], v[{X+4*s_}:{X+4*s_+3}], {'0' if s_ == 0 else f'v[{d}:{d+15}]'}")
    A(f"""
v_cvt_f32_u32 v7, v7
v_cmp_gt_u32 vcc, s{sNn}, v2
""")
    for j in range(16):
        A(f"v_fma_f32 v{d+j}, v7, v{BU+j}, v{d+j}")
    A(f"s_and_saveexec_b64 s[{sEx}:{sEx+1}], vcc")
    for g in range(4):
        A(f"v_cvt_pk_bf16_f32 v{D[1]+2*g}, v{d+4*g}, v{d+4*g+1}")
        A(f"v_cvt_pk_bf16_f32 v{D[1]+2*g+1}, v{d+4*g+2}, v{d+4*g+3}")
        A(f"buffer_store_dwordx2 v[{D[1]+2*g}:{D[1]+2*g+1}], v8, s[{SO}:{SO+3}], 0 offen offset:{16*g}")
    if OPT["stamps"]:
        A.label("B_FLUSH")
        A("s_waitcnt vmcnt(0)")
        A("STAMP 12" if False else "STAMP 15")
        stamp_flush(A, 16)
    A.label("B_END")
    A("s_endpgm")
    A.pad()
    bad = A.check_loop("B_LOOPS", "s_cbranch_scc0 B_LOOPS")
    assert not bad, bad
    return A

def main(path):
    k = kernel()
    hdr = open("cdna_kernels/" + NAME + ".s.ref").read().split("; Override launch geometry")[0]
    s = hdr
    s += """; One workgroup per CU, 8 waves.  Workgroup c
"""
    s += f"; @launch grid=({NB},1,1) block=(512,1,1) lds={LDS_B}\n"
    s += '.amdgcn_target "amdgcn-amd-amdhsa--gfx950"\n.text\n'
    s += f".globl {KB}\n.p2align 8\n.type {KB},@function\n" + k.text()
    acc = (NVGPR + 3) // 4 * 4
    s += f""".section .rodata,"a"
.p2align 6
.amdhsa_kernel {KB}
  .amdhsa_next_free_vgpr {NVGPR}
  .amdhsa_next_free_sgpr 102
  .amdhsa_accum_offset {acc}
  .amdhsa_group_segment_fixed_size 0
  .amdhsa_kernarg_size 88
  .amdhsa_user_sgpr_count 2
  .amdhsa_user_sgpr_kernarg_segment_ptr 1
  .amdhsa_system_sgpr_workgroup_id_x 1
.end_amdhsa_kernel
"""
    open(path, "w").write(s)

if __name__ == "__main__":
    main(OPT["out"] or "cdna_kernels/" + NAME + ".s")
```

```python
import sys, struct
from asmlib import Asm

NAME = "gather_scatter__edge_featured_mpnn_mpnn__graph"
KB = NAME + "_kernel"
N_NODES = 10000; N_EDGES = 640000; NB = 256; CH = 2500
WS_TBL = 0; WS_REC = NB * NB * 8; WS_END = WS_REC + N_EDGES * 4 + 4096
BF_ONE = 0x3F80
SCALE = -1.4426950408889634
def f2u(x): return struct.unpack("<I", struct.pack("<f", x))[0]

OPT = dict(prio=True, stamps=False, noadd=False, nodma=False, nomfma=False, novalu=False, xwarm=False, ewarm=False, psched=((2, 1), (1, 0)), estream=0, es=(4, 3, 3), touch=False, epre=False, cpre=0, cpin=3, cpg=2, etouch=False, stpol=' sc1', xw=False, epol='', xpol='', xpre=False, sidepost=False, w2at=1, rot=False, sl=((0, 1), (2,), (3,), (4,), (5, 6)), sidelate=True, elast=False, eph=3, edist=1, xph=3, clip=True, ttbl=False, ppoll=False, wearly=False, predelay=0, w0=True, diagsleep=0, lcearly=False, psleep=2, qskip=False, recpol=' sc1', fflush=True, prioflip=False, defer=False, layout='', skew=1, es2='', stagger=0, seqform=True, dmaspread=True, late=False, prime2=True, out=None)
for a in sys.argv[1:]:
    if "=" in a:
        k, v = a.split("=", 1); OPT[k] = eval(v)

L_S = 0; L_CNT = 40960; L_NTAB = 41216; L_DEG = 42240; L_FLAG = 42496; L_QT = 42752
L_QADDR = 57088; L_QEND = 60416; L_OHT = 65024; L_OHZ = 65536; L_XB0 = 65792; XBS = 6144
L_LIST = L_XB0 + 8 * XBS; LIST_BYTES = 25600; L_Z = L_LIST + LIST_BYTES; LDS_B = L_Z + 20480
L_HIST = 0; L_BASE = 1024; L_SORT = 2048; L_WRAW = L_XB0; L_XROW = L_XB0 + 40960; L_WST = L_Z
L_W2 = L_Z
QSTR = 112; CAPQ = 768; SBSTR = 272
TB = 256

vTID = 0
aX, aG, aO, aQ, aN = 1, 2, 3, 4, 5
xr = [6, 7, 8, 9]; eAddr = 10; vQ = 11; qbase = 12; c1 = 13; lanecol = 14; ohaddr = 15
xi = [16, 18, 20, 22]; ei = 24; node0 = 26; tmp = 27; chk = 28; tmp2 = 30
qa = [32, 36]
E = 40; D = [56, 72]; X = 88; Ea = 104; OH = 108; Qx = 112; We = 128; W = 144
vTbl = 208; vdeg = 210; vLane = 211; vN6 = 212; vOhp = 213; vC25 = 214; vLim = 215
TU = [216, 224]; F64 = 232; vT = 240; v16h = 241
cX, cG, cO = 242, 243, 244
EaB = [Ea, 248] if OPT['edist'] == 1 else [Ea, Ea]; EL = [248, 252]
vDummy = 252
NVGPR = 256
R = 40; RK = 56; A4 = 72; NT = 88

SX = 4; SE = 8; SW = 12; SO = 16; SP = 20
sEx = 24; sEx2 = 26; sT = 28; sT2 = 29; sT3 = 30; sT4 = 31
sWave = 32; sStart = 33; sNn = 34; sS6 = 35; sXB = 36; sN = 37; sT0 = 38; sMode = 39
sR = 40; sLo = 41; sMax = 42; sTagLo = 43; sTot = 44; sTagB = 45; sCnt = 46
pX, pE, pSrc, pDst, pW1, pB1, pW2, pB2 = 48, 50, 52, 54, 56, 58, 60, 62
pOut, pDbg, pWs = 96, 98, 100
WS_STAMP = 8 << 20

def srd(A, d, base, size, stride=0):
    A(f"s_mov_b32 s{d}, s{base}")
    A(f"s_and_b32 s{d+1}, s{base+1}, 0xffff")
    if stride: A(f"s_or_b32 s{d+1}, s{d+1}, {stride << 16:#x}")
    A(f"s_mov_b32 s{d+2}, {size}")
    A(f"s_mov_b32 s{d+3}, 0x20000")

def stamp_flush(A, n):
    if not OPT["stamps"]: return
    A("s_waitcnt vmcnt(0) lgkmcnt(0)")
    A("s_mov_b64 exec, -1")
    A(f"s_lshl_b32 s{sT}, s2, 4")
    A(f"s_add_u32 s{sT}, s{sT}, s{sWave}")
    A(f"s_lshl_b32 s{sT}, s{sT}, 6")
    A(f"s_add_u32 s{sT}, s{sT}, {WS_STAMP}")
    A(f"s_add_u32 s{sEx}, s{pWs}, s{sT}")
    A(f"s_addc_u32 s{sEx+1}, s{pWs+1}, 0")
    A("v_mov_b32 v1, 0")
    for i in range(n):
        A(f"v_mov_b32 v2, s{64+2*i}")
        A(f"global_store_dword v1, v2, s[{sEx}:{sEx+1}] offset:{4*i}")
    A("s_waitcnt vmcnt(0)")

def wave_scan(A, v):
    for sh in (1, 2, 4, 8):
        A(f"v_add_u32_dpp v{v}, v{v}, v{v} row_shr:{sh} row_mask:0xf bank_mask:0xf")
    A(f"v_add_u32_dpp v{v}, v{v}, v{v} row_bcast:15 row_mask:0xa bank_mask:0xf")
    A(f"v_add_u32_dpp v{v}, v{v}, v{v} row_bcast:31 row_mask:0xc bank_mask:0xf")

def fill_lists(A):
    A(f"v_lshlrev_b32 v{tmp}, 4, v{vTID}")
    A(f"v_add_u32 v{tmp2}, {L_LIST}, v{tmp}")
    for i in range(4): A(f"v_mov_b32 v{E+i}, -1")
    for i in range(4): A(f"v_mov_b32 v{E+4+i}, 0")
    for j in range(3):
        A(f"ds_write_b128 v{tmp2}, v[{E}:{E+3}] offset:{8192*j}")
    A(f"v_cmp_gt_u32 vcc, {(L_QEND - L_QADDR) // 16}, v{vTID}")
    A(f"s_and_saveexec_b64 s[{sEx}:{sEx+1}], vcc")
    A(f"ds_write_b128 v{tmp}, v[{E+4}:{E+7}] offset:{L_QADDR}")
    A(f"v_cmp_gt_u32 vcc, {(LIST_BYTES - 3 * 8192) // 16}, v{vTID}")
    A(f"s_and_b64 exec, exec, vcc")
    A(f"ds_write_b128 v{tmp2}, v[{E}:{E+3}] offset:{8192*3}")
    A(f"v_cmp_gt_u32 vcc, 16, v{vTID}")
    A(f"s_and_b64 exec, exec, vcc")
    A(f"ds_write_b128 v{tmp}, v[{E+4}:{E+7}] offset:{L_CNT}")
    A(f"s_mov_b64 exec, s[{sEx}:{sEx+1}]")

def zero_s(A):
    for j in range(5):
        A(f"ds_write_b128 v{tmp}, v[{E+4}:{E+7}] offset:{L_S + 8192*j}")

def chain(c, d, par=0):
    q = lambda r: f"v[{r}:{r+3}]"
    dd = f"v[{d}:{d+15}]"
    M = []
    for s in range(4):
        M.append(f"v_mfma_f32_32x32x16_bf16 {dd}, {q(X+4*s)}, {q(W+16*s+4*c)}, {'0' if s == 0 else dd}")
    me = f"v_mfma_f32_32x32x16_bf16 {dd}, {q(EaB[par])}, {q(We+4*c)}, {dd}"
    mo = f"v_mfma_f32_32x32x16_bf16 {dd}, {q(OH)}, {q(Qx+4*c)}, {dd}"
    return M + ([mo, me] if OPT["elast"] else [me, mo])

def dma_x(A):
    for i in range(4):
        A(f"s_add_u32 m0, s{sXB}, {1024*i}")
        A(f"s_nop 0")
        A(f"buffer_load_dwordx4 v[{xi[i]}:{xi[i]+1}], s[{SX}:{SX+3}], 0 idxen offen lds")
def load_e(A, par, land=False):
    r = EL[par] if land else EaB[par]
    A(f"buffer_load_dwordx4 v[{r}:{r+3}], v[{ei}:{ei+1}], s[{SE}:{SE+3}], 0 idxen offen{OPT['epol']}")
def read_xidx(k): return [f"ds_read_u16 v{xi[i]}, v{aX} offset:{TB*k + 8*[0,2,8,10][i]}" for i in range(4)]
def read_eidx(k): return [f"ds_read_b32 v{ei}, v{aG} offset:{TB*k}"]
def read_a(eslot):
    L = [f"ds_read_b128 v[{X+4*s}:{X+4*s+3}], v{xr[s]}" for s in range(4)]
    L.append(f"ds_read_b128 v[{OH}:{OH+3}], v{ohaddr} offset:1")
    return L
def read_q(c): return f"ds_read_b128 v[{Qx+4*c}:{Qx+4*c+3}], v{vQ} offset:{32*QSTR*c}"
def calc_vq():
    return [f"v_add_u32 v{tmp}, v{node0}, v{c1}", f"v_lshrrev_b32 v{tmp}, 14, v{tmp}",
            f"v_lshl_add_u32 v{vQ}, v{tmp}, 5, v{qbase}", f"v_add_u32 v{ohaddr}, v{ohaddr}, v{v16h}"]
def read_meta(k, par):
    return [f"ds_read_b128 v[{qa[par]}:{qa[par]+3}], v{aQ} offset:{32*k}",
            f"ds_read_b32 v{node0}, v{aN} offset:{32*k}",
            f"ds_read_u16 v{ohaddr}, v{aO} offset:{TB*k}"]

def pk_list(d, c):
    e = E; p = lambda r: f"v[{r}:{r+1}]"
    T = TU[c & 1]; U = T + 4; Tp = TU[(c + 1) & 1]; Up = Tp + 4
    L = []
    if OPT["seqform"]:
        oct_ = ((0, 0), (8, 2))
        for o, j in oct_: L.append(f"v_pk_mul_f32 {p(Up+j)}, {p(Up+j)}, {p(Tp+j)}")
        for o, j in oct_: L.append(f"v_pk_fma_f32 {p(d+o)}, {p(d+o)}, {p(e+o+2)}, {p(d+o)}")
        for o, j in oct_: L.append(f"v_pk_add_f32 {p(e+o)}, {p(e+o)}, 1.0 op_sel_hi:[1,0]")
        for k in (1, 2, 3):
            last = k == 3
            if k > 1:
                for o, j in oct_: L.append(f"v_pk_fma_f32 {p(d+o)}, {p(d+o)}, {p(e+o+2*k)}, {p(d+o)}")
            for o, j in oct_: L.append(f"v_pk_fma_f32 {p(U+j) if last else p(d+o)}, {p(d+o+2*k)}, {p(e+o)}, {p(d+o)}")
            for o, j in oct_: L.append(f"v_pk_fma_f32 {p(T+j) if last else p(e+o)}, {p(e+o)}, {p(e+o+2*k)}, {p(e+o)}")
        L.append(f"v_pk_fma_f32 {p(chk)}, {p(T)}, {p(T+2)}, {p(chk)}")
        return L
    for o, j in ((0, 0), (8, 2)):
        L.append(f"v_pk_mul_f32 {p(Up+j)}, {p(Up+j)}, {p(Tp+j)}")
    for o in (0, 8):
        L.append(f"v_pk_add_f32 {p(e+o+2)}, {p(e+o+2)}, 1.0 op_sel_hi:[1,0]")
        L.append(f"v_pk_add_f32 {p(e+o+6)}, {p(e+o+6)}, 1.0 op_sel_hi:[1,0]")
    for o in (0, 8):
        L.append(f"v_pk_fma_f32 {p(d+o)}, {p(d+o)}, {p(e+o+2)}, {p(d+o+2)}")
        L.append(f"v_pk_fma_f32 {p(d+o+4)}, {p(d+o+4)}, {p(e+o+6)}, {p(d+o+6)}")
    for o in (0, 8):
        L.append(f"v_pk_fma_f32 {p(d+o)}, {p(d+o+2)}, {p(e+o)}, {p(d+o)}")
        L.append(f"v_pk_fma_f32 {p(d+o+4)}, {p(d+o+6)}, {p(e+o+4)}, {p(d+o+4)}")
    for o in (0, 8):
        L.append(f"v_pk_fma_f32 {p(e+o)}, {p(e+o)}, {p(e+o+2)}, {p(e+o+2)}")
        L.append(f"v_pk_fma_f32 {p(e+o+4)}, {p(e+o+4)}, {p(e+o+6)}, {p(e+o+6)}")
    for o, j in ((0, 0), (8, 2)):
        L.append(f"v_pk_mul_f32 {p(T+j)}, {p(e+o)}, {p(e+o+4)}")
    for o in (0, 8):
        L.append(f"v_pk_mul_f32 {p(d+o)}, {p(d+o)}, {p(e+o+4)}")
    for o, j in ((0, 0), (8, 2)):
        L.append(f"v_pk_fma_f32 {p(U+j)}, {p(d+o+4)}, {p(e+o)}, {p(d+o)}")
    for j in (0, 2):
        L.append(f"v_pk_add_f32 {p(chk)}, {p(chk)}, {p(T+j)}")
    return L

def flush_q(c, q):
    U = TU[c & 1] + 4
    cv = [f"v_cvt_f64_f32 v[{F64+2*j}:{F64+2*j+1}], v{U+j}" for j in range(4)]
    ad = [f"ds_add_f64 v{q+j}, v[{F64+2*j}:{F64+2*j+1}] offset:{256*(c & 3)}" for j in range(4)]
    return cv, ad

def emit(A, x):
    if isinstance(x, tuple):
        _, sreg, lab, body = x
        A(f"s_cmp_eq_u32 s{sreg}, 0")
        A(f"s_cbranch_scc1 {lab}")
        for y in body: A(y)
        A.label(lab)
    else: A(x)

def flush_block(A, c, q, hflag, lab):
    U = TU[c & 1] + 4
    cv, ad = flush_q(c, q)
    if OPT["noadd"]: ad = [f"ds_read_b32 v{tmp2}, v{tmp2+1}"] * 4
    if not OPT["fflush"]:
        for x in cv + ad: A(x)
        return
    A(f"s_cmp_eq_u32 s{hflag}, 0")
    A(f"s_cbranch_scc1 {lab}a")
    A(f"v_add_f32 v{U}, v{U}, v{U+1}")
    A(f"v_add_f32 v{U+2}, v{U+2}, v{U+3}")
    A(f"v_add_f32 v{U}, v{U}, v{U+2}")
    A(cv[0]); A(ad[0])
    A(f"s_branch {lab}b")
    A.label(f"{lab}a")
    for x in cv + ad: A(x)
    A.label(f"{lab}b")

def tile_body(A, par, hp, hc):
    k = par; p = lambda r: f"v[{r}:{r+1}]"
    W0 = "s_waitcnt lgkmcnt(0)" if OPT["w0"] else None
    for ph in range(4):
        d = D[ph & 1]; dn = D[(ph + 1) & 1]
        M = chain((ph + 1) & 3, dn, par if ph < 3 else 1 - par)
        Tp = TU[(ph + 1) & 1]; Up = Tp + 4
        Tc = TU[ph & 1]; Uc = Tc + 4
        tr = [f"v_exp_f32 v{E+j}, v{d+j}" for j in range(16)]
        hB = hc if ph >= 1 else hp; qB = qa[par] if ph >= 1 else qa[1 - par]
        hD = hc if ph >= 2 else hp; qD = qa[par] if ph >= 2 else qa[1 - par]
        cB = (ph + 3) & 3
        prev_tail = lambda h: 0 if h else 4
        extra = {i: [] for i in range(7)}
        pre = []
        if ph == 0:
            extra[1] += read_meta(k + 1, 1 - par)[1:]
            extra[2] += [f"v_add_u32 v{qa[par]+j}, v{qa[par]+j}, v{lanecol}" for j in range(1 if hc else 4)]
        if ph == 1:
            pre += [f"s_waitcnt lgkmcnt({prev_tail(hp)})"]
            extra[1] += calc_vq() + [read_q(0), read_q(1)]
            extra[2] += read_xidx(k + 2) + read_eidx(k + 1 + OPT["edist"])
        if ph == 2:
            extra[1] += [read_q(2), read_meta(k + 1, 1 - par)[0]]
            extra[5] += [f"s_waitcnt vmcnt({1 if OPT['xph'] == 3 else 0})"] + read_a(1 - par)
        if ph == 3:
            pre += [f"s_waitcnt lgkmcnt({prev_tail(hc)})"]
            extra[1] += [read_q(3)]
            qn = qa[1 - par]
            extra[2] += [f"v_cmp_ne_u32 vcc, v{qn}, v{qn+3}"]
            extra[3] += ["s_cmp_eq_u64 vcc, 0", f"s_cselect_b32 s{sH[0]}, 1, 0"]
        for x in pre: A(x)
        xph = OPT["xph"]
        if ph == 3 and OPT["clip"]:
            A(f"s_cmp_ge_u32 s{sN}, 3")
            if xph == 3: A(f"s_cselect_b32 s{SX+2}, {N_NODES}, 0")
            if OPT["edist"] == 2: A(f"s_cmp_ge_u32 s{sN}, 4")
            A(f"s_cselect_b32 s{SE+2}, {N_EDGES}, 0")
        if ph == 3 and OPT["edist"] == 2:
            for j in range(4): A(f"v_mov_b32 v{Ea+j}, v{EL[1-par]+j}")
        if ph == 0 and xph == 0 and OPT["clip"]:
            A(f"s_cmp_ge_u32 s{sN}, 2")
            A(f"s_cselect_b32 s{SX+2}, {N_NODES}, 0")
        ti = 0
        for m in range(6):
            me_ = 5 if OPT["elast"] else 4
            if ph == 3 and m == me_ and OPT["edist"] == 1: A(f"s_waitcnt vmcnt({4 if xph == 3 else 0})")
            A(M[m])
            if ph == xph and not OPT["nodma"] and m < 4:
                A(f"s_add_u32 m0, s{sXB}, {1024*m}")
                A("s_nop 0")
                A(f"buffer_load_dwordx4 v[{xi[m]}:{xi[m]+1}], s[{SX}:{SX+3}], 0 idxen offen{OPT['xpol']} lds")
            if ph == 3 and not OPT["nodma"] and m == me_ and OPT["eph"] == 3:
                if OPT["edist"] == 1: load_e(A, par)
                else: load_e(A, 1 - par, land=True)
            if ph == OPT["eph"] and ph < 3 and m == 1:
                A(f"s_cmp_ge_u32 s{sN}, 2")
                A(f"s_cselect_b32 s{SE+2}, {N_EDGES}, 0")
                load_e(A, 1 - par)
            if m == 5 and ph == 2:
                for x in extra[5]: A(x)
            if m == 0:
                if hB:
                    for x in merged_tail(Tp, qB, cB): A(x)
                else:
                    for j in range(4): A(f"v_rcp_f32 v{Tp+j}, v{Tp+j}")
            else:
                n = 3 if m < 5 else 4
                for x in tr[ti:ti + n]: A(x)
                ti += n
            if not (m == 5 and ph == 2):
                for x in extra[m]: A(x)
        assert ti == 16
        if not hD:
            cv, ad = flush_q(ph + 2, qD)
            for x in cv + ad: A(x)
        pk = pk_list(d, ph)
        if not hB:
            for x in pk[:2]: A(x)
        for x in pk[2:-1]: A(x)
        if hc:
            A(f"v_pk_mul_f32 {p(F64+4)}, {p(Uc)}, {p(Tc+2)}")
            A(f"v_pk_fma_f32 {p(Uc)}, {p(Uc+2)}, {p(Tc)}, {p(F64+4)}")
            A(f"v_pk_mul_f32 {p(Tc)}, {p(Tc)}, {p(Tc+2)}")
        else:
            A(pk[-1])

def merged_tail(Tp, q, c):
    Up = Tp + 4
    return [f"v_mul_f32 v{Tp+2}, v{Tp}, v{Tp+1}",
            f"v_mul_f32 v{Up+2}, v{Up}, v{Tp+1}",
            f"v_fma_f32 v{Up+2}, v{Up+1}, v{Tp}, v{Up+2}",
            f"v_rcp_f32 v{Tp+3}, v{Tp+2}",
            f"v_add_f32 v{chk}, v{chk}, v{Tp+2}",
            f"v_mul_f32 v{Up+2}, v{Up+2}, v{Tp+3}",
            f"v_cvt_f64_f32 v[{F64}:{F64+1}], v{Up+2}",
            f"ds_add_f64 v{q}, v[{F64}:{F64+1}] offset:{256*c}"]

def drain_fast(A, par, hc):
    p = lambda r: f"v[{r}:{r+1}]"
    Tp = TU[1]; Up = Tp + 4
    if hc:
        for x in merged_tail(Tp, qa[par], 3): A(x)
        return
    cv2, ad2 = flush_q(2, qa[par])
    cv3, ad3 = flush_q(3, qa[par])
    for x in ([f"v_rcp_f32 v{Tp+j}, v{Tp+j}" for j in range(4)] + cv2 + ad2 +
              [f"v_pk_mul_f32 {p(Up+j)}, {p(Up+j)}, {p(Tp+j)}" for j in (0, 2)] + cv3 + ad3): A(x)

def fast_loop(A):
    A(f"s_cmp_eq_u32 s{sH[0]}, 0")
    A("s_cbranch_scc0 B_T001")
    order = [(0, 0, 0), (1, 0, 0), (1, 0, 1), (0, 1, 0), (0, 0, 1), (1, 1, 1), (0, 1, 1), (1, 1, 0)]
    for n, (par, hp, hc) in enumerate(order):
        A.label(f"B_T{par}{hp}{hc}")
        tile_body(A, par, hp, hc)
        if par == 1:
            for r in (aX, aG, aO): A(f"v_add_u32 v{r}, {2*TB}, v{r}")
            for r in (aQ, aN): A(f"v_add_u32 v{r}, 64, v{r}")
        A(f"s_sub_u32 s{sN}, s{sN}, 1")
        A(f"s_cmp_eq_u32 s{sN}, {OPT['w2at']}")
        A(f"s_cbranch_scc0 B_W2T{par}{hp}{hc}")
        load_w2(A)
        A.label(f"B_W2T{par}{hp}{hc}")
        if OPT["prio"]:
            for rem, pr in OPT["psched"]:
                A(f"s_cmp_eq_u32 s{sN}, {rem}")
                A(f"s_cbranch_scc0 B_PT{par}{hp}{hc}{rem}")
                A(f"s_setprio {pr}")
                A.label(f"B_PT{par}{hp}{hc}{rem}")
        A(f"s_cmp_eq_u32 s{sN}, 0")
        A(f"s_cbranch_scc1 B_DRAIN{par}{hc}")
        A(f"s_cmp_eq_u32 s{sH[0]}, 0")
        nxt0 = (1 - par, hc, 0); nxt1 = (1 - par, hc, 1)
        follow = order[n + 1] if n + 1 < len(order) else None
        name = lambda t: f"B_T{t[0]}{t[1]}{t[2]}"
        if follow == nxt0:
            A(f"s_cbranch_scc0 {name(nxt1)}")
        elif follow == nxt1:
            A(f"s_cbranch_scc1 {name(nxt0)}")
        else:
            A(f"s_cbranch_scc0 {name(nxt1)}")
            A(f"s_branch {name(nxt0)}")
    for par in (0, 1):
        for hc in (0, 1):
            A.label(f"B_DRAIN{par}{hc}")
            drain_fast(A, par, hc)
            A("s_branch B_LOOPEND")

def tile_iter_safe(A, par):
    k = par; e = E; p = lambda r: f"v[{r}:{r+1}]"
    for ph in range(4):
        d = D[ph & 1]; dn = D[(ph + 1) & 1]
        if ph == 0:
            for x in read_meta(k + 1, 1 - par): A(x)
        if ph == 1:
            A("s_waitcnt lgkmcnt(4)")
            for x in calc_vq(): A(x)
            for j in range(4): A(f"v_add_u32 v{qa[1-par]+j}, v{qa[1-par]+j}, v{lanecol}")
            for x in [read_q(0), read_q(1)] + read_xidx(k + 2) + read_eidx(k + 2): A(x)
        if ph == 2: A(read_q(2))
        if ph == 3:
            A("s_waitcnt lgkmcnt(4)")
            dma_x(A)
            A("s_waitcnt vmcnt(4)")
            load_e(A, par)
            A(read_q(3))
        for m in chain((ph + 1) & 3, dn, par if ph < 3 else 1 - par): A(m)
        if ph == 2:
            A("s_waitcnt vmcnt(1)")
            for x in read_a(1 - par): A(x)
        for j in range(16): A(f"v_exp_f32 v{e+j}, v{d+j}")
        for j in range(0, 16, 2): A(f"v_pk_add_f32 {p(e+j)}, {p(e+j)}, 1.0 op_sel_hi:[1,0]")
        for j in range(16): A(f"v_rcp_f32 v{e+j}, v{e+j}")
        for j in range(0, 16, 2): A(f"v_pk_mul_f32 {p(d+j)}, {p(d+j)}, {p(e+j)}")
        for o in (0, 8):
            A(f"v_pk_add_f32 {p(d+o)}, {p(d+o)}, {p(d+o+2)}")
            A(f"v_pk_add_f32 {p(d+o+4)}, {p(d+o+4)}, {p(d+o+6)}")
        for o in (0, 8): A(f"v_pk_add_f32 {p(d+o)}, {p(d+o)}, {p(d+o+4)}")
        cvt = ((d, F64), (d + 1, F64 + 2), (d + 8, F64 + 4), (d + 9, F64 + 6))
        for r, t in cvt: A(f"v_cvt_f64_f32 v[{t}:{t+1}], v{r}")
        for j, (r, t) in enumerate(cvt): A(f"ds_add_f64 v{qa[par]+j}, v[{t}:{t+1}] offset:{256*ph}")

def load_w2(A, keep=False):
    a, b = sEx, sEx + 1
    srd(A, SO, pW2, 128 * 64 * 2)
    A(f"v_lshlrev_b32 v247, 4, v{vLane}")
    A(f"s_lshl_b32 s{a}, s{sWave}, 11")
    for j in range(2):
        A(f"s_add_u32 m0, s{a}, {L_W2 + 1024*j}")
        A(f"s_add_u32 s{b}, s{a}, {1024*j}")
        A(f"buffer_load_dwordx4 v247, s[{SO}:{SO+3}], s{b} offen lds")
    srd(A, SO, pB2, 128)
    A(f"s_mov_b32 m0, {L_W2 + 16384}")
    A("s_nop 0")
    A(f"buffer_load_dwordx4 v247, s[{SO}:{SO+3}], 0 offen lds")

def main_loop(A, fast):
    tag = "F" if fast else "S"
    if OPT["prio"]: A("s_setprio 3")
    if OPT["stagger"]:
        A(f"s_cmp_lt_u32 s{sWave}, 4")
        A(f"s_cbranch_scc1 B_STG0{tag}")
        A("s_barrier")
        A.label(f"B_STG0{tag}")
    for x in read_xidx(0) + read_eidx(0): A(x)
    for x in read_meta(0, 0): A(x)
    A(f"s_mul_i32 s{sEx}, s{sDel}, {TB}")
    A(f"s_lshl_b32 s{sEx+1}, s{sDel}, 5")
    for r in (aX, aG, aO): A(f"v_add_u32 v{r}, s{sEx}, v{r}")
    for r in (aQ, aN): A(f"v_add_u32 v{r}, s{sEx+1}, v{r}")
    A(f"s_mov_b32 s{SX+2}, {N_NODES}")
    A(f"s_mov_b32 s{SE+2}, {N_EDGES}")
    A("s_waitcnt lgkmcnt(0)")
    dma_x(A); load_e(A, 0)
    for x in read_eidx(1): A(x)
    for x in calc_vq(): A(x)
    if not fast:
        for j in range(4): A(f"v_add_u32 v{qa[0]+j}, v{qa[0]+j}, v{lanecol}")
    for c in range(4): A(read_q(c))
    for x in read_xidx(1): A(x)
    if fast:
        for t in TU:
            for j in range(4):
                A(f"v_mov_b32 v{t+j}, 1.0")
                A(f"v_mov_b32 v{t+4+j}, 0")
        for j in range(4): A(f"v_mov_b32 v{qa[1]+j}, v{lanecol}")
        A(f"v_cmp_ne_u32 vcc, v{qa[0]}, v{qa[0]+3}")
        A(f"s_mov_b32 s{sH[1]}, 0")
        A("s_cmp_eq_u64 vcc, 0")
        A(f"s_cselect_b32 s{sH[0]}, 1, 0")
    A("s_waitcnt vmcnt(0)")
    if OPT["stagger"]:
        A(f"s_cmp_ge_u32 s{sWave}, 4")
        A(f"s_cbranch_scc1 B_STG1{tag}")
        A("s_barrier")
        A.label(f"B_STG1{tag}")
    for x in read_a(0): A(x)
    A("s_waitcnt lgkmcnt(0)")
    A(f"s_cmp_ge_u32 s{sN}, 2")
    A(f"s_cselect_b32 s{SX+2}, {N_NODES}, 0")
    A(f"s_cselect_b32 s{SE+2}, {N_EDGES}, 0")
    if OPT["edist"] == 2 and fast:
        load_e(A, 1, land=True)
        for x in read_eidx(2): A(x)
        dma_x(A)
        A(f"s_cmp_ge_u32 s{sN}, 3")
        A(f"s_cselect_b32 s{SE+2}, {N_EDGES}, 0")
        A("s_waitcnt lgkmcnt(0)")
        load_e(A, 0, land=True)
    else:
        if OPT["xph"] == 3 or not fast: dma_x(A)
        if OPT["eph"] == 3 or not fast: load_e(A, 1)
    for m in chain(0, D[0], 0): A(m)
    A(f"s_cmp_le_u32 s{sN}, {OPT['w2at']}")
    A(f"s_cbranch_scc0 B_W2P{tag}")
    load_w2(A, keep=True)
    A.label(f"B_W2P{tag}")
    if OPT["prio"]: A("s_setprio 2")
    A("s_nop 7")
    A("s_nop 3")
    if fast: A("STAMP 9"); A("CSTAMP 13")
    if fast:
        fast_loop(A)
        return
    A.label(f"B_LOOP{tag}")
    for par in (0, 1):
        tile_iter_safe(A, par)
        if par == 1:
            for r in (aX, aG, aO): A(f"v_add_u32 v{r}, {2*TB}, v{r}")
            for r in (aQ, aN): A(f"v_add_u32 v{r}, 64, v{r}")
        A(f"s_sub_u32 s{sN}, s{sN}, 1")
        A(f"s_cmp_eq_u32 s{sN}, {OPT['w2at']}")
        A(f"s_cbranch_scc0 B_W2{tag}{par}")
        load_w2(A, keep=True)
        A.label(f"B_W2{tag}{par}")
        A(f"s_cmp_eq_u32 s{sN}, 0")
        if par == 0: A(f"s_cbranch_scc1 B_LOOPEND")
        else: A(f"s_cbranch_scc0 B_LOOP{tag}")
    A("s_branch B_LOOPEND")

def sort_slots(A, body, groups, tag, wait=False):
    for g in groups:
        if wait: A(f"s_waitcnt vmcnt({3 - g})")
        for i in range(4):
            A(f"v_cmpx_lt_i32 vcc, {8*g+i}, v{vLim}")
            if i % 2 == 0: A(f"s_cbranch_execz {tag}")
            body(g, i)

def estream(A, first, n, vaddr):
    srd(A, SP, pE, N_EDGES * 32)
    A(f"s_mul_i32 s{sT}, s2, {CH * 32}")
    A(f"s_mul_i32 s{sT2}, s{sWave}, 10240")
    A(f"s_add_u32 s{sT}, s{sT}, s{sT2}")
    A(f"s_add_u32 s{sT}, s{sT}, {1024 * first}")
    A(f"v_lshlrev_b32 v{vaddr}, 4, v{vLane}")
    for j in range(n):
        A(f"buffer_load_dwordx4 v[{F64}:{F64+3}], v{vaddr}, s[{SP}:{SP+3}], s{sT} offen offset:{1024*j}")

sDef = 3; sDel = 3; sFirst = 47; sES = 47; sQch = 28; sH = [29, 30]; SES = 4
def es_init(A):
    if not OPT["es2"]: return
    srd(A, SE, pE, N_EDGES * 32)
    A(f"s_mul_i32 s{sES}, s2, {CH * 32}")
    A(f"s_mul_i32 s{sT4}, s{sWave}, 10240")
    A(f"s_add_u32 s{sES}, s{sES}, s{sT4}")
    A(f"v_lshlrev_b32 v247, 4, v{vLane}")
def es(A, tag):
    if tag not in OPT["es2"]: return
    A(f"buffer_load_dwordx4 v[{F64}:{F64+3}], v247, s[{SRDE[0]}:{SRDE[0]+3}], s{sES} offen")
    A(f"s_add_u32 s{sES}, s{sES}, 1024")
SRDE = [SE]

def tr_addr(A, dst, base, rowbytes):
    A(f"v_lshrrev_b32 v{tmp}, 5, v{vLane}")
    A(f"v_bfe_u32 v{tmp2}, v{vLane}, 2, 2")
    A(f"v_lshl_add_u32 v{tmp}, v{tmp}, 3, v{tmp2}")
    A(f"v_mul_u32_u24 v{dst}, {rowbytes}, v{tmp}")
    A(f"v_bfe_u32 v{tmp}, v{vLane}, 4, 1")
    A(f"v_lshl_add_u32 v{dst}, v{tmp}, 5, v{dst}")
    A(f"v_and_b32 v{tmp}, 3, v{vLane}")
    A(f"v_lshl_add_u32 v{dst}, v{tmp}, 3, v{dst}")
    A(f"v_add_u32 v{dst}, {base}, v{dst}")

def lane_consts(A):
    A(f"""
v_add_u32 v{vN6}, s{sS6}, v{vLane}
v_and_b32 v{vN6}, 63, v{vN6}
v_lshlrev_b32 v{vN6}, 2, v{vN6}
v_and_b32 v119, 15, v{vLane}
v_lshlrev_b32 v119, 5, v119
v_add_u32 v119, {L_OHT - 1}, v119
v_lshlrev_b32 v{vOhp}, 16, v119
v_and_b32 v112, 31, v{vLane}
v_lshrrev_b32 v113, 5, v{vLane}
v_bfe_u32 v114, v{vLane}, 1, 3
v_lshlrev_b32 v115, 7, v112
v_add_u32 v115, s{sXB}, v115
""")
    for s in range(4):
        A(f"v_or_b32 v116, {2*s}, v113")
        A(f"v_xor_b32 v116, v116, v114")
        A(f"v_lshl_add_u32 v{xr[s]}, v116, 4, v115")
    A(f"""
v_lshlrev_b32 v{eAddr}, 4, v{vLane}
v_add_u32 v{eAddr}, s{sXB}, v{eAddr}
v_add_u32 v{eAddr}, 0x1000, v{eAddr}
v_mul_u32_u24 v{qbase}, {QSTR}, v112
v_lshl_add_u32 v{qbase}, v113, 4, v{qbase}
v_add_u32 v{qbase}, {L_QT}, v{qbase}
v_xor_b32 v{c1}, 1, v113
v_lshlrev_b32 v{c1}, 13, v{c1}
v_lshlrev_b32 v{lanecol}, 3, v112
v_lshlrev_b32 v{v16h}, 4, v113
v_and_b32 v116, 7, v{vLane}
v_lshrrev_b32 v117, 4, v{vLane}
v_xor_b32 v118, v116, v117
v_lshlrev_b32 v{xi[0]+1}, 4, v118
v_mov_b32 v{xi[2]+1}, v{xi[0]+1}
v_xor_b32 v118, 4, v118
v_lshlrev_b32 v{xi[1]+1}, 4, v118
v_mov_b32 v{xi[3]+1}, v{xi[1]+1}
v_lshlrev_b32 v{ei+1}, 4, v113
v_bfe_u32 v116, v{vLane}, 3, 1
v_bfe_u32 v117, v{vLane}, 4, 1
v_lshlrev_b32 v118, 4, v113
v_lshl_add_u32 v118, v116, 2, v118
v_add_u32 v118, v118, v117
v_lshlrev_b32 v{cX}, 3, v118
v_bfe_u32 v116, v{vLane}, 2, 1
v_lshlrev_b32 v118, 4, v116
v_bfe_u32 v116, v{vLane}, 4, 1
v_lshl_add_u32 v118, v116, 3, v118
v_and_b32 v116, 1, v{vLane}
v_lshl_add_u32 v118, v116, 2, v118
v_bfe_u32 v116, v{vLane}, 3, 1
v_lshl_add_u32 v118, v116, 1, v118
v_bfe_u32 v116, v{vLane}, 1, 1
v_add_u32 v118, v118, v116
v_lshlrev_b32 v{cO}, 3, v118
v_add_u32 v{cG}, 4, v{cO}
v_add_u32 v{cO}, 2, v{cO}
""")

def kernel():
    A = Asm(OPT["stamps"])
    A.label(KB)
    A(f"""
s_cmp_ge_u32 s2, {NB}
s_cbranch_scc1 B_END
STAMP 0
CSTAMP 11
s_load_dwordx16 s[48:63], s[0:1], 0
s_load_dwordx4 s[96:99], s[0:1], 64
s_load_dwordx2 s[100:101], s[0:1], 80
s_memrealtime s[{sEx2}:{sEx2+1}]
v_lshrrev_b32 v1, 6, v0
v_and_b32 v{vLane}, 63, v0
v_readfirstlane_b32 s{sWave}, v1
s_mul_i32 s{sStart}, s2, 625
s_add_u32 s{sT}, s{sStart}, {625 + 15}
s_add_u32 s{sStart}, s{sStart}, 15
s_lshr_b32 s{sStart}, s{sStart}, 4
s_lshr_b32 s{sT}, s{sT}, 4
s_sub_u32 s{sNn}, s{sT}, s{sStart}
s_and_b32 s{sS6}, s{sStart}, 63
s_mul_i32 s{sXB}, s{sWave}, {XBS}
s_add_u32 s{sXB}, s{sXB}, {L_XB0}
s_mov_b32 s{sMode}, 0
s_mov_b32 s{sR}, 32
s_mov_b32 s{sLo}, 0
s_mov_b32 s{sCnt}, 0x400000
v_mov_b32 v{vdeg}, 0
v_mov_b32 v{chk}, 0
v_mov_b32 v{chk+1}, 0
v_mov_b32 v40, 0
v_mov_b32 v41, 0
v_mov_b32 v42, 0
v_mov_b32 v43, 0
v_lshlrev_b32 v2, 4, v{vTID}
v_cmp_gt_u32 vcc, 64, v{vTID}
s_and_saveexec_b64 s[{sEx}:{sEx+1}], vcc
ds_write_b128 v2, v[40:43] offset:{L_HIST}
s_mov_b64 exec, s[{sEx}:{sEx+1}]
v_cmp_gt_u32 vcc, 0x88, v{vTID}
s_and_saveexec_b64 s[{sEx}:{sEx+1}], vcc
v_lshrrev_b32 v3, 3, v{vTID}
v_and_b32 v4, 7, v{vTID}
v_lshrrev_b32 v5, 1, v3
v_and_b32 v6, 1, v3
v_lshlrev_b32 v6, 4, v6
v_mov_b32 v7, {BF_ONE:#x}
v_lshlrev_b32 v7, v6, v7
v_cmp_eq_u32 vcc, v4, v5
v_lshlrev_b32 v8, 2, v{vTID}
v_cndmask_b32 v7, 0, v7, vcc
v_add_u32 v8, {L_OHT}, v8
ds_write_b32 v8, v7
s_mov_b64 exec, s[{sEx}:{sEx+1}]
v_cmp_gt_u32 vcc, 16, v{vTID}
s_and_saveexec_b64 s[{sEx}:{sEx+1}], vcc
ds_write_b128 v2, v[40:43] offset:{L_FLAG}
s_mov_b64 exec, s[{sEx}:{sEx+1}]
s_waitcnt lgkmcnt(0)
STAMP 1
""")
    A(f"""
s_cmp_lg_u32 s2, 0
s_cbranch_scc1 A_NONONCE
s_cmp_lg_u32 s{sWave}, 0
s_cbranch_scc1 A_NONONCE
s_and_b32 s{sEx2+1}, s{sEx2+1}, 0xff
s_or_b32 s{sEx2+1}, s{sEx2+1}, 0x80000000
v_mov_b32 v4, s{sEx2}
v_mov_b32 v5, s{sEx2+1}
v_mov_b32 v3, 0
s_mov_b64 exec, 1
global_store_dwordx2 v3, v[4:5], s[{pDbg}:{pDbg+1}] sc1
s_mov_b64 exec, -1
""")
    A.label("A_NONONCE")
    if OPT["touch"]:
        ptrs = [pW1, pX, pB1, pWs, pE, pW2, pOut, pB2]
        A("v_mov_b32 v3, 0")
        for w, p in enumerate(ptrs):
            A(f"s_cmp_lg_u32 s{sWave}, {w}")
            A(f"s_cbranch_scc1 A_T{w}")
            A(f"global_load_dword v{F64+5}, v3, s[{p}:{p+1}]")
            A.label(f"A_T{w}")
    srd(A, SO, pDst, N_EDGES * 4)
    srd(A, SP, pSrc, N_EDGES * 4)
    A(f"""
s_mul_i32 s{sT}, s2, {CH * 4}
v_add_u32 v3, 0x2000, v2
v_mov_b32 v4, 0x7ffffff0
v_cmp_gt_u32 vcc, {CH // 4 - 512}, v{vTID}
v_lshlrev_b32 v18, 2, v{vTID}
v_add_u32 v18, 0x2000, v18
v_cndmask_b32 v3, v4, v3, vcc
v_cmp_gt_u32 vcc, {CH - 2048}, v{vTID}
s_mov_b64 s[{sEx2}:{sEx2+1}], vcc
v_cndmask_b32 v18, v4, v18, vcc
buffer_load_dwordx4 v[40:43], v2, s[{SO}:{SO+3}], s{sT} offen
buffer_load_dword v48, v18, s[{SO}:{SO+3}], s{sT} offen
buffer_load_dwordx4 v[44:47], v2, s[{SP}:{SP+3}], s{sT} offen
buffer_load_dword v52, v18, s[{SP}:{SP+3}], s{sT} offen
""")
    def side(i):
        if i == 0:
            srd(A, SO, pW1, 144 * 128 * 2)
            srd(A, SP, pX, N_NODES * 128)
            A(f"v_lshlrev_b32 v1, 4, v{vLane}")
            A(f"s_lshl_b32 s{sT4}, s{sWave}, 10")
        if i == 0 and OPT["rot"]:
            A(f"s_lshr_b32 s{sT}, s2, 3")
            A(f"s_mul_i32 s{sT2}, s{sT}, 52429")
            A(f"s_lshr_b32 s{sT2}, s{sT2}, 18")
            A(f"s_mul_i32 s{sT2}, s{sT2}, 5")
            A(f"s_sub_u32 s{sT}, s{sT}, s{sT2}")
            A(f"s_lshl_b32 s{sT}, s{sT}, 13")
        if i < 5 and OPT["rot"]:
            A(f"s_add_u32 s{sT3}, s{sT4}, s{sT}")
            A(f"s_add_u32 m0, s{sT3}, {L_WRAW}")
            A(f"s_add_u32 s{sT}, s{sT}, 8192")
            A(f"buffer_load_dwordx4 v1, s[{SO}:{SO+3}], s{sT3} offen lds")
            A(f"s_cmp_ge_u32 s{sT}, {5 * 8192}")
            A(f"s_cselect_b32 s{sT2}, {5 * 8192}, 0")
            A(f"s_sub_u32 s{sT}, s{sT}, s{sT2}")
        elif i < 5:
            A(f"s_add_u32 m0, s{sT4}, {L_WRAW + 8192*i}")
            A(f"s_add_u32 s{sT3}, s{sT4}, {8192*i}")
            A(f"buffer_load_dwordx4 v1, s[{SO}:{SO+3}], s{sT3} offen lds")
        if i == 5:
            A(f"""
s_lshl_b32 s{sT3}, s{sWave}, 3
v_lshrrev_b32 v5, 3, v{vLane}
v_add_u32 v5, s{sT3}, v5
v_bfe_u32 v6, v5, 1, 3
v_and_b32 v7, 7, v{vLane}
v_xor_b32 v6, v6, v7
v_add_u32 v5, s{sStart}, v5
v_lshlrev_b32 v5, 7, v5
v_lshl_add_u32 v5, v6, 4, v5
s_add_u32 m0, s{sT4}, {L_XROW}
s_and_b32 s{sT3}, s{sWave}, 3
buffer_load_dwordx4 v5, s[{SP}:{SP+3}], 0 offen lds
""")
        if i == 6:
            A(f"""
s_lshl_b32 s{sT3}, s{sT3}, 5
v_and_b32 v5, 31, v{vLane}
v_lshrrev_b32 v222, 5, v{vLane}
v_add_u32 v221, s{sT3}, v5
v_lshlrev_b32 v9, 1, v221
global_load_ushort v223, v9, s[{pB1}:{pB1+1}]
""")
    late = OPT["sidelate"]
    if OPT["sidepost"]: OPT["sl"] = ((), (), (), (), ())
    if not late:
        for i in range(7): side(i)
    A("s_barrier")
    A(f"""
v_lshlrev_b32 v11, 16, v{vTID}
v_lshlrev_b32 v12, 14, v{vTID}
v_add_u32 v12, {2048 << 14:#x}, v12
s_mov_b32 s{sT2}, 429497
STAMP 2
s_waitcnt vmcnt({2 if OPT["sidelate"] else 9})
STAMP 3
""")
    es_init(A)
    es(A, "a")
    def hist(base, dst, n=4):
        for i in range(n): A(f"v_mul_u32_u24 v{base+i}, s{sT2}, v{dst+i}")
        for i in range(n): A(f"v_lshrrev_b32 v{base+i}, 22, v{base+i}")
        for i in range(n):
            A(f"v_and_b32 v{base+i}, 0x3fc, v{base+i}")
            A(f"ds_add_rtn_u32 v{base+8+i}, v{base+i}, v13 offset:{L_HIST}")
    def recs(dst, src, eid, n=4):
        for i in range(n):
            A(f"v_lshl_or_b32 v{dst+i}, v{dst+i}, 26, v{src+i}")
            A(f"v_add_u32 v{dst+i}, v{dst+i}, v{eid}")
            if i: A(f"v_add_u32 v{dst+i}, {i << 14:#x}, v{dst+i}")
    A("v_mov_b32 v13, 1")
    hist(56, 40)
    A(f"s_mov_b64 exec, s[{sEx2}:{sEx2+1}]")
    hist(60, 48, 1)
    A("s_mov_b64 exec, -1")
    A(f"s_waitcnt vmcnt({0 if late else 7})")
    recs(40, 44, 11)
    recs(48, 52, 12, 1)
    A.label("A_H1")
    A(f"""
s_waitcnt lgkmcnt(0)
s_barrier
v_lshlrev_b32 v14, 4, v{vLane}
ds_read_b128 v[72:75], v14 offset:{L_HIST}
v_mov_b32 v15, 0
s_cmp_lg_u32 s{sWave}, 0
s_cbranch_scc1 A_NOTAG0
global_load_dwordx2 v[16:17], v15, s[{pDbg}:{pDbg+1}] sc1
A_NOTAG0:
""")
    if late:
        for i in OPT['sl'][0]: side(i)
    A(f"""
s_waitcnt lgkmcnt(0)
v_add_u32 v76, v72, v73
v_add_u32 v77, v76, v74
v_add_u32 v78, v77, v75
v_mov_b32 v79, v78
""")
    if late:
        for i in OPT['sl'][1]: side(i)
    es(A, "c")
    wave_scan(A, 79)
    A(f"""
v_sub_u32 v80, v79, v78
v_add_u32 v81, v80, v72
v_add_u32 v82, v80, v76
v_add_u32 v83, v80, v77
ds_write_b128 v14, v[80:83] offset:{L_BASE}
""")
    if late:
        for i in OPT['sl'][2]: side(i)
    A("s_waitcnt lgkmcnt(0)")
    for i in range(5): A(f"ds_read_b32 v{56+i}, v{56+i} offset:{L_BASE}")
    if late:
        for i in OPT['sl'][3]: side(i)
    for i in range(4):
        A(f"s_waitcnt lgkmcnt({4-i})")
        A(f"v_add_lshl_u32 v{56+i}, v{56+i}, v{64+i}, 2")
        A(f"ds_write_b32 v{56+i}, v{40+i} offset:{L_SORT}")
    A(f"s_mov_b64 exec, s[{sEx2}:{sEx2+1}]")
    A("s_waitcnt lgkmcnt(4)")
    A(f"v_add_lshl_u32 v60, v60, v68, 2")
    A(f"ds_write_b32 v60, v48 offset:{L_SORT}")
    A("s_mov_b64 exec, -1")
    if late:
        for i in OPT['sl'][4]: side(i)
    A.label("A_H2")
    srd(A, SW, pWs, WS_END)
    A(f"""
s_waitcnt lgkmcnt(0)
s_barrier
STAMP 4
ds_read_b128 v[40:43], v2 offset:{L_SORT}
ds_read_b128 v[44:47], v2 offset:{L_SORT + 8192}
s_mul_i32 s{sT}, s2, {CH * 4}
s_add_u32 s{sT}, s{sT}, {WS_REC}
s_waitcnt lgkmcnt(1)
buffer_store_dwordx4 v[40:43], v2, s[{SW}:{SW+3}], s{sT} offen{OPT['stpol']}
s_waitcnt lgkmcnt(0)
buffer_store_dwordx4 v[44:47], v3, s[{SW}:{SW+3}], s{sT} offen{OPT['stpol']}
""")
    A(f"""
s_cmp_lg_u32 s{sWave}, 0
s_cbranch_scc1 A_DRAIN
""")
    A.label("A_NONCE")
    A(f"""
s_waitcnt vmcnt(0)
v_readfirstlane_b32 s{sTagLo}, v16
v_readfirstlane_b32 s{sTagB}, v17
s_cmp_lt_i32 s{sTagB}, 0
s_cbranch_scc1 A_HAVETAG
A_NONCE2:
s_sub_u32 s{sCnt}, s{sCnt}, 1
s_cmp_eq_u32 s{sCnt}, 0
s_cbranch_scc1 B_END
s_sleep 1
global_load_dwordx2 v[16:17], v15, s[{pDbg}:{pDbg+1}] sc1
s_waitcnt vmcnt(0)
v_readfirstlane_b32 s{sTagLo}, v16
v_readfirstlane_b32 s{sTagB}, v17
s_cmp_lt_i32 s{sTagB}, 0
s_cbranch_scc0 A_NONCE2
""")
    A.label("A_HAVETAG")
    A(f"""
v_and_b32 v17, 0xff, v17
v_mov_b32 v15, {L_FLAG}
ds_write_b64 v15, v[16:17] offset:16
s_and_b32 s{sTagB}, s{sTagB}, 0xff
""")
    A.label("A_DRAIN")
    A(f"""
s_waitcnt vmcnt(0) lgkmcnt(0)
s_barrier
s_cmp_lg_u32 s{sWave}, 0
s_cbranch_scc1 A_PUBLISHED
s_lshl_b32 s{sT}, s{sTagB}, 24
v_mov_b32 v41, s{sTagLo}
v_mov_b32 v43, s{sTagLo}
v_mov_b32 v45, s{sTagLo}
v_mov_b32 v47, s{sTagLo}
v_lshl_or_b32 v40, v72, 12, v80
v_lshl_or_b32 v42, v73, 12, v81
v_lshl_or_b32 v44, v74, 12, v82
v_lshl_or_b32 v46, v75, 12, v83
v_or_b32 v40, s{sT}, v40
v_or_b32 v42, s{sT}, v42
v_or_b32 v44, s{sT}, v44
v_or_b32 v46, s{sT}, v46
""")
    if not OPT["ttbl"]:
        A(f"""
v_lshlrev_b32 v14, 5, v{vLane}
s_lshl_b32 s{sT}, s2, 11
s_add_u32 s{sT}, s{sT}, {WS_TBL}
buffer_store_dwordx4 v[40:43], v14, s[{SW}:{SW+3}], s{sT} offen sc1
buffer_store_dwordx4 v[44:47], v14, s[{SW}:{SW+3}], s{sT} offen offset:16 sc1
""")
    else:
        A(f"""
v_lshlrev_b32 v14, 13, v{vLane}
v_add_u32 v15, 0x1000, v14
s_lshl_b32 s{sT}, s2, 3
s_add_u32 s{sT}, s{sT}, {WS_TBL}
buffer_store_dwordx2 v[40:41], v14, s[{SW}:{SW+3}], s{sT} offen sc1
buffer_store_dwordx2 v[42:43], v14, s[{SW}:{SW+3}], s{sT} offen offset:2048 sc1
buffer_store_dwordx2 v[44:45], v15, s[{SW}:{SW+3}], s{sT} offen sc1
buffer_store_dwordx2 v[46:47], v15, s[{SW}:{SW+3}], s{sT} offen offset:2048 sc1
""")
    A.label("A_PUBLISHED")
    A("STAMP 5")
    if OPT["xw"]:
        srd(A, SP, pX, N_NODES * 128)
        A(f"s_lshr_b32 s{sT}, s2, 3")
        A(f"s_mul_i32 s{sT}, s{sT}, 40000")
        A(f"s_mul_i32 s{sT2}, s{sWave}, 5000")
        A(f"s_add_u32 s{sT}, s{sT}, s{sT2}")
        A(f"v_lshlrev_b32 v247, 4, v{vLane}")
        for j in range(5):
            A(f"buffer_load_dwordx4 v[252:255], v247, s[{SP}:{SP+3}], s{sT} offen offset:{1024*j if j < 4 else 0}")
            if j == 3: A(f"s_add_u32 s{sT}, s{sT}, 4096")
    if OPT["etouch"]:
        srd(A, SE, pE, N_EDGES, stride=32)
        A(f"v_mul_u32_u24 v247, {N_EDGES // 512}, v{vTID}")
        A(f"buffer_load_dword v{vDummy}, v247, s[{SE}:{SE+3}], 0 idxen")
    if OPT["sidepost"]:
        for i in range(7): side(i)
    A(f"v_mov_b32 v15, {L_FLAG}")
    A("ds_read_b64 v[16:17], v15 offset:16")
    A(f"""
v_lshrrev_b32 v4, 1, v{vTID}
v_mul_u32_u24 v{vC25}, {CH}, v4
v_lshlrev_b32 v4, {3 if OPT["ttbl"] else 11}, v4
s_waitcnt lgkmcnt(0)
v_readfirstlane_b32 s{sTagLo}, v16
v_readfirstlane_b32 s{sTagB}, v17
""")
    if OPT["sidepost"]:
        fill_lists(A)
        zero_s(A)
        A("s_waitcnt vmcnt(0)")
        A("s_barrier")
    A(f"""
s_lshr_b32 s{sT}, s{sWave}, 2
s_lshl_b32 s{sT}, s{sT}, 12
s_add_u32 s{sT}, s{sT}, {L_XROW}
v_and_b32 v216, 31, v{vLane}
v_bfe_u32 v217, v{vLane}, 1, 3
v_lshlrev_b32 v216, 7, v216
v_add_u32 v216, s{sT}, v216
""")
    for s_ in range(4):
        A(f"v_or_b32 v218, {2*s_}, v222")
        A(f"v_xor_b32 v218, v218, v217")
        A(f"v_lshl_add_u32 v218, v218, 4, v216")
        A(f"ds_read_b128 v[{X+4*s_}:{X+4*s_+3}], v218")
    tr_addr(A, 216, L_WRAW, 256)
    A(f"""
s_lshr_b32 s{sT}, s{sWave}, 2
s_lshl_b32 s{sT}, s{sT}, 12
s_and_b32 s{sT2}, s{sWave}, 3
s_lshl_b32 s{sT2}, s{sT2}, 6
s_add_u32 s{sT}, s{sT}, s{sT2}
v_add_u32 v217, s{sT}, v216
v_add_u32 v218, s{sT2}, v216
""")
    WC = 112
    for j, (reg, off) in enumerate(((217, 0), (217, 32 * 256), (218, 128 * 256))):
        A(f"ds_read_b64_tr_b16 v[{WC+4*j}:{WC+1+4*j}], v{reg} offset:{off}")
        A(f"ds_read_b64_tr_b16 v[{WC+2+4*j}:{WC+3+4*j}], v{reg} offset:{off + 1024}")
    for s_ in range(4):
        A(f"ds_read_b64_tr_b16 v[{D[0]+4*s_}:{D[0]+4*s_+1}], v218 offset:{(64 + 16*s_) * 256}")
        A(f"ds_read_b64_tr_b16 v[{D[0]+4*s_+2}:{D[0]+4*s_+3}], v218 offset:{(64 + 16*s_) * 256 + 1024}")
    A(f"s_mov_b32 s{sT3}, {f2u(SCALE):#x}")
    A("s_waitcnt lgkmcnt(8)")
    for j in range(12):
        A(f"v_lshlrev_b32 v219, 16, v{WC+j}")
        A(f"v_and_b32 v220, 0xffff0000, v{WC+j}")
        A(f"v_mul_f32 v219, s{sT3}, v219")
        A(f"v_mul_f32 v220, s{sT3}, v220")
        A(f"v_cvt_pk_bf16_f32 v{WC+j}, v219, v220")
    A(f"""
v_lshlrev_b32 v219, 4, v{vLane}
s_lshl_b32 s{sT}, s{sWave}, 10
s_add_u32 s{sT}, s{sT}, {L_WST}
v_add_u32 v219, s{sT}, v219
""")
    A(f"ds_write_b128 v219, v[{WC}:{WC+3}]")
    A(f"ds_write_b128 v219, v[{WC+4}:{WC+7}] offset:8192")
    A("s_waitcnt lgkmcnt(2)")
    for s_ in range(4):
        A(f"v_mfma_f32_32x32x16_bf16 v[{D[1]}:{D[1]+15}], v[{X+4*s_}:{X+4*s_+3}], v[{D[0]+4*s_}:{D[0]+4*s_+3}], {'0' if s_ == 0 else f'v[{D[1]}:{D[1]+15}]'}")
    A(f"s_cmp_ge_u32 s{sWave}, 4")
    A("s_cbranch_scc1 B_NOWC")
    A(f"ds_write_b128 v219, v[{WC+8}:{WC+11}] offset:16384")
    A.label("B_NOWC")
    A(f"""
v_lshlrev_b32 v223, 16, v223
v_mul_f32 v223, s{sT3}, v223
v_mul_u32_u24 v224, {QSTR}, v221
s_lshr_b32 s{sT}, s{sWave}, 2
s_lshl_b32 s{sT}, s{sT}, 6
v_lshl_add_u32 v224, v222, 3, v224
v_add_u32 v224, s{sT}, v224
""")
    for j in range(16): A(f"v_fma_f32 v{D[1]+j}, v{D[1]+j}, s{sT3}, v223")
    for g in range(4):
        A(f"v_cvt_pk_bf16_f32 v{X+2*g}, v{D[1]+4*g}, v{D[1]+4*g+1}")
        A(f"v_cvt_pk_bf16_f32 v{X+2*g+1}, v{D[1]+4*g+2}, v{D[1]+4*g+3}")
    for g in range(2):
        A(f"ds_write_b64 v224, v[{X+2*g}:{X+2*g+1}] offset:{L_QT + 16*g}")
    A(f"s_cmp_ge_u32 s{sWave}, 4")
    A(f"s_cbranch_scc1 B_QDONE")
    for g in range(2, 4):
        A(f"ds_write_b64 v224, v[{X+2*g}:{X+2*g+1}] offset:{L_QT + 16*g}")
    A.label("B_QDONE")
    if not OPT["sidepost"]:
        fill_lists(A)
        zero_s(A)
    if OPT["lcearly"]:
        srd(A, SX, pX, N_NODES, stride=128)
        srd(A, SE, pE, N_EDGES, stride=32)
        lane_consts(A)
    A("s_waitcnt lgkmcnt(0)")
    A("s_barrier")
    if OPT["wearly"]:
        A(f"v_lshlrev_b32 v1, 4, v{vLane}")
        A(f"v_add_u32 v1, {L_WST}, v1")
        for u in range(16): A(f"ds_read_b128 v[{W+4*u}:{W+4*u+3}], v1 offset:{1024*u}")
        for c in range(4): A(f"ds_read_b128 v[{We+4*c}:{We+4*c+3}], v1 offset:{1024*(16+c)}")
    for _ in range(OPT["predelay"]): A("s_sleep 8")
    A(f"""
s_lshl_b32 s{sT}, s2, {11 if OPT["ttbl"] else 3}
s_add_u32 s{sT}, s{sT}, {WS_TBL}
s_mov_b32 s{sCnt}, 0x400000
s_mov_b32 s{sFirst}, 1
STAMP 6
""")
    if not OPT["ppoll"]:
        A.label("B_POLL")
        A(f"""
buffer_load_dwordx2 v[{vTbl}:{vTbl+1}], v4, s[{SW}:{SW+3}], s{sT} offen sc1
s_waitcnt vmcnt(0)
v_lshrrev_b32 v5, 24, v{vTbl}
v_cmp_ne_u32 vcc, s{sTagLo}, v{vTbl+1}
v_cmp_ne_u32 s[{sEx}:{sEx+1}], s{sTagB}, v5
s_or_b64 vcc, vcc, s[{sEx}:{sEx+1}]
s_and_b64 exec, exec, vcc
s_cbranch_execz B_POLLED
s_sub_u32 s{sCnt}, s{sCnt}, 1
s_cmp_eq_u32 s{sCnt}, 0
s_cbranch_scc1 B_END
s_sleep {OPT["psleep"]}
s_branch B_POLL
""")
    else:
        P = (216, 218)
        A(f"buffer_load_dwordx2 v[{P[0]}:{P[0]+1}], v4, s[{SW}:{SW+3}], s{sT} offen sc1")
        A.label("B_POLL")
        for k in (0, 1):
            a, b = P[k], P[1 - k]
            A(f"""
s_sleep {OPT["psleep"]}
buffer_load_dwordx2 v[{b}:{b+1}], v4, s[{SW}:{SW+3}], s{sT} offen sc1
s_waitcnt vmcnt(1)
v_lshrrev_b32 v5, 24, v{a}
v_cmp_ne_u32 vcc, s{sTagLo}, v{a+1}
v_cmp_ne_u32 s[{sEx}:{sEx+1}], s{sTagB}, v5
s_or_b64 vcc, vcc, s[{sEx}:{sEx+1}]
s_and_b64 s[{sEx2}:{sEx2+1}], exec, vcc
s_andn2_b64 exec, exec, vcc
v_mov_b32 v{vTbl}, v{a}
s_mov_b64 exec, s[{sEx2}:{sEx2+1}]
s_cbranch_execz B_POLLED
""")
        A(f"""
s_sub_u32 s{sCnt}, s{sCnt}, 1
s_cmp_eq_u32 s{sCnt}, 0
s_cbranch_scc1 B_END
s_branch B_POLL
""")
    A.label("B_POLLED")
    A("s_mov_b64 exec, -1")
    A("STAMP 7")
    A.label("B_ROUND")
    A(f"""
v_bfe_u32 v{vLim}, v{vTbl}, 12, 12
v_mov_b32 v245, v{vLim}
v_subrev_u32 v{vLim}, s{sLo}, v{vLim}
v_min_i32 v{vLim}, s{sR}, v{vLim}
v_and_b32 v{vT}, 1, v{vTID}
v_lshlrev_b32 v{vT}, 2, v{vT}
v_sub_u32 v{vLim}, v{vLim}, v{vT}
v_and_b32 v{tmp}, 0xfff, v{vTbl}
v_add3_u32 v{tmp}, v{tmp}, v{vC25}, v{vT}
v_add_u32 v{tmp}, s{sLo}, v{tmp}
v_lshlrev_b32 v{tmp}, 2, v{tmp}
v_mov_b32 v{tmp2+1}, 0x7ffffff0
s_mov_b32 s{sT}, {WS_REC}
""")
    for g in range(4):
        A(f"v_cmp_lt_i32 vcc, {8*g}, v{vLim}")
        A(f"v_cndmask_b32 v{tmp2}, v{tmp2+1}, v{tmp}, vcc")
        A(f"buffer_load_dwordx4 v[{R+4*g}:{R+4*g+3}], v{tmp2}, s[{SW}:{SW+3}], s{sT} offen offset:{32*g}{OPT['recpol']}")
    A(f"s_cmp_eq_u32 s{sFirst}, 0")
    A("s_cbranch_scc1 B_NOTFIRST")
    if not OPT["lcearly"]:
        srd(A, SX, pX, N_NODES, stride=128)
        srd(A, SE, pE, N_EDGES, stride=32)
        lane_consts(A)
    A(f"""
v_lshlrev_b32 v1, 4, v{vLane}
v_add_u32 v1, {L_WST}, v1
""")
    if not OPT["wearly"]:
        for u in range(16): A(f"ds_read_b128 v[{W+4*u}:{W+4*u+3}], v1 offset:{1024*u}")
        for c in range(4): A(f"ds_read_b128 v[{We+4*c}:{We+4*c+3}], v1 offset:{1024*(16+c)}")
    A(f"s_mov_b32 s{sFirst}, 0")
    A("s_branch B_COUNT")
    A.label("B_NOTFIRST")
    A("s_waitcnt lgkmcnt(0)")
    A("s_barrier")
    A.label("B_COUNT")
    A(f"""
v_mov_b32 v246, {L_FLAG}
ds_max_u32 v246, v245
v_mov_b32 v{vT}, 1
""")
    def a4(j):
        A(f"v_lshrrev_b32 v{A4+j}, 24, v{R+j}")
        A(f"v_and_b32 v{A4+j}, 0xfc, v{A4+j}")
    if OPT["cpin"]:
        A(f"s_lshl_b32 s{sT}, s{sS6}, 2")
        A(f"s_mov_b32 s{SE+2}, {N_EDGES}")
    A("s_waitcnt vmcnt(0)" if OPT["cpin"] else "s_waitcnt vmcnt(2)")
    for j in range(8): a4(j)
    for g in range(4):
        if g >= 2:
            if not OPT["cpin"]: A(f"s_waitcnt vmcnt({3 - g})")
            for i in range(4): a4(4 * g + i)
        for i in range(4):
            A(f"v_cmpx_lt_i32 vcc, {8*g+i}, v{vLim}")
            if i % 2 == 0: A("s_cbranch_execz B_COUNTED")
            A(f"ds_add_rtn_u32 v{RK+4*g+i}, v{A4+4*g+i}, v{vT} offset:{L_CNT}")
            if OPT["cpin"] and g < OPT["cpg"]:
                j = 4 * g + i
                A(f"v_subrev_u32 v246, s{sT}, v{A4+j}")
                A(f"v_bfe_u32 v247, v{R+j}, 14, 12")
                A(f"v_cmp_gt_u32 vcc, {4 * OPT['cpin']}, v246")
                A(f"v_add_u32 v247, v{vC25}, v247")
                A(f"s_and_saveexec_b64 s[{sEx}:{sEx+1}], vcc")
                A(f"buffer_load_dword v{vDummy}, v247, s[{SE}:{SE+3}], 0 idxen")
                A(f"s_mov_b64 exec, s[{sEx}:{sEx+1}]")
    A.label("B_COUNTED")
    if OPT["cpre"]:
        A("s_mov_b64 exec, -1")
        A("s_waitcnt vmcnt(0)")
        A(f"s_lshl_b32 s{sT}, s{sS6}, 2")
        A(f"s_mov_b32 s{SE+2}, {N_EDGES}")
        for j in range(8):
            A(f"v_subrev_u32 v246, s{sT}, v{A4+j}")
            A(f"v_bfe_u32 v247, v{R+j}, 14, 12")
            A(f"v_cmpx_gt_u32 vcc, {4 * OPT['cpre']}, v246")
            A(f"v_add_u32 v247, v{vC25}, v247")
            A(f"buffer_load_dword v{vDummy}, v247, s[{SE}:{SE+3}], 0 idxen")
            A("s_mov_b64 exec, -1")
        A("s_waitcnt lgkmcnt(0)")
        A("s_barrier")
        A("STAMP 8")
    else:
      A(f"""
s_mov_b64 exec, -1
s_waitcnt {"" if OPT["cpin"] else "vmcnt(0) "}lgkmcnt(0)
s_barrier
STAMP 8
""")
    A(f"""
v_mov_b32 v{tmp2}, 0
ds_read_b32 v{tmp}, v{vN6} offset:{L_CNT}
ds_read_b32 v{tmp2}, v{tmp2} offset:{L_FLAG}
v_cmp_gt_u32 vcc, s{sNn}, v{vLane}
s_waitcnt lgkmcnt(0)
v_readfirstlane_b32 s{sMax}, v{tmp2}
v_add_u32 v{NT}, 3, v{tmp}
v_lshrrev_b32 v{NT}, 2, v{NT}
v_max_u32 v{NT}, 1, v{NT}
v_cndmask_b32 v{NT}, 0, v{NT}, vcc
v_mov_b32 v{NT+1}, v{NT}
""")
    wave_scan(A, NT + 1)
    es(A, "j")
    A(f"""
v_readlane_b32 s{sTot}, v{NT+1}, 63
v_sub_u32 v{NT+4}, v{NT+1}, v{NT}
v_lshlrev_b32 v{NT+4}, 2, v{NT+4}
v_mov_b32 v{NT+5}, v{vOhp}
v_lshlrev_b32 v{NT+6}, 10, v{vLane}
s_cmp_gt_u32 s{sTot}, {CAPQ}
s_cbranch_scc1 B_OVERFLOW
s_and_saveexec_b64 s[{sEx}:{sEx+1}], vcc
v_add_u32 v{vdeg}, v{vdeg}, v{tmp}
v_lshlrev_b32 v{tmp}, 1, v{vN6}
ds_write_b64 v{tmp}, v[{NT+4}:{NT+5}] offset:{L_NTAB}
s_mov_b64 exec, s[{sEx}:{sEx+1}]
v_mov_b32 v{tmp}, s{sWave}
v_lshl_add_u32 v{tmp2}, v{tmp}, 2, v{NT+4}
B_QFILL:
v_cmpx_lt_u32 vcc, v{tmp}, v{NT}
s_cbranch_execz B_QFILLED
ds_write_b32 v{tmp2}, v{NT+6} offset:{L_QADDR}
v_add_u32 v{tmp}, 8, v{tmp}
v_add_u32 v{tmp2}, 32, v{tmp2}
s_branch B_QFILL
B_QFILLED:
s_mov_b64 exec, -1
v_mov_b32 v{vT}, {L_LIST}
s_mov_b32 s{sT3}, {L_LIST + 1024}
s_mov_b32 s{SE+2}, {N_EDGES}
s_mov_b32 s{sT4}, 0x3fff
s_waitcnt lgkmcnt(0)
""")
    def scatter_batch(groups, tag):
        if groups[0] >= 2: A(f"v_cmpx_lt_i32 vcc, {8*groups[0]}, v{vLim}")
        for n, g in enumerate(groups):
            for i in range(4):
                j = 4 * g + i; t = NT + 8 + 4 * (4 * n + i)
                A(f"v_lshlrev_b32 v{tmp}, 1, v{A4+j}")
                A(f"ds_read_b64 v[{t}:{t+1}], v{tmp} offset:{L_NTAB}")
        A("s_waitcnt lgkmcnt(0)")
        def body(g, i):
            j = 4 * g + i; t = NT + 8 + 4 * (4 * groups.index(g) + i)
            A(f"v_add_u32 v{t}, v{t}, v{RK+j}")
            A(f"v_and_or_b32 v{t+2}, v{R+j}, s{sT4}, v{t+1}")
            A(f"v_bfe_u32 v{t+3}, v{R+j}, 14, 12")
            A(f"v_lshl_add_u32 v{t}, v{t}, 3, v{vT}")
            A(f"v_add_u32 v{t+3}, v{vC25}, v{t+3}")
            A(f"ds_write_b64 v{t}, v[{t+2}:{t+3}]")
            if OPT["epre"]:
                A(f"v_cmp_gt_u32 vcc, s{sT3}, v{t}")
                A(f"s_and_saveexec_b64 s[{sEx}:{sEx+1}], vcc")
                A(f"buffer_load_dword v{vDummy}, v{t+3}, s[{SE}:{SE+3}], 0 idxen")
                A(f"s_mov_b64 exec, s[{sEx}:{sEx+1}]")
        sort_slots(A, body, groups, tag)
    scatter_batch([0, 1], "B_SC1")
    A.label("B_SC1")
    A(f"""
s_mov_b64 exec, -1
v_cmp_lt_i32 vcc, 16, v{vLim}
s_cbranch_vccz B_SC3
""")
    scatter_batch([2], "B_SC2")
    A.label("B_SC2")
    A(f"""
s_mov_b64 exec, -1
v_cmp_lt_i32 vcc, 24, v{vLim}
s_cbranch_vccz B_SC3
""")
    scatter_batch([3], "B_SC3")
    A.label("B_SC3")
    A("s_mov_b64 exec, -1")
    A(f"""
s_add_u32 s{sT}, s{sTot}, 7
s_lshr_b32 s{sT}, s{sT}, 3
s_lshr_b32 s{sT2}, s{sT}, 3
s_and_b32 s{sT3}, s{sT}, 7
s_mul_i32 s{sT0}, s{sT2}, s{sWave}
s_min_u32 s{sN}, s{sWave}, s{sT3}
s_add_u32 s{sT0}, s{sT0}, s{sN}
s_cmp_lt_u32 s{sWave}, s{sT3}
s_cselect_b32 s{sN}, 1, 0
s_add_u32 s{sN}, s{sN}, s{sT2}
""")
    if OPT["skew"]:
        k = OPT["skew"]
        A(f"""
s_cmp_lt_u32 s{sT2}, {2*k + 1}
s_cbranch_scc1 B_NOSKEW
s_min_u32 s{sT3}, s{sWave}, 4
s_sub_u32 s{sT4}, s{sWave}, s{sT3}
s_sub_u32 s{sT3}, s{sT3}, s{sT4}
s_mul_i32 s{sT3}, s{sT3}, {k}
s_add_u32 s{sT0}, s{sT0}, s{sT3}
s_cmp_lt_u32 s{sWave}, 4
s_cselect_b32 s{sT3}, {k}, {-k & 0xffffffff}
s_add_u32 s{sN}, s{sN}, s{sT3}
B_NOSKEW:
""")
    A(f"""
s_add_u32 s{sT3}, s{sTot}, 7
s_lshr_b32 s{sT3}, s{sT3}, 6
s_add_u32 s{sT2}, s{sT0}, 7
s_sub_u32 s{sT2}, s{sT2}, s{sWave}
s_sub_u32 s{sT2}, s{sT2}, s{sWave}
s_cmp_ge_u32 s{sT3}, 3
s_cselect_b32 s{sDel}, s{sT2}, 0
s_cselect_b32 s{sT0}, s{sWave}, s{sT0}
""")
    A(f"""
s_mul_i32 s{sT}, s{sT0}, {TB}
s_add_u32 s{sT}, s{sT}, {L_LIST}
v_add_u32 v{aX}, s{sT}, v{cX}
v_add_u32 v{aG}, s{sT}, v{cG}
v_add_u32 v{aO}, s{sT}, v{cO}
s_lshl_b32 s{sT}, s{sT0}, 5
s_add_u32 s{sT}, s{sT}, {L_QADDR}
v_mov_b32 v{aN}, s{sT}
v_add_u32 v{aQ}, s{sT}, v{v16h}
s_waitcnt lgkmcnt(0)
s_barrier
""")
    for _ in range(OPT["diagsleep"]): A("s_sleep 36")
    A(f"""
STAMP 12
s_cmp_eq_u32 s{sN}, 0
s_cbranch_scc1 B_NOTILES
s_cmp_lg_u32 s{sMode}, 0
s_cbranch_scc1 B_SAFE
""")
    main_loop(A, True)
    A.label("B_SAFE")
    main_loop(A, False)
    A.label("B_NOTILES")
    load_w2(A)
    if OPT["stagger"]: A("s_barrier")
    if OPT["stagger"] == 2: A("s_barrier")
    A.label("B_LOOPEND")
    A(f"""
s_setprio 0
STAMP 10
CSTAMP 14
s_waitcnt vmcnt(0)
""")
    A(f"""
v_lshrrev_b32 v3, 5, v{vLane}
s_and_b32 s{sT}, s{sWave}, 1
s_lshl_b32 s{sT}, s{sT}, 6
v_lshlrev_b32 v4, 3, v3
v_add_u32 v4, s{sT}, v4
""")
    A(f"""
s_waitcnt vmcnt(0) lgkmcnt(0)
s_barrier
s_add_u32 s{sLo}, s{sLo}, s{sR}
s_cmp_ge_u32 s{sLo}, s{sMax}
s_cbranch_scc1 B_FINISH
""")
    fill_lists(A)
    A("s_branch B_ROUND")
    A.label("B_OVERFLOW")
    A(f"s_mov_b32 s{sR}, 8")
    A.label("B_RESTART")
    A(f"""
s_barrier
s_mov_b32 s{sLo}, 0
v_mov_b32 v{vdeg}, 0
v_mov_b32 v{chk}, 0
v_mov_b32 v{chk+1}, 0
""")
    fill_lists(A)
    zero_s(A)
    A("s_branch B_ROUND")
    A.label("B_FINISH")
    SB = L_LIST
    wf = lambda s_: (216 + 4 * s_) if s_ < 6 else (120 + 4 * (s_ - 6))
    BU = E
    A(f"""
v_lshlrev_b32 v{tmp}, 4, v{vTID}
""")
    for j in range(5):
        A(f"ds_read_b128 v[{E+4*j}:{E+4*j+3}], v{tmp} offset:{L_S + 8192*j}")
    tr_addr(A, 11, L_W2, 128)
    A(f"s_and_b32 s{sT}, s{sWave}, 1")
    A(f"s_lshl_b32 s{sT}, s{sT}, 6")
    A(f"v_add_u32 v11, s{sT}, v11")
    A(f"""
v_mov_b32 v5, 0x71800000
v_cmp_nlt_f32 vcc, v{chk}, v5
v_cmp_nlt_f32 s[{sEx}:{sEx+1}], v{chk+1}, v5
s_or_b64 vcc, vcc, s[{sEx}:{sEx+1}]
v_lshlrev_b32 v6, 2, v{vLane}
ds_write_b32 v6, v{vdeg} offset:{L_DEG}
""")
    A(f"v_add_u32 v6, {L_W2 + 16384}, v4")
    for g in range(4): A(f"ds_read_b64 v[{104+2*g}:{105+2*g}], v6 offset:{16*g}")
    for s_ in range(4):
        A(f"ds_read_b64_tr_b16 v[{wf(s_)}:{wf(s_)+1}], v11 offset:{2048*s_}")
        A(f"ds_read_b64_tr_b16 v[{wf(s_)+2}:{wf(s_)+3}], v11 offset:{2048*s_ + 512}")
    A(f"""
v_lshrrev_b32 v7, 6, v{vTID}
v_mul_u32_u24 v7, {SBSTR}, v7
v_and_b32 v8, 63, v{vTID}
v_lshl_add_u32 v7, v8, 2, v7
v_add_u32 v7, {SB}, v7
v_mov_b32 v9, {f2u(1.0 / SCALE):#x}
v_mov_b32 v10, 0
s_waitcnt lgkmcnt(13)
""")
    for j in range(10): A(f"v_cvt_f32_f64 v{D[1]+j}, v[{E+2*j}:{E+2*j+1}]")
    for s_ in range(4, 8):
        A(f"ds_read_b64_tr_b16 v[{wf(s_)}:{wf(s_)+1}], v11 offset:{2048*s_}")
        A(f"ds_read_b64_tr_b16 v[{wf(s_)+2}:{wf(s_)+3}], v11 offset:{2048*s_ + 512}")
    for j in range(10): A(f"v_mul_f32 v{D[1]+j}, v9, v{D[1]+j}")
    for j in range(5):
        A(f"v_cvt_pk_bf16_f32 v{E+j}, v{D[1]+2*j}, v{D[1]+2*j+1}")
        A(f"ds_write_b32 v7, v{E+j} offset:{8*SBSTR*j}")
    for j in range(10): A(f"v_fmac_f32 v10, 0, v{D[1]+j}")
    A(f"v_cmp_u_f32 s[{sEx}:{sEx+1}], v10, v10")
    A(f"s_or_b64 vcc, vcc, s[{sEx}:{sEx+1}]")
    A(f"""
s_cmp_eq_u64 vcc, 0
s_cbranch_scc1 B_NOFLAG
v_mov_b32 v5, {L_FLAG}
v_mov_b32 v6, 1
ds_write_b32 v5, v6 offset:4
""")
    A.label("B_NOFLAG")
    A(f"""
s_lshr_b32 s{sT}, s{sWave}, 1
s_lshl_b32 s{sT}, s{sT}, 5
v_and_b32 v2, 31, v{vLane}
v_add_u32 v2, s{sT}, v2
v_mul_u32_u24 v5, {SBSTR}, v2
v_lshl_add_u32 v5, v3, 4, v5
v_add_u32 v5, {SB}, v5
v_lshlrev_b32 v6, 2, v2
v_add_u32 v8, s{sStart}, v2
v_lshlrev_b32 v8, 7, v8
v_add_u32 v8, v8, v4
v_mov_b32 v9, {L_FLAG}
""")
    B2 = 104
    A("s_waitcnt lgkmcnt(12)")
    for g in range(4):
        A(f"v_lshlrev_b32 v{BU+4*g}, 16, v{B2+2*g}")
        A(f"v_and_b32 v{BU+4*g+1}, 0xffff0000, v{B2+2*g}")
        A(f"v_lshlrev_b32 v{BU+4*g+2}, 16, v{B2+2*g+1}")
        A(f"v_and_b32 v{BU+4*g+3}, 0xffff0000, v{B2+2*g+1}")
    srd(A, SO, pOut, N_NODES * 128)
    A(f"""
s_waitcnt lgkmcnt(0)
s_barrier
ds_read_b32 v10, v9 offset:4
ds_read_b32 v7, v6 offset:{L_DEG}
""")
    for s_ in range(8):
        A(f"ds_read_b128 v[{X+4*s_}:{X+4*s_+3}], v5 offset:{32*s_}")
    A(f"""
s_waitcnt lgkmcnt(9)
v_readfirstlane_b32 s{sT}, v10
s_cmp_lg_u32 s{sMode}, 0
s_cbranch_scc1 B_OUT
s_cmp_eq_u32 s{sT}, 0
s_cbranch_scc1 B_OUT
s_mov_b32 s{sMode}, 1
s_waitcnt lgkmcnt(0)
""")
    lane_consts(A)
    A("s_branch B_RESTART")
    A.label("B_OUT")
    A(f"""
s_cmp_ge_u32 s{sWave}, 4
s_cbranch_scc1 {"B_FLUSH" if OPT["stamps"] else "B_END"}
""")
    d = D[0]
    for s_ in range(8):
        A(f"s_waitcnt lgkmcnt({7 - s_})")
        A(f"v_mfma_f32_32x32x16_bf16 v[{d}:{d+15}], v[{wf(s_)}:{wf(s_)+3}], v[{X+4*s_}:{X+4*s_+3}], {'0' if s_ == 0 else f'v[{d}:{d+15}]'}")
    A(f"""
v_cvt_f32_u32 v7, v7
v_cmp_gt_u32 vcc, s{sNn}, v2
""")
    for j in range(16):
        A(f"v_fma_f32 v{d+j}, v7, v{BU+j}, v{d+j}")
    A(f"s_and_saveexec_b64 s[{sEx}:{sEx+1}], vcc")
    for g in range(4):
        A(f"v_cvt_pk_bf16_f32 v{D[1]+2*g}, v{d+4*g}, v{d+4*g+1}")
        A(f"v_cvt_pk_bf16_f32 v{D[1]+2*g+1}, v{d+4*g+2}, v{d+4*g+3}")
        A(f"buffer_store_dwordx2 v[{D[1]+2*g}:{D[1]+2*g+1}], v8, s[{SO}:{SO+3}], 0 offen offset:{16*g}")
    if OPT["stamps"]:
        A.label("B_FLUSH")
        A("s_waitcnt vmcnt(0)")
        A("STAMP 12" if False else "STAMP 15")
        stamp_flush(A, 16)
    A.label("B_END")
    A("s_endpgm")
    A.pad()
    bad = A.check_loop("B_LOOPS", "s_cbranch_scc0 B_LOOPS")
    assert not bad, bad
    return A

def main(path):
    k = kernel()
    hdr = open("cdna_kernels/" + NAME + ".s.ref").read().split("; Override launch geometry")[0]
    s = hdr
    s += """; One workgroup per CU, 8 waves.  Workgroup c
"""
    s += f"; @launch grid=({NB},1,1) block=(512,1,1) lds={LDS_B}\n"
    s += '.amdgcn_target "amdgcn-amd-amdhsa--gfx950"\n.text\n'
    s += f".globl {KB}\n.p2align 8\n.type {KB},@function\n" + k.text()
    acc = (NVGPR + 3) // 4 * 4
    s += f""".section .rodata,"a"
.p2align 6
.amdhsa_kernel {KB}
  .amdhsa_next_free_vgpr {NVGPR}
  .amdhsa_next_free_sgpr 102
  .amdhsa_accum_offset {acc}
  .amdhsa_group_segment_fixed_size 0
  .amdhsa_kernarg_size 88
  .amdhsa_user_sgpr_count 2
  .amdhsa_user_sgpr_kernarg_segment_ptr 1
  .amdhsa_system_sgpr_workgroup_id_x 1
.end_amdhsa_kernel
"""
    open(path, "w").write(s)

if __name__ == "__main__":
    main(OPT["out"] or "cdna_kernels/" + NAME + ".s")
```
